```python
import torch

def _softmax(x, axis=-1):
    return torch.softmax(x, dim=axis)
def _gelu(x):
    return torch.nn.functional.gelu(x, approximate="tanh")
def _silu(x):
    return torch.nn.functional.silu(x)
def _sigmoid(x):
    return torch.sigmoid(x)
def _layernorm(x, axis=-1, eps=1e-5):
    m = x.mean(dim=axis, keepdim=True)
    v = x.var(dim=axis, keepdim=True, unbiased=False)
    return (x - m) / torch.sqrt(v + eps)
def _scatter_add(tgt, idx, src, axis=0):
    return tgt.clone().index_add_(axis, idx, src)
def _segment_sum(src, seg, n):
    out = torch.zeros((n,) + src.shape[1:], dtype=src.dtype)
    return out.index_add_(0, seg, src)
def _pad(x, pw):
    flat = tuple(v for pair in reversed(pw) for v in pair)
    return torch.nn.functional.pad(x, flat)

kernel_name = 'concat_heads__mha_block_cached__mha_block_cached__near_ridge'

def setup_inputs():

    _w = (lambda a: (lambda t: t.to(torch.bfloat16) if t.is_floating_point() else t)(torch.as_tensor(a)))
    def _A_setup():
        B, Sq, D = 16, 160, 512
        H, Sk, Dh = 32, 512, 128
        return {
            "x": _w((lambda *s: torch.randn(*s, dtype=torch.bfloat16) * 0.8)(B, Sq, D)),
            "k_cache": _w((lambda *s: torch.randn(*s, dtype=torch.bfloat16) * 0.8)(B, H, Sk, Dh)),
            "v_cache": _w((lambda *s: torch.randn(*s, dtype=torch.bfloat16) * 0.05)(B, H, Sk, Dh)),
            "wq": _w((lambda *s: torch.randn(*s, dtype=torch.bfloat16) * 0.8)(D, H * Dh) * (D ** -0.5)),
            "wo": _w((lambda *s: torch.randn(*s, dtype=torch.bfloat16) * 0.05)(H * Dh, D) * ((H * Dh) ** -0.5)),
        }
    _A_in = _A_setup()

    def _B_setup():
        B, Sq, D = 16, 160, 512
        H, Sk, Dh = 32, 512, 128
        return {
            "x": _w((lambda *s: torch.randn(*s, dtype=torch.bfloat16) * 0.8)(B, Sq, D)),
            "k_cache": _w((lambda *s: torch.randn(*s, dtype=torch.bfloat16) * 0.8)(B, H, Sk, Dh)),
            "v_cache": _w((lambda *s: torch.randn(*s, dtype=torch.bfloat16) * 0.05)(B, H, Sk, Dh)),
            "wq": _w((lambda *s: torch.randn(*s, dtype=torch.bfloat16) * 0.8)(D, H * Dh) * (D ** -0.5)),
            "wo": _w((lambda *s: torch.randn(*s, dtype=torch.bfloat16) * 0.05)(H * Dh, D) * ((H * Dh) ** -0.5)),
        }
    _B_in = _B_setup()

    return {
        "A_x": _A_in["x"],
        "A_k_cache": _A_in["k_cache"],
        "A_v_cache": _A_in["v_cache"],
        "A_wq": _A_in["wq"],
        "A_wo": _A_in["wo"],
        "B_x": _B_in["x"],
        "B_k_cache": _B_in["k_cache"],
        "B_v_cache": _B_in["v_cache"],
        "B_wq": _B_in["wq"],
        "B_wo": _B_in["wo"],
    }

def reference(A_x, A_k_cache, A_v_cache, A_wq, A_wo, B_x, B_k_cache, B_v_cache, B_wq, B_wo):
    def _A_ref(x, k_cache, v_cache, wq, wo):
        B, Sq, D = x.shape
        H, Dh = 32, 128
        q = (lambda x, *d: x.permute(*d))((x @ wq).reshape(B, Sq, H, Dh), 0, 2, 1, 3)
        scores = torch.einsum("bhqd,bhkd->bhqk", q, k_cache) * (Dh ** -0.5)
        p = _softmax(scores, axis=-1)
        o = torch.einsum("bhqk,bhkd->bhqd", p, v_cache)
        return (lambda x, *d: x.permute(*d))(o, 0, 2, 1, 3).reshape(B, Sq, H * Dh) @ wo

    def _B_ref(x, k_cache, v_cache, wq, wo):
        B, Sq, D = x.shape
        H, Dh = 32, 128
        q = (lambda x, *d: x.permute(*d))((x @ wq).reshape(B, Sq, H, Dh), 0, 2, 1, 3)
        scores = torch.einsum("bhqd,bhkd->bhqk", q, k_cache) * (Dh ** -0.5)
        p = _softmax(scores, axis=-1)
        o = torch.einsum("bhqk,bhkd->bhqd", p, v_cache)
        return (lambda x, *d: x.permute(*d))(o, 0, 2, 1, 3).reshape(B, Sq, H * Dh) @ wo

    a = _A_ref(A_x, A_k_cache, A_v_cache, A_wq, A_wo)
    b = _B_ref(B_x, B_k_cache, B_v_cache, B_wq, B_wo)
    return torch.concatenate([a, b], axis=-1)
```

```python
import re

def R(kind, lo, n=1):
    return [f"{kind}{lo+i}" for i in range(n)]
def rng(kind, lo, n):
    return f"{kind}{lo}" if n == 1 else f"{kind}[{lo}:{lo+n-1}]"

class Reg:
    def __init__(s, kind, lo, n=1): s.kind, s.lo, s.n = kind, lo, n
    def __str__(s): return rng(s.kind, s.lo, s.n)
    def regs(s): return R(s.kind, s.lo, s.n)
    def sub(s, off, n=1): return Reg(s.kind, s.lo + off, n)
def V(lo, n=1): return Reg('v', lo, n)
def A(lo, n=1): return Reg('a', lo, n)
def S(lo, n=1): return Reg('s', lo, n)

class Ins:

    def __init__(s, text, kind, rd=(), wr=(), cread=(), tag=None, states=1):
        s.text = text; s.kind = kind
        s.rd = set(rd); s.wr = set(wr); s.cread = set(cread)
        s.tag = tag; s.pos = None; s.states = states; s.tag_gap = -100
    def __repr__(s): return s.text

def mfma(d, a, b, c):
    cr = c.regs() if isinstance(c, Reg) else []
    return Ins(f"v_mfma_f32_16x16x32_bf16 {d}, {a}, {b}, {c}", 'mfma', rd=a.regs() + b.regs() + cr, wr=d.regs(), cread=cr)
def valu(text, wr, rd):
    f = lambda L: [r for x in L for r in (x.regs() if isinstance(x, Reg) else [x])]
    return Ins(text, 'valu', rd=f(rd), wr=f(wr))
def trans(text, wr, rd):
    i = valu(text, wr, rd); i.kind = 'trans'; return i
def salu(text, wr=(), rd=()):
    f = lambda L: [r for x in L for r in (x.regs() if isinstance(x, Reg) else [x])]
    return Ins(text, 'salu', rd=f(rd), wr=f(wr))

VEC = ('valu', 'trans')
MEMV = ('ds_r', 'ds_w', 'dma', 'vld', 'vst')

class Emitter:
    def __init__(s):
        s.out = []
        s.lgkm = []
        s.vm = []
        s.pend = {}
        s.nstates = 0
        s.hist = []
        s.nnop = 0
    def need_states(s, ins):
        need = 0
        for (st, p) in reversed(s.hist):
            d = s.nstates - st
            if d >= 12: break
            req = 0
            if p.kind == 'mfma':
                if ins.kind == 'mfma':
                    ab = ins.rd - ins.cread
                    if p.wr & ab: req = 8
                    elif p.wr & ins.cread:
                        req = 0 if ins.cread == p.wr else 6
                elif ins.kind in VEC:
                    if p.wr & (ins.rd | ins.wr): req = 8
                    if p.cread & ins.wr: req = max(req, 3)
                elif ins.kind in MEMV:
                    if p.wr & (ins.rd | ins.wr): req = 8
            elif p.kind in VEC:
                if ins.kind == 'mfma' and (p.wr & ins.rd): req = 2
                if p.kind == 'trans' and ins.kind == 'valu' and (p.wr & ins.rd): req = max(req, 1)
                if ins.kind in VEC and 'permlane' in ins.text and (p.wr & ins.rd): req = max(req, 2)
                if ins.kind in VEC and 'dpp' in ins.text and (p.wr & ins.rd): req = max(req, 2)
                if ins.kind in VEC and ('readfirstlane' in ins.text or 'readlane' in ins.text) and (p.wr & ins.rd): req = max(req, 1)
                sw = {r for r in p.wr if r[0] == 's' or r == 'vcc'}
                if sw:
                    if ins.kind in VEC and (sw & ins.rd): req = max(req, 2)
                    if ins.kind in MEMV and (sw & ins.rd): req = max(req, 5)
                    if ins.kind == 'salu' and (sw & ins.rd): req = max(req, 4)
            elif p.kind == 'salu':
                if 'm0' in p.wr and ins.kind == 'dma': req = 1
            elif p.kind == 'vst' or p.kind == 'ds_w':
                if ins.kind in VEC and (p.rd & ins.wr): req = 2
                elif (p.rd & ins.wr): req = 1
            need = max(need, req - d)
        return need
    def raw(s, ins):
        ins.pos = len(s.out)
        s.out.append(ins)
        if ins.kind in ('label', 'comment'): return ins
        s.nstates += ins.states
        s.hist.append((s.nstates, ins))
        if len(s.hist) > 40: s.hist.pop(0)
        if ins.kind in ('ds_r', 'ds_w'): s.lgkm.append(ins)
        if ins.kind in ('dma', 'vld', 'vst'): s.vm.append(ins)
        if ins.kind in ('ds_r', 'vld'):
            for r in ins.wr: s.pend[r] = ins
        return ins
    def nop(s, n):
        while n > 0:
            k = min(n, 16)
            s.raw(Ins(f"s_nop {k-1}", 'nop', states=k)); n -= k; s.nnop += 1
    def lgkm_needed(s, inss):
        idx = -1
        for i, o in enumerate(s.lgkm):
            if any(o is x for x in inss): idx = i
        if idx < 0: return None
        return min(len(s.lgkm) - 1 - idx, 15)
    def vm_needed(s, inss):
        idx = -1
        for i, o in enumerate(s.vm):
            if any(o is x for x in inss): idx = i
        if idx < 0: return None
        return min(len(s.vm) - 1 - idx, 63)
    def wait(s, lg=None, vm=None):
        if lg is None and vm is None: return False
        t = []
        if vm is not None:
            t.append(f"vmcnt({vm})")
            done = s.vm[:len(s.vm) - vm]; s.vm = s.vm[len(s.vm) - vm:]
            for o in done:
                for r in o.wr:
                    if s.pend.get(r) is o: del s.pend[r]
        if lg is not None:
            t.append(f"lgkmcnt({lg})")
            done = s.lgkm[:len(s.lgkm) - lg]; s.lgkm = s.lgkm[len(s.lgkm) - lg:]
            for o in done:
                for r in o.wr:
                    if s.pend.get(r) is o: del s.pend[r]
        s.raw(Ins("s_waitcnt " + " ".join(t), 'wait'))
        return True
    def deps_wait(s, ins):
        ds = [s.pend[r] for r in (ins.rd | ins.wr) if r in s.pend and s.pend[r].kind == 'ds_r']
        vl = [s.pend[r] for r in (ins.rd | ins.wr) if r in s.pend and s.pend[r].kind == 'vld']
        return s.lgkm_needed(ds), s.vm_needed(vl)
    def emit(s, ins):
        if ins.kind not in ('label', 'comment', 'wait', 'nop', 'barrier'):
            lg, vm = s.deps_wait(ins)
            s.wait(lg, vm)
            n = s.need_states(ins)
            if n > 0: s.nop(n)
        return s.raw(ins)
    def text(s):
        L = []
        for i in s.out:
            L.append(i.text)
        return "\n".join(L)

UNITS = {'ds_r': 1, 'valu': 1, 'trans': 2, 'dma': 2, 'vld': 2, 'ds_w': 2, 'vst': 2, 'salu': 0, 'skip': 0}

class Item:
    def __init__(s, peek, earliest=-1, deadline=10**9, prio=0, name="", commit=None, areg=None):
        s.peek = peek; s.earliest = earliest; s.deadline = deadline
        s.prio = prio; s.name = name; s.gap = None; s.ins = None; s.commit = commit
        s.areg = areg

def simple(ins, **kw):
    return Item(lambda: (ins.kind, ins, True), **kw)

class BB:
    def __init__(s, ins, cap=2):
        s.ins = ins; s.cap = cap; s.post = []

class Sched:
    def __init__(s, em):
        s.em = em
        s.bb = []
        s.streams = {}
        s.overflow = 0
        s.g = -1
        s.ovf_log = []
    def add(s, ins, cap=2):
        s.bb.append(BB(ins, cap)); return len(s.bb) - 1
    def n(s): return len(s.bb)
    def item(s, stream, it):
        s.streams.setdefault(stream, []).append(it); return it
    def post(s, idx, fn):
        s.bb[idx].post.append(fn)
    def run(s):
        em = s.em
        heads = {k: 0 for k in s.streams}
        nb = len(s.bb)
        for g in range(nb):
            b = s.bb[g]
            s.g = g
            if b.ins is not None:
                em.emit(b.ins)
            nscalar = 0
            for fn in b.post:
                nscalar += (fn() or 0)
            if g + 1 < nb and s.bb[g + 1].ins is not None:
                lg, vm = em.deps_wait(s.bb[g + 1].ins)
                if lg is not None:
                    for k in (2, 3, 4):
                        if g + k < nb and s.bb[g + k].ins is not None:
                            l2, _ = em.deps_wait(s.bb[g + k].ins)
                            if l2 is not None and l2 < lg:
                                o = em.lgkm[len(em.lgkm) - 1 - l2]
                                if g - o.tag_gap >= 8: lg = l2
                if em.wait(lg, vm): nscalar += 1
            used = max(0, nscalar - 1)
            cap = b.cap
            valu_seen = False
            vec_seen = False
            def try_place(it, forced):
                nonlocal used, nscalar, valu_seen, vec_seen
                r = it.peek()
                if r is None: return None
                kind, ins, consume = r
                u = UNITS[kind]
                if kind == 'skip':
                    return 'consumed'
                if kind == 'salu':
                    cost = 0 if (nscalar == 0 and not vec_seen and cap > 0) else 1
                    if not forced and (vec_seen or used + cost > cap): return None
                else:
                    cost = u
                    if not forced:
                        if kind in MEMV and valu_seen: return None
                        if used + cost > cap: return None
                if not forced:
                    if em.need_states(ins) > 0: return None
                    lg, vm = em.deps_wait(ins)
                    if lg is not None or vm is not None: return None
                em.emit(ins)
                ins.tag_gap = g
                used += cost
                if kind == 'salu': nscalar += 1
                else:
                    vec_seen = True
                    if kind in VEC: valu_seen = True
                if it.commit: it.commit(ins, consume)
                if consume:
                    it.ins = ins; it.gap = g
                    return 'consumed'
                return 'partial'
            progress = True
            while progress:
                progress = False
                cands = []
                for k, L in s.streams.items():
                    h = heads[k]
                    if h >= len(L): continue
                    it = L[h]
                    if it.earliest > g: continue
                    r = it.peek()
                    if r is None: continue
                    cands.append((it.deadline, it.prio, k, it, r[0]))
                cands.sort(key=lambda x: (x[0], x[1]))
                order = [c for c in cands if c[4] in ('skip', 'salu')]
                rest = [c for c in cands if c[4] not in ('skip', 'salu')]
                if rest and rest[0][4] == 'valu' and cap - used >= 2:
                    rest = [c for c in rest if c[4] == 'ds_r'][:1] + rest
                order += rest
                for (dl, pr, k, it, kd) in order:
                    r = try_place(it, dl <= g)
                    if r is not None:
                        if r == 'consumed': heads[k] += 1
                        progress = True
                        break
            if used < cap:
                for k, L in s.streams.items():
                    seen = set()
                    for it in L[heads[k]:heads[k] + 24]:
                        if it.areg is None: continue
                        ar, tgt = it.areg
                        if id(ar) in seen: continue
                        seen.add(id(ar))
                        t = tgt()
                        if t is None: continue
                        if not ar.reach(t) and used < cap:
                            ins = ar.rebase_ins(t)
                            if em.need_states(ins) == 0:
                                em.emit(ins); ar.rebased(t); used += 1
            if used > cap and cap > 0:
                s.overflow += used - cap; s.ovf_log.append((g, used - cap))
        for k, L in s.streams.items():
            if heads[k] < len(L):
                raise RuntimeError(f"stream {k}: {len(L)-heads[k]} items unscheduled; first {L[heads[k]].name} earliest {L[heads[k]].earliest}")

class AddrReg:
    def __init__(s, v, base=0, top=163840):
        s.v = v; s.base = base; s.top = top
    def reach(s, t): return 0 <= t - s.base <= 65535
    def newbase(s, t):
        nb = (t // 16384) * 16384
        return min(nb, s.top - 65536)
    def rebase_ins(s, t):
        d = (s.newbase(t) - s.base) & 0xffffffff
        return valu(f"v_add_u32 v{s.v}, 0x{d:x}, v{s.v}", [V(s.v)], [V(s.v)])
    def rebased(s, t): s.base = s.newbase(t)
```

```python
import sys, struct
from core import *

NAME = "concat_heads__mha_block_cached__mha_block_cached__near_ridge"
LDS_BYTES = 163840
BLK = 16384
XAREA = [114688, 114688 + 20480]
FLAG_OFF = 155648

sK, sV, sX, sWq, sWo, sWs = S(4,4), S(8,4), S(12,4), S(16,4), S(20,4), S(24,4)
sW, sXw, sOff, sOwn, sOth = 28, 29, 30, 31, 32
sWave, sP, sI, sRedo = 33, 34, 35, 36
sC = S(38, 2)
vT = [1,2,3,4]; vD = [5,6,7,8]; vX = [9,10,11,12]
vOffK, vOffV, vOffX, vOffWq, vOffWo = 13, 14, 15, 16, 17
vLinW, vLinR, vSt = 18, 19, 20
vTmp = [21, 22, 23]
NEGM, SBUF, PBUF, OACC = 24, 44, 68, 80
aQ, aKF, aVF, aST, aL, aONE = 0, 80, 112, 144, 224, 244

def f32(x): return struct.unpack('<I', struct.pack('<f', x))[0]
CSCALE = 1.4426950408889634 * (128 ** -0.5)

class Alloc:
    def __init__(s):
        s.gr = [None] * 40
        s.gr[38] = s.gr[39] = 'misc'
        s.order = []
    def free_blocks(s):
        return [b for b in range(10) if all(s.gr[4*b+j] is None for j in range(4))]
    def take_block(s, b, who):
        for j in range(4):
            assert s.gr[4*b+j] is None
            s.gr[4*b+j] = who
    def range_free(s, lo, n): return all(s.gr[j] is None for j in range(lo // 4096, (lo + n) // 4096))
    def take_range(s, lo, n, who):
        for j in range(lo // 4096, (lo + n) // 4096):
            assert s.gr[j] is None
            s.gr[j] = who
    def release(s, who):
        for j in range(40):
            if s.gr[j] is who: s.gr[j] = None
    def held(s, cls): return len({id(x) for x in s.gr if isinstance(x, Xfer) and x.cls == cls})

class Xfer:
    def __init__(s, cls, name, pieces, allowed=None, fixed=None):
        s.cls = cls; s.name = name; s.pieces = pieces
        s.allowed = allowed; s.fixed = fixed
        s.addr = None; s.ins = []; s.reads = []; s.issued = 0

class Gen:
    def __init__(s, opts):
        s.o = opts
        s.em = Emitter()
        s.sc = Sched(s.em)
        s.al = Alloc()
        s.aT = [AddrReg(v) for v in vT]
        s.aD = [AddrReg(v) for v in vD]
        s.aX = [AddrReg(v, base=XAREA[0]) for v in vX]
        s.m0own = None
        s.soff_cur = None
        s.last_dma_gap = {}
        s.gate = {}
        s.stamps = 0
    def try_alloc(s, x, dry):
        if x.addr is not None: return True
        if x.cls in s.gate and not s.gate[x.cls](x): return False
        if x.fixed is not None:
            lo, n = x.fixed
            if not s.al.range_free(lo, n): return False
            if not dry: s.al.take_range(lo, n, x); x.addr = lo
            return True
        fb = [b for b in s.al.free_blocks() if x.allowed is None or b in x.allowed(x)]
        if not fb: return False
        if not dry:
            s.al.take_block(fb[0], x); x.addr = fb[0] * BLK
        return True
    def add_xfer(s, stream, x, earliest=-1, deadline=10**9, spacing=0, prio=5):
        for pi, (srd, voff, sbase, sconst, imm, ldsoff, m0b, flags) in enumerate(x.pieces):
            def mk(pi=pi, srd=srd, voff=voff, sbase=sbase, sconst=sconst, imm=imm, ldsoff=ldsoff, m0b=m0b, flags=flags):
                st = {}
                def peek_m0():
                    if s.m0own is not None: return None
                    if s.sc.g - s.last_dma_gap.get(stream, -999) < spacing - 1: return None
                    if not s.try_alloc(x, True): return None
                    a = x.addr
                    if a is None:
                        if x.fixed is not None: a = x.fixed[0]
                        else: a = [b for b in s.al.free_blocks() if x.allowed is None or b in x.allowed(x)][0] * BLK
                    val = a + ldsoff - imm
                    assert val >= 0
                    return ('salu', salu(f"s_add_u32 m0, s{m0b}, 0x{val:x}", ['m0'], [S(m0b)]), True)
                def commit_m0(ins, c):
                    s.try_alloc(x, False); s.m0own = stream
                    for it in st['next']: it.deadline = min(it.deadline, s.sc.g + 3)
                def peek_so():
                    key = (sbase, sconst)
                    if s.soff_cur == key: return ('skip', None, True)
                    if sbase is None: i = salu(f"s_mov_b32 s{sOff}, 0x{sconst:x}", [S(sOff)])
                    else: i = salu(f"s_add_u32 s{sOff}, s{sbase}, 0x{sconst:x}", [S(sOff)], [S(sbase)])
                    return ('salu', i, True)
                def commit_so(ins, c): s.soff_cur = (sbase, sconst)
                def peek_dma():
                    t = f"buffer_load_dwordx4 v{voff}, {srd}, s{sOff} offen" + (f" offset:{imm}" if imm else "") + (f" {flags}" if flags else "") + " lds"
                    return ('dma', Ins(t, 'dma', rd=[f"v{voff}", f"s{sOff}", 'm0'] + srd.regs()), True)
                def commit_dma(ins, c):
                    s.m0own = None; x.ins.append(ins); x.issued += 1; s.last_dma_gap[stream] = s.sc.g
                s.sc.item(stream, Item(peek_m0, earliest, deadline, prio, f"{x.name}.m0.{pi}", commit_m0))
                st['next'] = [s.sc.item(stream, Item(peek_so, earliest, deadline, prio, f"{x.name}.so.{pi}", commit_so)),
                              s.sc.item(stream, Item(peek_dma, earliest, deadline, prio, f"{x.name}.dma.{pi}", commit_dma))]
            mk()
    def blk_pieces(s, srd, voff, sbase, c0, rowstep16, cbstep, flags=""):
        P = []
        for hi in (0, 1):
            for cb in (0, 1):
                if cbstep < 4096: P.append((srd, voff, sbase, c0 + hi * rowstep16, cb * cbstep, cb * 4096 + hi * 2048, sW, flags))
                else: P.append((srd, voff, sbase, c0 + hi * rowstep16 + cb * cbstep, 0, cb * 4096 + hi * 2048, sW, flags))
        return P
    def xf_K(s, r, st, allowed): return Xfer('kv', f"K{r}.{st}", s.blk_pieces(sK, vOffK, None, r * 262144 + st * 8192, 4096, 128, s.o.get('kvflags', 'nt')), allowed)
    def xf_V(s, r, st, allowed): return Xfer('kv', f"V{r}.{st}", s.blk_pieces(sV, vOffV, None, r * 262144 + st * 8192, 4096, 128, s.o.get('kvflags', 'nt')), allowed)
    def xf_Wq(s, r, k, allowed): return Xfer('wq', f"Wq{r}.{k}", s.blk_pieces(sWq, vOffWq, None, k * 32 * 8192 + r * 512, 16 * 8192, 128), allowed)
    def xf_X(s, r, c):
        P = [(sX, vOffX, None, m * 16384, (c * 128), m * 2048, sXw, "") for m in range(5)]
        return Xfer('x', f"X{r}.{c}", P, fixed=(XAREA[c & 1], 20480))
    def xf_Wo(s, ch, m, allowed):
        grp = m // 2; sb = sOwn if grp < 2 else sOth
        hrow = 256 if grp in (0, 2) else 0
        k0 = hrow + (m & 1) * 64
        return Xfer('wo', f"Wo{ch}.{m}", s.blk_pieces(sWo, vOffWo, sb, k0 * 1024 + ch * 128, 16 * 1024, 32 * 1024), allowed)
    def ds_item(s, stream, op, dst, ar, x, off, earliest, deadline, prio=1, name=""):
        tgt = lambda: None if x.addr is None else x.addr + off
        def peek():
            t = tgt()
            assert t is not None, (x.name, "read before alloc")
            if not ar.reach(t): return ('valu', ar.rebase_ins(t), False)
            return ('ds_r', Ins(f"{op} {dst}, v{ar.v} offset:{t - ar.base}", 'ds_r', rd=[f"v{ar.v}"], wr=dst.regs()), True)
        def commit(ins, consume):
            if consume: x.reads.append(ins)
            else: ar.rebased(tgt())
        return s.sc.item(stream, Item(peek, earliest, deadline, prio, name, commit, areg=(ar, tgt)))
    def rd_T(s, stream, frag, x, t, e0, dl, name=""):
        for rd in (0, 1):
            s.ds_item(stream, "ds_read_b64_tr_b16", frag.sub(2 * rd, 2), s.aT[t & 3], x, (t >> 2) * 4096 + rd * 2048, e0, dl, name=name)
    def rd_K(s, stream, frag, x, kt, u, e0, dl, name=""):
        for pc in (0, 1):
            s.ds_item(stream, "ds_read_b64", frag.sub(2 * pc, 2), s.aD[2 * (u & 1) + pc], x, (u >> 1) * 4096 + kt * 2048, e0, dl, name=name)
    def rd_X(s, stream, frag, x, k, qb, e0, dl, name=""):
        for pc in (0, 1):
            s.ds_item(stream, "ds_read_b64", frag.sub(2 * pc, 2), s.aX[2 * (k & 1) + pc], x, qb * 2048, e0, dl, name=name)
    def sync_at(s, idx, need, free):
        def fn():
            n = 0
            for x in need: assert x.issued == len(x.pieces), (x.name, "not issued by sync", s.sc.g)
            vm = s.em.vm_needed([i for x in need for i in x.ins])
            lg = s.em.lgkm_needed([i for x in free for i in x.reads])
            for x in free: assert len(x.reads) == x.nreads, (x.name, len(x.reads), x.nreads, s.sc.g)
            if s.em.wait(lg, vm): n += 1
            s.em.raw(Ins("s_barrier", 'barrier')); n += 1
            for x in free: s.al.release(x)
            return n
        s.sc.post(idx, fn)
    def stamp(s, idx):
        if not s.o.get('stamps'): return
        k = s.stamps; s.stamps += 1
        def fn():
            s.em.raw(Ins(f"s_memtime s[{50+2*k}:{51+2*k}]", 'salu')); return 1
        s.sc.post(idx, fn)

    def prologue(s):
        e = s.em.emit
        sa = lambda t, w=(), r=(): e(salu(t, w, r))
        va = lambda t, w, r: e(valu(t, w, r))
        sa("s_cmp_ge_u32 s2, 256"); e(Ins("s_cbranch_scc1 L_end", 'salu'))
        e(Ins("s_load_dwordx16 s[64:79], s[0:1], 0", 'salu'))
        e(Ins("s_load_dwordx8 s[80:87], s[0:1], 64", 'salu'))
        e(Ins("s_load_dwordx2 s[88:89], s[0:1], 96", 'salu'))
        va("v_lshrrev_b32 v21, 6, v0", [V(21)], [V(0)])
        sa("s_and_b32 s40, s2, 7"); sa("s_lshr_b32 s41, s2, 3"); sa("s_lshr_b32 s42, s40, 2"); sa("s_and_b32 s43, s40, 3")
        va(f"v_readfirstlane_b32 s{sWave}, v21", [S(sWave)], [V(21)])
        sa("s_lshr_b32 s44, s41, 1"); sa("s_and_b32 s45, s41, 1")
        sa("s_lshl_b32 s46, s43, 3"); sa("s_lshl_b32 s47, s45, 2"); sa("s_add_u32 s46, s46, s47")
        sa(f"s_lshr_b32 s{sP}, s{sWave}, 1", [S(sP)], [S(sWave)]); sa(f"s_and_b32 s{sI}, s{sWave}, 1")
        sa(f"s_mov_b32 s{sRedo}, 0")
        va("v_and_b32 v0, 63, v0", [V(0)], [V(0)])
        va("v_lshrrev_b32 v21, 5, v0", [V(21)], [V(0)])
        va("v_lshlrev_b32 v21, 10, v21", [V(21)], [V(21)])
        va("v_bfe_u32 v22, v0, 2, 3", [V(22)], [V(0)])
        va("v_lshl_add_u32 v21, v22, 7, v21", [V(21)], [V(22), V(21)])
        va("v_and_b32 v23, 3, v0", [V(23)], [V(0)])
        va("v_lshl_add_u32 v21, v23, 3, v21", [V(21)], [V(23), V(21)])
        sa(f"s_lshl_b32 s48, s{sP}, 13")
        va("v_add_u32 v21, s48, v21", [V(21)], [V(21)])
        va("v_lshrrev_b32 v22, 1, v22", [V(22)], [V(22)])
        for ee in range(4):
            va(f"v_xor_b32 v23, {ee}, v22", [V(23)], [V(22)])
            va(f"v_lshl_add_u32 v{vT[ee]}, v23, 5, v21", [V(vT[ee])], [V(23), V(21)])
        va("v_bfe_u32 v21, v0, 3, 1", [V(21)], [V(0)])
        va("v_lshlrev_b32 v21, 10, v21", [V(21)], [V(21)])
        va("v_and_b32 v22, 7, v0", [V(22)], [V(0)])
        va("v_lshl_add_u32 v21, v22, 7, v21", [V(21)], [V(22), V(21)])
        va("v_bfe_u32 v22, v0, 4, 1", [V(22)], [V(0)])
        va("v_lshl_add_u32 v21, v22, 3, v21", [V(21)], [V(22), V(21)])
        va("v_bfe_u32 v22, v0, 1, 3", [V(22)], [V(0)])
        va("v_lshrrev_b32 v23, 5, v0", [V(23)], [V(0)])
        va("v_xor_b32 v22, v23, v22", [V(22)], [V(23), V(22)])
        sa(f"s_mul_i32 s49, s{sI}, 10240"); sa(f"s_add_u32 s49, s49, {XAREA[0]}")
        for j in range(4):
            va(f"v_xor_b32 v23, {2*j}, v22", [V(23)], [V(22)])
            va(f"v_lshl_add_u32 v23, v23, 4, v21", [V(23)], [V(23), V(21)])
            va(f"v_add_u32 v{vD[j]}, s48, v23", [V(vD[j])], [V(23)])
            va(f"v_add_u32 v{vX[j]}, s49, v23", [V(vX[j])], [V(23)])
        va("v_lshrrev_b32 v21, 3, v0", [V(21)], [V(0)])
        va("v_and_b32 v22, 7, v0", [V(22)], [V(0)])
        va("v_lshrrev_b32 v23, 4, v0", [V(23)], [V(0)])
        sa(f"s_lshl_b32 s50, s{sI}, 2")
        va(f"v_add_u32 v{vLinW}, s50, v23", [V(vLinW)], [V(23)])
        va(f"v_xor_b32 v{vLinW}, v22, v{vLinW}", [V(vLinW)], [V(22), V(vLinW)])
        va(f"v_lshlrev_b32 v{vLinW}, 4, v{vLinW}", [V(vLinW)], [V(vLinW)])
        va(f"v_lshlrev_b32 v23, 1, v23", [V(23)], [V(23)])
        va(f"v_xor_b32 v23, v22, v23", [V(23)], [V(22), V(23)])
        va(f"v_lshlrev_b32 v23, 4, v23", [V(23)], [V(23)])
        sa(f"s_lshl_b32 s50, s{sI}, 3")
        va(f"v_add_u32 v22, s50, v21", [V(22)], [V(21)])
        va(f"v_lshl_add_u32 v{vOffK}, v22, 8, v{vLinW}", [V(vOffK)], [V(22), V(vLinW)])
        va(f"v_lshl_add_u32 v{vOffV}, v22, 8, v23", [V(vOffV)], [V(22), V(23)])
        va(f"v_lshl_add_u32 v{vOffWq}, v22, 13, v23", [V(vOffWq)], [V(22), V(23)])
        va(f"v_lshl_add_u32 v{vOffWo}, v22, 10, v23", [V(vOffWo)], [V(22), V(23)])
        sa(f"s_mul_i32 s50, s{sP}, 80")
        va(f"v_add_u32 v22, s50, v22", [V(22)], [V(22)])
        va(f"v_lshl_add_u32 v{vOffX}, v22, 10, v{vLinW}", [V(vOffX)], [V(22), V(vLinW)])
        va(f"v_lshlrev_b32 v{vSt}, 4, v0", [V(vSt)], [V(0)])
        sa(f"s_mul_i32 s50, s{sWave}, 20480")
        va(f"v_add_u32 v{vLinW}, s50, v{vSt}", [V(vLinW)], [V(vSt)])
        sa(f"s_xor_b32 s51, s{sWave}, 2"); sa("s_mul_i32 s51, s51, 20480")
        va(f"v_add_u32 v{vLinR}, s51, v{vSt}", [V(vLinR)], [V(vSt)])
        sa(f"s_lshl_b32 s50, s{sI}, 10"); sa(f"s_add_u32 s{sW}, s48, s50", [S(sW)])
        sa(f"s_mul_i32 s51, s{sP}, 10240"); sa(f"s_add_u32 s{sXw}, s51, s50", [S(sXw)])
        sa(f"s_lshl_b32 s{sOwn}, s{sP}, 17"); sa(f"s_xor_b32 s{sOth}, s{sOwn}, 0x20000")
        sa(f"s_mov_b32 s{sC.lo}, 0x{f32(CSCALE):x}"); sa(f"s_mov_b32 s{sC.lo+1}, 0x{f32(CSCALE):x}")
        e(Ins("s_waitcnt lgkmcnt(0)", 'wait'))
        sa("s_cmp_eq_u32 s42, 0")
        sa("s_cselect_b64 s[12:13], s[64:65], s[74:75]"); sa("s_cselect_b64 s[4:5], s[66:67], s[76:77]")
        sa("s_cselect_b64 s[8:9], s[68:69], s[78:79]"); sa("s_cselect_b64 s[16:17], s[70:71], s[80:81]")
        sa("s_cselect_b64 s[20:21], s[72:73], s[82:83]")
        def add64(lo, off):
            sa(f"s_add_u32 s{lo}, s{lo}, {off}"); sa(f"s_addc_u32 s{lo+1}, s{lo+1}, 0")
        sa("s_mul_i32 s50, s44, 163840"); add64(12, "s50"); sa("s_mov_b32 s14, 163840"); sa("s_mov_b32 s15, 0x20000")
        sa(f"s_add_u32 s51, s46, s{sP}")
        sa("s_lshl_b32 s50, s51, 8"); add64(16, "s50"); sa("s_sub_u32 s18, 0x400000, s50"); sa("s_mov_b32 s19, 0x20000")
        sa("s_lshl_b32 s50, s44, 5"); sa("s_add_u32 s50, s50, s51"); sa("s_lshl_b32 s50, s50, 17")
        add64(4, "s50"); sa("s_mov_b32 s6, 0x60000"); sa("s_mov_b32 s7, 0x20000")
        add64(8, "s50"); sa("s_mov_b32 s10, 0x60000"); sa("s_mov_b32 s11, 0x20000")
        sa("s_lshl_b32 s50, s46, 17"); sa(f"s_lshl_b32 s51, s{sP}, 9"); sa("s_add_u32 s50, s50, s51")
        add64(20, "s50"); sa("s_sub_u32 s22, 0x80000, s51"); sa("s_mov_b32 s23, 0x20000")
        sa("s_lshl_b32 s50, s42, 4"); sa("s_add_u32 s50, s50, s44"); sa("s_lshl_b32 s50, s50, 3")
        sa("s_lshl_b32 s51, s43, 1"); sa("s_add_u32 s50, s50, s51"); sa("s_add_u32 s50, s50, s45")
        sa("s_mul_i32 s50, s50, 163840"); sa(f"s_mul_i32 s51, s{sWave}, 40960"); sa("s_add_u32 s50, s50, s51")
        sa("s_mov_b32 s24, s88"); sa("s_mov_b32 s25, s89"); add64(24, "s50"); sa("s_mov_b32 s26, 40960"); sa("s_mov_b32 s27, 0x20000")

    def valu_block(s, L, every=4):
        first = s.sc.n()
        for j, ins in enumerate(L):
            s.sc.add(ins, cap=(2 if (j % every) == every - 1 else 0))
        return first, s.sc.n() - 1

    def build(s):
        o = s.o; sc = s.sc
        s.prologue()
        notx = lambda x: [b for b in range(9) if b not in (7, 8)]
        anyb = lambda x: list(range(9))
        Wq = [[s.xf_Wq(r, k, notx) for k in range(16)] for r in range(2)]
        X = [[s.xf_X(r, c) for c in range(8)] for r in range(2)]
        for r in range(2):
            for x in Wq[r]: x.nreads = 16
            for x in X[r]: x.nreads = 20
        def kv_allowed(r, st):
            def f(x):
                if any(y.issued < len(y.pieces) for y in Wq[r]) and s.al.held('wq') < 3: return []
                xs_busy = any(y.addr is None or any(g is y for g in s.al.gr) for y in X[r])
                bl = [b for b in range(9) if not (xs_busy and b in (7, 8))]
                if r == 1 and st >= 14: bl = [b for b in bl if b <= 4]
                if r == 0 and st >= 14: bl = [b for b in bl if b not in (7, 8)]
                return bl
            return f
        K = [[s.xf_K(r, st, kv_allowed(r, st)) for st in range(16)] for r in range(2)]
        Vv = [[s.xf_V(r, st, kv_allowed(r, st)) for st in range(16)] for r in range(2)]
        for r in range(2):
            for x in K[r] + Vv[r]: x.nreads = 16
        wo_ok = lambda x: [5, 6, 7, 8]
        Wo = [[s.xf_Wo(ch, m, wo_ok) for m in range(8)] for ch in range(4)]
        for L in Wo:
            for x in L: x.nreads = 16
        kv_done = lambda r: all(y.addr is not None for y in K[r] + Vv[r])
        s.gate['wq'] = lambda x: s.al.held('wq') < 3 and (x.name.startswith('Wq0') or kv_done(0))
        s.gate['x'] = lambda x: x.name.startswith('X0') or kv_done(0)
        s.gate['wo'] = lambda x: kv_done(1)
        EXA = Xfer('ex', 'EX', [], fixed=(0, 81920))

        g0 = sc.add(None, cap=0)
        s.stamp(g0)
        prev_end = g0
        kv_earliest = g0
        for r in range(2):
            stage = f"stage"
            order = [X[r][0], Wq[r][0], Wq[r][1], Wq[r][2], X[r][1]]
            for k in range(3, 16):
                order.append(Wq[r][k])
                if k % 2 == 0 and k // 2 < 8 and k >= 4: order.append(X[r][k // 2])
            wqf = lambda k, t: A((aKF if k % 2 == 0 else aVF) + 4 * t, 4)
            xf = lambda k, qb: A(aQ + (k % 2) * 20 + 4 * qb, 4)
            if r == 0:
                init = [valu(f"v_mov_b32 v21, 0x3f803f80", [V(21)], [])]
                init += [valu(f"v_accvgpr_write_b32 a{aONE+j}, v21", [A(aONE + j)], [V(21)]) for j in range(4)]
                init += [valu(f"v_mov_b32 v{NEGM+j}, 0", [V(NEGM + j)], []) for j in range(20)]
                for x in order[:5]: s.add_xfer(stage, x, earliest=g0, deadline=g0, prio=0)
                a, b = s.valu_block(init)
                pre_sync = b
                rest = order[5:]
            else:
                pre_sync = s.q1_presync
                rest = order
            q0 = sc.n()
            s.sync_at(pre_sync, [Wq[r][0], X[r][0]], s.pre_free if r == 1 else [])
            for t in range(8): s.rd_T('rdT', wqf(0, t), Wq[r][0], t, pre_sync, q0 - 1, name=f"wq{r}.0.{t}")
            for qb in range(5): s.rd_X('rdD', xf(0, qb), X[r][0], 0, qb, pre_sync, q0 - 1, name=f"x{r}.0.{qb}")
            for k in range(16):
                base = sc.n()
                for qb in range(5):
                    for t in range(8):
                        acc = V(OACC + qb * 32 + t * 4, 4)
                        sc.add(mfma(acc, wqf(k, t), xf(k, qb), acc if k else 0))
                if k < 15:
                    need = [Wq[r][k + 1]] + ([X[r][(k + 1) // 2]] if (k + 1) % 2 == 0 else [])
                    free = [Wq[r][k]] + ([X[r][k // 2]] if k % 2 == 1 else [])
                    s.sync_at(base, need, free)
                    for t in range(8): s.rd_T('rdT', wqf(k + 1, t), Wq[r][k + 1], t, base, base + 30, name=f"wq{r}.{k+1}.{t}")
                    for qb in range(5): s.rd_X('rdD', xf(k + 1, qb), X[r][(k + 1) // 2], k + 1, qb, base, base + 30, name=f"x{r}.{k+1}.{qb}")
                else:
                    s.sync_at(base, [], [Wq[r][15], X[r][7]])
            qend = sc.n() - 1
            s.stamp(qend)
            for x in rest:
                kk = int(x.name.split('.')[1])
                use = (q0 + 40 * (kk - 1)) if x.cls == 'wq' else (q0 + 40 * (2 * kk - 1))
                if kk == 0: use = pre_sync
                s.add_xfer(stage, x, earliest=(g0 if r == 0 else s.a_tail), deadline=max(use - 30, g0), prio=0, spacing=o.get('sp_stage', 3))
            ep = []
            for qb in range(5):
                for u in range(4):
                    src = OACC + qb * 32 + u * 8
                    for j in range(4):
                        ep.append(valu(f"v_pk_mul_f32 v[{src+2*j}:{src+2*j+1}], v[{src+2*j}:{src+2*j+1}], {sC}", [V(src + 2*j, 2)], [V(src + 2*j, 2)]))
                    for j in range(4):
                        ep.append(valu(f"v_cvt_pk_bf16_f32 v{src+j}, v{src+2*j}, v{src+2*j+1}", [V(src + j)], [V(src + 2*j, 2)]))
                    for j in range(4):
                        ep.append(valu(f"v_accvgpr_write_b32 a{aQ+qb*16+u*4+j}, v{src+j}", [A(aQ + qb*16 + u*4 + j)], [V(src + j)]))
            ea, eb = s.valu_block(ep)
            if o.get('dump') == f'Q{r}':
                s.finish_dump('a', aQ, 80, eb, K[r][:2] + Vv[r][:2], kv_earliest)
                return
            a0 = sc.n()
            kf = lambda kt, u: A(aKF + (u * 2 + kt) * 4, 4)
            vf = lambda dt: A(aVF + dt * 4, 4)
            Sb = lambda tau, kt: V(SBUF + (tau % 3) * 8 + kt * 4, 4)
            Pb = lambda tau: V(PBUF + (tau % 3) * 4, 4)
            s.sync_at(ea + 8, [K[r][0], Vv[r][0]], [])
            for u in range(4):
                for kt in range(2): s.rd_K('rdD', kf(kt, u), K[r][0], kt, u, ea + 8, a0 - 1, name=f"k{r}.0")
            for dt in range(8): s.rd_T('rdT', vf(dt), Vv[r][0], dt, ea + 8, a0 + 8, name=f"v{r}.0")
            qk_pos = {}; pv_pos = {}; slot0 = {}
            for tau in range(82):
                slot0[tau] = sc.n()
                if tau < 80:
                    st, qb = divmod(tau, 5)
                    for u in range(4):
                        for kt in range(2):
                            d = Sb(tau, kt)
                            c = d if u else V(NEGM + qb * 4, 4)
                            qk_pos[(tau, kt, u)] = sc.add(mfma(d, kf(kt, u), A(aQ + qb * 16 + u * 4, 4), c))
                if tau >= 2:
                    t2 = tau - 2; st, qb = divmod(t2, 5)
                    for dt in range(8):
                        acc = V(OACC + qb * 32 + dt * 4, 4)
                        pv_pos[(t2, dt)] = sc.add(mfma(acc, vf(dt), Pb(t2), acc if st else 0))
                    l = A(aL + qb * 4, 4)
                    pv_pos[(t2, 8)] = sc.add(mfma(l, A(aONE, 4), Pb(t2), l if st else 0))
            aend = sc.n() - 1
            s.stamp(aend)
            for tau in range(80):
                e0 = qk_pos[(tau, 1, 3)] + 2
                dl = pv_pos[(tau, 0)] - 2
                for kt in range(2):
                    for j in range(4):
                        rr = Sb(tau, kt).lo + j
                        sc.item('sm', simple(trans(f"v_exp_f32 v{rr}, v{rr}", [V(rr)], [V(rr)]), earliest=e0, deadline=dl - 4, prio=2, name=f"exp{tau}"))
                    for j in range(2):
                        rr = Sb(tau, kt).lo + 2 * j
                        pd = Pb(tau).lo + 2 * kt + j
                        sc.item('sm', simple(valu(f"v_cvt_pk_bf16_f32 v{pd}, v{rr}, v{rr+1}", [V(pd)], [V(rr, 2)]), earliest=e0, deadline=dl, prio=2, name=f"cvt{tau}"))
            for st in range(15):
                t4 = 5 * st + 4
                sy = slot0[t4] - 1
                s.sync_at(sy, [K[r][st + 1], Vv[r][st + 1]], [K[r][st], Vv[r][st]])
                for u in range(4):
                    for kt in range(2):
                        s.rd_K('rdD', kf(kt, u), K[r][st + 1], kt, u, qk_pos[(t4, kt, u)], qk_pos[(t4 + 1, kt, u)] - 7, name=f"k{r}.{st+1}")
                for dt in range(8):
                    s.rd_T('rdT', vf(dt), Vv[r][st + 1], dt, pv_pos[(t4, dt)], pv_pos[(t4 + 1, dt)] - 7, name=f"v{r}.{st+1}")
            for st in range(16):
                use = (ea + 8) if st == 0 else slot0[5 * (st - 1) + 4] - 1
                sp = o.get('sp_kv', 6)
                s.add_xfer('kv', K[r][st], earliest=kv_earliest, deadline=use - 20, prio=4, spacing=sp)
                s.add_xfer('kv', Vv[r][st], earliest=kv_earliest, deadline=use - 20, prio=4, spacing=sp)
            kv_earliest = slot0[60]
            s.a_tail = slot0[55]
            ep = []
            for qb in range(5):
                ep.append(valu(f"v_accvgpr_read_b32 v{SBUF+2*qb}, a{aL+4*qb}", [V(SBUF + 2*qb)], [A(aL + 4*qb)]))
            for qb in range(5):
                ep.append(trans(f"v_rcp_f32 v{SBUF+2*qb}, v{SBUF+2*qb}", [V(SBUF + 2*qb)], [V(SBUF + 2*qb)]))
            for qb in range(5):
                for u in range(4):
                    src = OACC + qb * 32 + u * 8
                    dst = OACC + qb * 16 + u * 4
                    for j in range(4):
                        ep.append(valu(f"v_pk_mul_f32 v[{src+2*j}:{src+2*j+1}], v[{src+2*j}:{src+2*j+1}], v[{SBUF+2*qb}:{SBUF+2*qb+1}] op_sel_hi:[1,0]",
                                       [V(src + 2*j, 2)], [V(src + 2*j, 2), V(SBUF + 2*qb)]))
                    for j in range(4):
                        ep.append(valu(f"v_cvt_pk_bf16_f32 v{dst+j}, v{src+2*j}, v{src+2*j+1}", [V(dst + j)], [V(src + 2*j, 2)]))
                    if r == 0:
                        for j in range(4):
                            ep.append(valu(f"v_accvgpr_write_b32 a{aST+qb*16+u*4+j}, v{dst+j}", [A(aST + qb*16 + u*4 + j)], [V(dst + j)]))
            ea, eb = s.valu_block(ep)
            if o.get('dump') == f'O{r}':
                s.finish_dump('v', OACC, 80, eb, [], None)
                return
            s.pre_free = [K[r][15], Vv[r][15]]
            if r == 0:
                s.q1_presync = ea + 20
        p_pre = ea + 20
        p0 = sc.n()
        wof = lambda j, nt: V((64 if j % 2 == 0 else 240) + 4 * nt, 4)
        def bfrag(ks, qb):
            grp, u = divmod(ks, 4)
            if grp == 0: return V(OACC + qb * 16 + u * 4, 4)
            if grp == 1: return A(aST + qb * 16 + u * 4, 4)
            idx = (grp - 2) * 20 + qb * 4 + u
            return A(idx * 4, 4) if idx < 36 else A(aL + (idx - 36) * 4, 4)
        pacc = lambda nt, qb: V(160 + (qb * 4 + nt) * 4, 4)
        pk = lambda qb, up: V(24 + (qb * 2 + up) * 4, 4)
        s.sync_at(p_pre, [Wo[0][0]], s.pre_free)
        def take_ex():
            s.al.take_range(0, 81920, EXA); EXA.addr = 0; return 0
        sc.post(p_pre, take_ex)
        def rd_wo(j, e0, dl):
            ch, ks = divmod(j, 16)
            x = Wo[ch][ks // 2]
            for nt in range(4):
                for rd in (0, 1):
                    s.ds_item('rdT', "ds_read_b64_tr_b16", wof(j, nt).sub(2 * rd, 2), s.aT[nt], x, (ks & 1) * 4096 + rd * 2048, e0, dl, name=f"wo{j}")
        rd_wo(0, p_pre, p0 - 1)
        ppos = {}; kst = {}
        for j in range(64):
            ch, ks = divmod(j, 16)
            kst[j] = sc.n()
            for qb in range(5):
                for nt in range(4):
                    acc = pacc(nt, qb)
                    ppos[(j, nt, qb)] = sc.add(mfma(acc, wof(j, nt), bfrag(ks, qb), acc if ks else 0))
        pend = sc.n() - 1
        allW = [x for L in Wo for x in L]
        for j in range(63):
            if j % 2 == 1:
                m = (j + 1) // 2
                s.sync_at(kst[j], [allW[m]], [allW[m - 1]])
            rd_wo(j + 1, kst[j], kst[j] + 12)
        for m, x in enumerate(allW):
            use = p_pre if m == 0 else kst[2 * m - 1]
            s.add_xfer('stage', x, earliest=s.a_tail, deadline=use - 20, prio=0, spacing=o.get('sp_stage', 3))
        EXA.nreads = 0
        wr_done = []
        def exw(rnd, e0, dl):
            L = []
            for qb in range(5):
                for u in range(4):
                    src = bfrag(rnd * 4 + u, qb)
                    ins = Ins(f"ds_write_b128 v{vLinW}, {src} offset:{(qb*4+u)*1024}", 'ds_w', rd=[f"v{vLinW}"] + src.regs())
                    L.append(sc.item('ex', simple(ins, earliest=e0, deadline=dl, prio=3, name=f"exw{rnd}")))
            return L
        def exr(rnd, e0, dl):
            L = []
            for u in range(4):
                for qb in range(5):
                    dst = bfrag(8 + rnd * 4 + u, qb)
                    ins = Ins(f"ds_read_b128 {dst}, v{vLinR} offset:{(qb*4+u)*1024}", 'ds_r', rd=[f"v{vLinR}"], wr=dst.regs())
                    L.append(sc.item('ex', simple(ins, earliest=e0, deadline=dl, prio=3, name=f"exr{rnd}")))
            return L
        def bar_after(idx, items):
            def fn():
                for it in items: assert it.ins is not None, (it.name, "not issued before barrier")
                n = 0
                if s.em.wait(s.em.lgkm_needed([it.ins for it in items]), None): n += 1
                s.em.raw(Ins("s_barrier", 'barrier')); return n + 1
            sc.post(idx, fn)
        w0 = exw(0, p0, kst[3] - 2); bar_after(kst[3] + 4, w0)
        r0 = exr(0, kst[3] + 4, kst[5] - 2); bar_after(kst[5] + 4, r0)
        w1 = exw(1, kst[5] + 4, kst[9] - 2); bar_after(kst[9] + 4, w1)
        r1 = exr(1, kst[9] + 4, kst[11])
        tail = []
        for ch in range(4):
            j = ch * 16 + 15
            for qb in range(5):
                for up in range(2):
                    its = []
                    for h in range(2):
                        nt = 2 * up + h
                        a = pacc(nt, qb); d = pk(qb, up)
                        for jj in range(2):
                            ins = valu(f"v_cvt_pk_bf16_f32 v{d.lo+2*h+jj}, v{a.lo+2*jj}, v{a.lo+2*jj+1}", [V(d.lo + 2*h + jj)], [V(a.lo + 2*jj, 2)])
                            if ch < 3: sc.item('cv', simple(ins, earliest=ppos[(j, nt, qb)] + 2, deadline=ppos[(j + 1, nt, qb)] - 1, prio=1, name=f"pcvt{ch}"))
                            else: tail.append(ins)
                    off = ((ch * 5 + qb) * 2 + up) * 1024
                    so = salu(f"s_mov_b32 s37, 0x{off:x}", [S(37)])
                    stx = Ins(f"buffer_store_dwordx4 {pk(qb, up)}, v{vSt}, {sWs}, s37 offen {o.get('stflags','')}", 'vst', rd=pk(qb, up).regs() + [f"v{vSt}", 's37'] + sWs.regs())
                    if ch < 3:
                        e0 = kst[j + 1] + 20 + (qb * 2 + up) * 12
                        sc.item('st', simple(so, earliest=e0, deadline=e0 + 100, prio=6, name="sto"))
                        sc.item('st', simple(stx, earliest=e0, deadline=e0 + 100, prio=6, name="st"))
                    else:
                        tail += [so, stx]
        s.stamp(pend)
        sc.run()
        for ins in tail: s.em.emit(ins)
        s.finish()

    def finish_dump(s, kind, lo, n, last, extra_x, kv_e):
        for x in extra_x: pass
        s.sc.run_partial = True
        s.sc.run()
        e = s.em.emit
        for j in range(n // 4):
            e(salu(f"s_mov_b32 s37, 0x{j*1024:x}", [S(37)]))
            e(Ins(f"buffer_store_dwordx4 {Reg(kind, lo + 4*j, 4)}, v{vSt}, {sWs}, s37 offen", 'vst', rd=Reg(kind, lo + 4*j, 4).regs() + [f"v{vSt}", 's37']))
        s.finish()

    def finish(s):
        e = s.em
        if s.o.get('stamps'):
            k = s.stamps
            e.raw(Ins(f"s_waitcnt vmcnt(0)", 'wait'))
            e.raw(Ins(f"s_memtime s[{50+2*k}:{51+2*k}]", 'salu'))
            e.raw(Ins("s_waitcnt lgkmcnt(0)", 'wait'))
            e.raw(salu(f"s_lshl_b32 s40, s2, 2")); e.raw(salu(f"s_add_u32 s40, s40, s{sWave}")); e.raw(salu("s_lshl_b32 s40, s40, 6"))
            e.raw(salu("s_add_u32 s24, s88, 0x4000000")); e.raw(salu("s_addc_u32 s25, s89, 0")); e.raw(salu("s_mov_b32 s26, 0x100000"))
            e.raw(salu("s_mov_b64 exec, 1"))
            for j in range(k + 1):
                e.raw(valu(f"v_mov_b32 v21, s{50+2*j}", [V(21)], [])); e.raw(valu(f"v_mov_b32 v22, {4*j}", [V(22)], []))
                e.raw(Ins(f"buffer_store_dword v21, v22, s[24:27], s40 offen", 'vst'))
                e.raw(Ins("s_nop 1", 'nop'))
        e.raw(Ins("L_end:", 'label'))
        e.raw(Ins("s_endpgm", 'salu'))

def reduce_kernel():
    L = []; a = L.append
    a("s_cmp_ge_u32 s2, 640"); a("s_cbranch_scc1 LR_end")
    a("s_load_dwordx2 s[4:5], s[0:1], 80"); a("s_load_dwordx2 s[8:9], s[0:1], 96")
    a("v_lshrrev_b32 v1, 6, v0"); a("s_nop 0"); a("v_readfirstlane_b32 s12, v1"); a("v_and_b32 v0, 63, v0")
    a("s_lshl_b32 s13, s2, 2"); a("s_nop 2"); a("s_add_u32 s13, s13, s12")
    a(f"s_mul_hi_u32 s14, s13, {(2**32 + 79)//80}")
    a("s_mul_i32 s15, s14, 80"); a("s_sub_u32 s15, s13, s15")
    a(f"s_mul_hi_u32 s16, s15, {(2**32 + 19)//20}")
    a("s_mul_i32 s17, s16, 20"); a("s_sub_u32 s17, s15, s17")
    a(f"s_mul_hi_u32 s18, s17, {(2**32 + 4)//5}")
    a("s_mul_i32 s19, s18, 5"); a("s_sub_u32 s19, s17, s19")
    a("s_mul_i32 s20, s14, 1310720"); a("s_mul_i32 s21, s16, 40960"); a("s_add_u32 s20, s20, s21")
    a("s_lshl_b32 s21, s17, 11"); a("s_add_u32 s20, s20, s21")
    a("v_lshlrev_b32 v1, 4, v0")
    a("s_waitcnt lgkmcnt(0)")
    a("s_mov_b32 s10, 41943040"); a("s_mov_b32 s11, 0x20000")
    a("s_mov_b32 s6, 5242880"); a("s_mov_b32 s7, 0x20000")
    for sl in range(8):
        for up in range(2):
            d = 16 + (sl * 2 + up) * 4
            a(f"buffer_load_dwordx4 v[{d}:{d+3}], v1, s[8:11], s20 offen offset:{up*1024}")
        if sl < 7: a("s_add_u32 s20, s20, 163840")
    a("s_and_b32 s22, s14, 15"); a("s_lshr_b32 s23, s14, 4")
    a("s_mul_i32 s22, s22, 160"); a("s_and_b32 s24, s16, 1"); a("s_mul_i32 s24, s24, 80"); a("s_add_u32 s22, s22, s24")
    a("s_lshl_b32 s24, s19, 4"); a("s_add_u32 s22, s22, s24"); a("s_lshl_b32 s22, s22, 11")
    a("s_lshl_b32 s23, s23, 10"); a("s_lshr_b32 s24, s16, 1"); a("s_lshl_b32 s24, s24, 9"); a("s_add_u32 s23, s23, s24")
    a("s_lshl_b32 s24, s18, 7"); a("s_add_u32 s23, s23, s24"); a("s_add_u32 s22, s22, s23")
    a("v_and_b32 v2, 15, v0"); a("v_lshlrev_b32 v2, 11, v2"); a("v_lshrrev_b32 v3, 4, v0"); a("v_lshl_add_u32 v2, v3, 3, v2")
    a("s_mov_b32 s25, 0xffff0000")
    for sl in range(8):
        a(f"s_waitcnt vmcnt({14 - 2*sl})")
        for j in range(8):
            src = 16 + sl * 8 + j
            if sl == 0:
                a(f"v_lshlrev_b32 v{80+2*j}, 16, v{src}"); a(f"v_and_b32 v{81+2*j}, s25, v{src}")
            else:
                a(f"v_lshlrev_b32 v4, 16, v{src}"); a(f"v_and_b32 v5, s25, v{src}")
                a(f"v_add_f32 v{80+2*j}, v{80+2*j}, v4"); a(f"v_add_f32 v{81+2*j}, v{81+2*j}, v5")
    for j in range(8):
        a(f"v_cvt_pk_bf16_f32 v{8+j}, v{80+2*j}, v{81+2*j}")
    for t in range(4):
        a(f"buffer_store_dwordx2 v[{8+2*t}:{9+2*t}], v2, s[4:7], s22 offen offset:{32*t}")
    a("LR_end:"); a("s_endpgm")
    return "\n".join(L)

HEADER = open('cdna_kernels/' + NAME + '.s.ref').read().split("; Override launch")[0]

def kd(name, nv, acc):
    return f""".amdhsa_kernel {name}
  .amdhsa_next_free_vgpr {nv}
  .amdhsa_next_free_sgpr 102
  .amdhsa_accum_offset {acc}
  .amdhsa_group_segment_fixed_size 0
  .amdhsa_kernarg_size 104
  .amdhsa_user_sgpr_count 2
  .amdhsa_user_sgpr_kernarg_segment_ptr 1
  .amdhsa_system_sgpr_workgroup_id_x 1
.end_amdhsa_kernel
"""

def make(opts):
    g = Gen(opts)
    g.build()
    main = g.em.text()
    kn = NAME + "_kernel"
    launches = f"; @launch kernel={kn} grid=(256,1,1) block=(256,1,1) lds={LDS_BYTES}\n"
    if not opts.get('dump'):
        launches += f"; @launch kernel=reduce_kernel grid=(640,1,1) block=(256,1,1) lds=0\n"
    t = HEADER + launches + '.amdgcn_target "amdgcn-amd-amdhsa--gfx950"\n.text\n'
    t += f".globl {kn}\n.p2align 8\n.type {kn},@function\n{kn}:\n" + main + "\n"
    t += ".globl reduce_kernel\n.p2align 8\n.type reduce_kernel,@function\nreduce_kernel:\n" + reduce_kernel() + "\n"
    t += '.section .rodata,"a"\n.p2align 6\n' + kd(kn, 512, 256) + ".p2align 6\n" + kd("reduce_kernel", 96, 96)
    n = {}
    for i in g.em.out: n[i.kind] = n.get(i.kind, 0) + 1
    sys.stderr.write(f"instr counts {n} overflow units {g.sc.overflow} nops {g.em.nnop}\n")
    return t, g

if __name__ == "__main__":
    opts = {}
    out = sys.argv[1]
    for kv in sys.argv[2:]:
        k, v = kv.split("=", 1)
        opts[k] = int(v) if v.lstrip('-').isdigit() else v
    t, g = make(opts)
    open(out, "w").write(t)
```

```python
import re

def R(kind, lo, n=1):
    return [f"{kind}{lo+i}" for i in range(n)]
def rng(kind, lo, n):
    return f"{kind}{lo}" if n == 1 else f"{kind}[{lo}:{lo+n-1}]"

class Reg:
    def __init__(s, kind, lo, n=1): s.kind, s.lo, s.n = kind, lo, n
    def __str__(s): return rng(s.kind, s.lo, s.n)
    def regs(s): return R(s.kind, s.lo, s.n)
    def sub(s, off, n=1): return Reg(s.kind, s.lo + off, n)
def V(lo, n=1): return Reg('v', lo, n)
def A(lo, n=1): return Reg('a', lo, n)
def S(lo, n=1): return Reg('s', lo, n)

class Ins:

    def __init__(s, text, kind, rd=(), wr=(), cread=(), tag=None, states=1):
        s.text = text; s.kind = kind
        s.rd = set(rd); s.wr = set(wr); s.cread = set(cread)
        s.tag = tag; s.pos = None; s.states = states; s.tag_gap = -100
    def __repr__(s): return s.text

def mfma(d, a, b, c):
    cr = c.regs() if isinstance(c, Reg) else []
    return Ins(f"v_mfma_f32_16x16x32_bf16 {d}, {a}, {b}, {c}", 'mfma', rd=a.regs() + b.regs() + cr, wr=d.regs(), cread=cr)
def valu(text, wr, rd):
    f = lambda L: [r for x in L for r in (x.regs() if isinstance(x, Reg) else [x])]
    return Ins(text, 'valu', rd=f(rd), wr=f(wr))
def trans(text, wr, rd):
    i = valu(text, wr, rd); i.kind = 'trans'; return i
def salu(text, wr=(), rd=()):
    f = lambda L: [r for x in L for r in (x.regs() if isinstance(x, Reg) else [x])]
    return Ins(text, 'salu', rd=f(rd), wr=f(wr))

VEC = ('valu', 'trans')
MEMV = ('ds_r', 'ds_w', 'dma', 'vld', 'vst')

class Emitter:
    def __init__(s):
        s.out = []
        s.lgkm = []
        s.vm = []
        s.pend = {}
        s.nstates = 0
        s.hist = []
        s.nnop = 0
    def need_states(s, ins):
        need = 0
        for (st, p) in reversed(s.hist):
            d = s.nstates - st
            if d >= 12: break
            req = 0
            if p.kind == 'mfma':
                if ins.kind == 'mfma':
                    ab = ins.rd - ins.cread
                    if p.wr & ab: req = 8
                    elif p.wr & ins.cread:
                        req = 0 if ins.cread == p.wr else 6
                elif ins.kind in VEC:
                    if p.wr & (ins.rd | ins.wr): req = 8
                    if p.cread & ins.wr: req = max(req, 3)
                elif ins.kind in MEMV:
                    if p.wr & (ins.rd | ins.wr): req = 8
            elif p.kind in VEC:
                if ins.kind == 'mfma' and (p.wr & ins.rd): req = 2
                if p.kind == 'trans' and ins.kind == 'valu' and (p.wr & ins.rd): req = max(req, 1)
                if ins.kind in VEC and 'permlane' in ins.text and (p.wr & ins.rd): req = max(req, 2)
                if ins.kind in VEC and 'dpp' in ins.text and (p.wr & ins.rd): req = max(req, 2)
                if ins.kind in VEC and ('readfirstlane' in ins.text or 'readlane' in ins.text) and (p.wr & ins.rd): req = max(req, 1)
                sw = {r for r in p.wr if r[0] == 's' or r == 'vcc'}
                if sw:
                    if ins.kind in VEC and (sw & ins.rd): req = max(req, 2)
                    if ins.kind in MEMV and (sw & ins.rd): req = max(req, 5)
                    if ins.kind == 'salu' and (sw & ins.rd): req = max(req, 4)
            elif p.kind == 'salu':
                if 'm0' in p.wr and ins.kind == 'dma': req = 1
            elif p.kind == 'vst' or p.kind == 'ds_w':
                if ins.kind in VEC and (p.rd & ins.wr): req = 2
                elif (p.rd & ins.wr): req = 1
            need = max(need, req - d)
        return need
    def raw(s, ins):
        ins.pos = len(s.out)
        s.out.append(ins)
        if ins.kind in ('label', 'comment'): return ins
        s.nstates += ins.states
        s.hist.append((s.nstates, ins))
        if len(s.hist) > 40: s.hist.pop(0)
        if ins.kind in ('ds_r', 'ds_w'): s.lgkm.append(ins)
        if ins.kind in ('dma', 'vld', 'vst'): s.vm.append(ins)
        if ins.kind in ('ds_r', 'vld'):
            for r in ins.wr: s.pend[r] = ins
        return ins
    def nop(s, n):
        while n > 0:
            k = min(n, 16)
            s.raw(Ins(f"s_nop {k-1}", 'nop', states=k)); n -= k; s.nnop += 1
    def lgkm_needed(s, inss):
        idx = -1
        for i, o in enumerate(s.lgkm):
            if any(o is x for x in inss): idx = i
        if idx < 0: return None
        return min(len(s.lgkm) - 1 - idx, 15)
    def vm_needed(s, inss):
        idx = -1
        for i, o in enumerate(s.vm):
            if any(o is x for x in inss): idx = i
        if idx < 0: return None
        return min(len(s.vm) - 1 - idx, 63)
    def wait(s, lg=None, vm=None):
        if lg is None and vm is None: return False
        t = []
        if vm is not None:
            t.append(f"vmcnt({vm})")
            done = s.vm[:len(s.vm) - vm]; s.vm = s.vm[len(s.vm) - vm:]
            for o in done:
                for r in o.wr:
                    if s.pend.get(r) is o: del s.pend[r]
        if lg is not None:
            t.append(f"lgkmcnt({lg})")
            done = s.lgkm[:len(s.lgkm) - lg]; s.lgkm = s.lgkm[len(s.lgkm) - lg:]
            for o in done:
                for r in o.wr:
                    if s.pend.get(r) is o: del s.pend[r]
        s.raw(Ins("s_waitcnt " + " ".join(t), 'wait'))
        return True
    def deps_wait(s, ins):
        ds = [s.pend[r] for r in (ins.rd | ins.wr) if r in s.pend and s.pend[r].kind == 'ds_r']
        vl = [s.pend[r] for r in (ins.rd | ins.wr) if r in s.pend and s.pend[r].kind == 'vld']
        return s.lgkm_needed(ds), s.vm_needed(vl)
    def emit(s, ins):
        if ins.kind not in ('label', 'comment', 'wait', 'nop', 'barrier'):
            lg, vm = s.deps_wait(ins)
            s.wait(lg, vm)
            n = s.need_states(ins)
            if n > 0: s.nop(n)
        return s.raw(ins)
    def text(s):
        L = []
        for i in s.out:
            L.append(i.text)
        return "\n".join(L)

UNITS = {'ds_r': 1, 'valu': 1, 'trans': 2, 'dma': 2, 'vld': 2, 'ds_w': 2, 'vst': 2, 'salu': 0, 'skip': 0}

class Item:
    def __init__(s, peek, earliest=-1, deadline=10**9, prio=0, name="", commit=None, areg=None):
        s.peek = peek; s.earliest = earliest; s.deadline = deadline
        s.prio = prio; s.name = name; s.gap = None; s.ins = None; s.commit = commit
        s.pinned = False
        s.areg = areg

def simple(ins, **kw):
    return Item(lambda: (ins.kind, ins, True), **kw)

class BB:
    def __init__(s, ins, cap=2):
        s.ins = ins; s.cap = cap; s.post = []

class Sched:
    def __init__(s, em):
        s.em = em
        s.bb = []
        s.streams = {}
        s.overflow = 0
        s.g = -1
        s.ovf_log = []
        s.ldspace = 0; s.dsg = {}; s.pins = {}; s.markidx = []
    def add(s, ins, cap=2):
        s.bb.append(BB(ins, cap)); return len(s.bb) - 1
    def n(s): return len(s.bb)
    def item(s, stream, it):
        s.streams.setdefault(stream, []).append(it); return it
    def post(s, idx, fn):
        s.bb[idx].post.append(fn)
    def run(s):
        em = s.em
        for (k, i), (lo, hi) in s.pins.items():
            it = s.streams[k][i]
            if lo is not None:
                it.earliest = max(it.earliest, lo)
            if hi is not None:
                it.deadline = min(it.deadline, hi) if lo is None else hi
                it.pinned = lo is not None
        heads = {k: 0 for k in s.streams}
        nb = len(s.bb)
        for g in range(nb):
            b = s.bb[g]
            s.g = g
            if b.ins is not None:
                em.emit(b.ins)
            nscalar = 0
            for fn in b.post:
                nscalar += (fn() or 0)
            if g + 1 < nb and s.bb[g + 1].ins is not None:
                lg, vm = em.deps_wait(s.bb[g + 1].ins)
                if lg is not None:
                    for k in (2, 3, 4):
                        if g + k < nb and s.bb[g + k].ins is not None:
                            l2, _ = em.deps_wait(s.bb[g + k].ins)
                            if l2 is not None and l2 < lg:
                                o = em.lgkm[len(em.lgkm) - 1 - l2]
                                if g - o.tag_gap >= 8: lg = l2
                if em.wait(lg, vm): nscalar += 1
            used = max(0, nscalar - 1)
            cap = b.cap
            valu_seen = False
            vec_seen = False
            def try_place(it, forced):
                nonlocal used, nscalar, valu_seen, vec_seen
                r = it.peek()
                if r is None: return None
                kind, ins, consume = r
                u = UNITS[kind]
                if kind == 'skip':
                    it.gap = g
                    if it.commit: it.commit(None, True)
                    return 'consumed'
                if kind == 'salu':
                    cost = 0 if (nscalar == 0 and not vec_seen and cap > 0) else 1
                    if not forced and (vec_seen or used + cost > cap): return None
                else:
                    cost = u
                    if not forced:
                        if kind in MEMV and valu_seen: return None
                        if used + cost > cap: return None
                        if kind == 'ds_r' and s.ldspace and s.dsg.get(g, 0) + s.dsg.get(g - 1, 0) >= s.ldspace and it.deadline > g + 1: return None
                if not forced:
                    if em.need_states(ins) > 0: return None
                    lg, vm = em.deps_wait(ins)
                    if lg is not None or vm is not None: return None
                em.emit(ins)
                if kind == 'ds_r': s.dsg[g] = s.dsg.get(g, 0) + 1
                ins.tag_gap = g
                used += cost
                if kind == 'salu': nscalar += 1
                else:
                    vec_seen = True
                    if kind in VEC: valu_seen = True
                if it.commit: it.commit(ins, consume)
                if consume:
                    it.ins = ins; it.gap = g
                    return 'consumed'
                return 'partial'
            progress = True
            while progress:
                progress = False
                cands = []
                for k, L in s.streams.items():
                    h = heads[k]
                    if h >= len(L): continue
                    it = L[h]
                    if it.earliest > g: continue
                    r = it.peek()
                    if r is None: continue
                    cands.append((it.deadline, it.prio, k, it, r[0]))
                cands.sort(key=lambda x: (x[0], x[1]))
                order = [c for c in cands if c[4] in ('skip', 'salu')]
                rest = [c for c in cands if c[4] not in ('skip', 'salu')]
                if rest and rest[0][4] == 'valu' and cap - used >= 2:
                    rest = [c for c in rest if c[4] == 'ds_r'][:1] + rest
                order += rest
                for (dl, pr, k, it, kd) in order:
                    r = try_place(it, dl <= g)
                    if r is not None:
                        if r == 'consumed': heads[k] += 1
                        progress = True
                        break
            if used < cap:
                for k, L in s.streams.items():
                    seen = set()
                    for it in L[heads[k]:heads[k] + 24]:
                        if it.areg is None: continue
                        if it.earliest > g + 30: break
                        if any(g < m <= it.earliest for m in s.markidx): break
                        ar, tgt = it.areg
                        if id(ar) in seen: continue
                        seen.add(id(ar))
                        t = tgt()
                        if t is None: continue
                        if not ar.reach(t) and used < cap:
                            ins = ar.rebase_ins(t)
                            if em.need_states(ins) == 0:
                                em.emit(ins); ar.rebased(t); used += 1
            if used > cap and cap > 0:
                s.overflow += used - cap; s.ovf_log.append((g, used - cap))
        for k, L in s.streams.items():
            if heads[k] < len(L):
                raise RuntimeError(f"stream {k}: {len(L)-heads[k]} items unscheduled; first {L[heads[k]].name} earliest {L[heads[k]].earliest}")

class AddrReg:
    def __init__(s, v, base=0):
        s.v = v; s.base = base
    def reach(s, t): return s.base == t[1]
    def rebase_ins(s, t):
        d = (t[1] - s.base) & 0xffffffff
        return valu(f"v_add_u32 v{s.v}, 0x{d:x}, v{s.v}", [V(s.v)], [V(s.v)])
    def rebased(s, t): s.base = t[1]
```

```python
import sys, struct, re
from core import *

NAME = "concat_heads__mha_block_cached__mha_block_cached__near_ridge"
LDS_BYTES = 163840
BLK = 16384
RPK = [0, 2, 4, 6]; RPV = [1, 3, 5, 7]
WQB = [3, 4, 5, 6]; WOB = [8, 9, 6, 7]
WBASE = 98304; UBASE = 49152
XAREA = [143360, 122880]; XBASE = 122880

sK, sV, sX, sWq, sWo, sWs = S(4,4), S(8,4), S(12,4), S(16,4), S(20,4), S(24,4)
sW, sXw, sOff, sOwn, sOth = 28, 29, 30, 31, 32
sWave, sP, sI, sRedo = 33, 34, 35, 36
sC = S(38, 2)
vT = [1,2,3,4]; vD = [5,6,7,8]; vU = [9,10,11,12]
vOffK, vOffV, vOffX, vOffWq, vOffWo = 13, 14, 15, 16, 17
vLinW, vLinR, vSt = 18, 19, 20
vX = [76, 77]; vDummy = 78
NEGM, SBUF, PBUF, OACC = 24, 44, 240, 80
NSB = 4
sKV, sLq, sLx, sLo, sCnt = 42, 43, 48, 49, 96
aQ, aKF, aVF, aST, aL, aONE = 0, 80, 112, 144, 224, 244

def f32(x): return struct.unpack('<I', struct.pack('<f', x))[0]
CSCALE = 1.4426950408889634 * (128 ** -0.5)

class Alloc:
    def __init__(s):
        s.gr = [None] * 40
        s.order = []
    def free_blocks(s):
        return [b for b in range(10) if all(s.gr[4*b+j] is None for j in range(4))]
    def take_block(s, b, who):
        for j in range(4):
            assert s.gr[4*b+j] is None
            s.gr[4*b+j] = who
    def range_free(s, lo, n): return all(s.gr[j] is None for j in range(lo // 4096, (lo + n) // 4096))
    def take_range(s, lo, n, who):
        for j in range(lo // 4096, (lo + n) // 4096):
            assert s.gr[j] is None
            s.gr[j] = who
    def release(s, who):
        for j in range(40):
            if s.gr[j] is who: s.gr[j] = None
    def held(s, cls): return len({id(x) for x in s.gr if isinstance(x, Xfer) and x.cls == cls})

class Xfer:
    def __init__(s, cls, name, pieces, allowed=None, fixed=None):
        s.cls = cls; s.name = name; s.pieces = pieces
        s.allowed = allowed; s.fixed = fixed
        s.addr = None; s.ins = []; s.reads = []; s.issued = 0

class Gen:
    def __init__(s, opts):
        s.o = opts
        s.em = Emitter()
        s.sc = Sched(s.em)
        s.al = Alloc()
        s.sc.ldspace = opts.get('ldspace', 2)
        s.aT = [AddrReg(v) for v in vT]
        s.aD = [AddrReg(v) for v in vD]
        s.aU = [AddrReg(v, base=UBASE) for v in vU]
        s.aX = [AddrReg(v, base=XBASE) for v in vX]
        s.bval = {}
        s.marks = []
        s.m0own = None
        s.soff_cur = None
        s.last_dma_gap = {}
        s.gate = {}
        s.stamps = 0
    def try_alloc(s, x, dry):
        if x.addr is not None: return True
        if x.cls in s.gate and not s.gate[x.cls](x): return False
        if x.fixed is not None:
            lo, n = x.fixed
            if not s.al.range_free(lo, n): return False
            if not dry: s.al.take_range(lo, n, x); x.addr = lo
            return True
        fb = [b for b in s.al.free_blocks() if x.allowed is None or b in x.allowed(x)]
        if not fb: return False
        if not dry:
            s.al.take_block(fb[0], x); x.addr = fb[0] * BLK
        return True
    def add_xfer(s, stream, x, earliest=-1, deadline=10**9, spacing=0, prio=5):
        for pi, (srd, voff, sbase, sconst, imm, ldsoff, m0b, flags) in enumerate(x.pieces):
            def mk(pi=pi, srd=srd, voff=voff, sbase=sbase, sconst=sconst, imm=imm, ldsoff=ldsoff, m0b=m0b, flags=flags):
                st = {}
                def peek_m0():
                    if s.m0own is not None: return None
                    if s.sc.g - s.last_dma_gap.get(stream, -999) < spacing - 1: return None
                    if not s.try_alloc(x, True): return None
                    a = x.addr
                    if a is None:
                        if x.fixed is not None: a = x.fixed[0]
                        else: a = [b for b in s.al.free_blocks() if x.allowed is None or b in x.allowed(x)][0] * BLK
                    val = (a + ldsoff - imm - s.bval.get(m0b, 0)) & 0xffffffff
                    return ('salu', salu(f"s_add_u32 m0, s{m0b}, 0x{val:x}", ['m0'], [S(m0b)]), True)
                def commit_m0(ins, c):
                    s.try_alloc(x, False); s.m0own = stream
                    for it in st['next']:
                        if not it.pinned: it.deadline = min(it.deadline, s.sc.g + 3)
                def peek_so():
                    key = (sbase, sconst)
                    if s.soff_cur == key: return ('skip', None, True)
                    if sbase is None: i = salu(f"s_mov_b32 s{sOff}, 0x{sconst:x}", [S(sOff)])
                    else: i = salu(f"s_add_u32 s{sOff}, s{sbase}, 0x{(sconst - s.bval.get(sbase, 0)) & 0xffffffff:x}", [S(sOff)], [S(sbase)])
                    return ('salu', i, True)
                def commit_so(ins, c): s.soff_cur = (sbase, sconst)
                def peek_dma():
                    t = f"buffer_load_dwordx4 v{voff}, {srd}, s{sOff} offen" + (f" offset:{imm}" if imm else "") + (f" {flags}" if flags else "") + " lds"
                    return ('dma', Ins(t, 'dma', rd=[f"v{voff}", f"s{sOff}", 'm0'] + srd.regs()), True)
                def commit_dma(ins, c):
                    s.m0own = None; x.ins.append(ins); x.issued += 1; s.last_dma_gap[stream] = s.sc.g
                s.sc.item(stream, Item(peek_m0, earliest, deadline, prio, f"{x.name}.m0.{pi}", commit_m0))
                st['next'] = [s.sc.item(stream, Item(peek_so, earliest, deadline, prio, f"{x.name}.so.{pi}", commit_so)),
                              s.sc.item(stream, Item(peek_dma, earliest, deadline, prio, f"{x.name}.dma.{pi}", commit_dma))]
            mk()
    def blk_pieces(s, srd, voff, sbase, c0, rowstep16, cbstep, flags="", sW=sW):
        P = []
        for hi in (0, 1):
            for cb in (0, 1):
                if cbstep < 4096: P.append((srd, voff, sbase, c0 + hi * rowstep16, cb * cbstep, cb * 4096 + hi * 2048, sW, flags))
                else: P.append((srd, voff, sbase, c0 + hi * rowstep16 + cb * cbstep, 0, cb * 4096 + hi * 2048, sW, flags))
        return P
    def xf_K(s, n, m0b=sW): return Xfer('kv', f"K{n}", s.blk_pieces(sK, vOffK, sKV, n * 8192, 4096, 128, s.o.get('kvflags', 'nt'), m0b), fixed=(RPK[n % 4] * BLK, BLK))
    def xf_V(s, n, m0b=sW): return Xfer('kv', f"V{n}", s.blk_pieces(sV, vOffV, sKV, n * 8192, 4096, 128, s.o.get('kvflags', 'nt'), m0b), fixed=(RPV[n % 4] * BLK, BLK))
    def xf_Wq(s, r, k): return Xfer('wq', f"Wq{r}.{k}", s.blk_pieces(sWq, vOffWq, sLq, k * 32 * 8192 + r * 256, 16 * 8192, 128, s.o.get('wqflags', '')), fixed=(WQB[k % 4] * BLK, BLK))
    def xf_X(s, r, c):
        P = [(sX, vOffX, sLx, m * 16384 + (c >> 1) * 256, (c & 1) * 128, m * 2048, sXw, s.o.get('xflags', '')) for m in range(5)]
        return Xfer('x', f"X{r}.{c}", P, fixed=(XAREA[c & 1], 20480))
    def xf_Wo(s, ch, m):
        grp = m // 2; sb = sOwn if grp < 2 else sOth
        hrow = 128 if grp in (0, 2) else 0
        k0 = hrow + (m & 1) * 64
        return Xfer('wo', f"Wo{ch}.{m}", s.blk_pieces(sWo, vOffWo, sb, k0 * 1024 + ch * 128, 16 * 1024, 32 * 1024, s.o.get('woflags', '')), fixed=(WOB[m % 4] * BLK, BLK))
    def mark(s, idx, group, incs):
        def fn():
            if group: s.em.raw(Ins(f"; MARK {group}", 'comment', tag=('mark', group))); s.marks.append((group, idx))
            n = 0
            for sg, d in incs.items():
                if sg == 'vx': s.em.emit(valu(f"v_add_u32 v{vOffX}, 0x{d & 0xffffffff:x}, v{vOffX}", [V(vOffX)], [V(vOffX)])); n += 1
                else: s.em.raw(salu(f"s_add_u32 s{sg}, s{sg}, 0x{d & 0xffffffff:x}", [S(sg)], [S(sg)])); n += 1
                s.bval[sg] = s.bval.get(sg, 0) + d
            s.soff_cur = None
            return n
        s.sc.post(idx, fn)
        if group: s.sc.markidx.append(idx)
    def setbase(s, idx, sg, val=0):
        def fn():
            s.em.raw(salu(f"s_mov_b32 s{sg}, 0x{val:x}", [S(sg)])); s.bval[sg] = val; s.soff_cur = None; return 1
        s.sc.post(idx, fn)
    def touch_item(s, stream, srd, voff, sbase, sconst, flags, earliest, deadline, name):
        mk = lambda: salu(f"s_mov_b32 s41, 0x{sconst:x}", [S(41)]) if sbase is None else salu(f"s_add_u32 s41, s{sbase}, 0x{(sconst - s.bval.get(sbase, 0)) & 0xffffffff:x}", [S(41)], [S(sbase)])
        ld = Ins(f"buffer_load_dword v22, v{voff}, {srd}, s41 offen {flags}", 'dma', rd=[f"v{voff}", 's41'] + srd.regs())
        s.sc.item(stream, Item(lambda: ('salu', mk(), True), earliest=earliest, deadline=deadline, prio=7, name=name))
        s.sc.item(stream, simple(ld, earliest=earliest, deadline=deadline + 2, prio=7, name=name))
    def ds_item(s, stream, op, dst, ar, x, off, wb, earliest, deadline, prio=1, name=""):
        tgt = lambda: (x.fixed[0] + off, wb)
        def peek():
            t = tgt()
            assert x.addr is not None, (x.name, "read before alloc")
            if not ar.reach(t): return ('valu', ar.rebase_ins(t), False)
            assert 0 <= t[0] - ar.base <= 65535
            return ('ds_r', Ins(f"{op} {dst}, v{ar.v} offset:{t[0] - ar.base}", 'ds_r', rd=[f"v{ar.v}"], wr=dst.regs()), True)
        def commit(ins, consume):
            if consume: x.reads.append(ins)
            else: ar.rebased(tgt())
        return s.sc.item(stream, Item(peek, earliest, deadline, prio, name, commit, areg=(ar, tgt)))
    def rd_V(s, stream, frag, x, t, e0, dl, name=""):
        wb = (x.fixed[0] // 65536) * 65536
        for rd in (0, 1):
            s.ds_item(stream, "ds_read_b64_tr_b16", frag.sub(2 * rd, 2), s.aT[t & 3], x, (t >> 2) * 4096 + rd * 2048, wb, e0, dl, name=name)
    def rd_Wq(s, stream, frag, x, t, e0, dl, name=""):
        for rd in (0, 1):
            s.ds_item(stream, "ds_read_b64_tr_b16", frag.sub(2 * rd, 2), s.aU[t & 3], x, (t >> 2) * 4096 + rd * 512, UBASE, e0, dl, name=name)
    def rd_K(s, stream, frag, x, kt, u, e0, dl, name=""):
        wb = (x.fixed[0] // 65536) * 65536
        for pc in (0, 1):
            s.ds_item(stream, "ds_read_b64", frag.sub(2 * pc, 2), s.aD[2 * (u & 1) + pc], x, (u >> 1) * 4096 + kt * 2048, wb, e0, dl, name=name)
    def rd_X(s, stream, frag, x, k, qb, e0, dl, name=""):
        s.ds_item(stream, "ds_read_b128", frag, s.aX[k & 1], x, qb * 2048, XBASE, e0, dl, name=name)
    def sync_at(s, idx, need, free):
        def fn():
            n = 0
            for x in need: assert x.issued == len(x.pieces), (x.name, "not issued by sync", s.sc.g)
            vm = s.em.vm_needed([i for x in need for i in x.ins])
            lg = s.em.lgkm_needed([i for x in free for i in x.reads])
            for x in free: assert len(x.reads) == x.nreads, (x.name, len(x.reads), x.nreads, s.sc.g)
            if s.em.wait(lg, vm): n += 1
            s.em.raw(Ins("s_barrier", 'barrier')); n += 1
            for x in free: s.al.release(x)
            return n
        s.sc.post(idx, fn)
    def stamp(s, idx):
        if not s.o.get('stamps'): return
        k = s.stamps; s.stamps += 1
        def fn():
            s.em.raw(Ins(f"s_memtime s[{50+2*k}:{51+2*k}]", 'salu'))
            return 1
        s.sc.post(idx, fn)

    def prologue(s):
        e = s.em.emit
        sa = lambda t, w=(), r=(): e(salu(t, w, r))
        va = lambda t, w, r: e(valu(t, w, r))
        sa("s_cmp_ge_u32 s2, 256"); e(Ins("s_cbranch_scc1 L_end", 'salu'))
        if s.o.get('stamps'):
            e(Ins("s_memtime s[94:95]", 'salu')); e(Ins("s_memrealtime s[90:91]", 'salu'))
        e(Ins("s_load_dwordx16 s[64:79], s[0:1], 0", 'salu'))
        e(Ins("s_load_dwordx8 s[80:87], s[0:1], 64", 'salu'))
        e(Ins("s_load_dwordx2 s[88:89], s[0:1], 96", 'salu'))
        va("v_lshrrev_b32 v21, 6, v0", [V(21)], [V(0)])
        sa("s_and_b32 s40, s2, 7"); sa("s_lshr_b32 s41, s2, 3"); sa("s_lshr_b32 s42, s40, 2"); sa("s_and_b32 s43, s40, 3")
        va(f"v_readfirstlane_b32 s{sWave}, v21", [S(sWave)], [V(21)])
        sa("s_lshr_b32 s44, s41, 1"); sa("s_and_b32 s45, s41, 1")
        sa("s_lshl_b32 s46, s43, 3"); sa("s_lshl_b32 s47, s45, 2"); sa("s_add_u32 s46, s46, s47")
        sa(f"s_lshr_b32 s{sP}, s{sWave}, 1", [S(sP)], [S(sWave)]); sa(f"s_and_b32 s{sI}, s{sWave}, 1")
        sa(f"s_mov_b32 s{sRedo}, 0")
        va("v_and_b32 v0, 63, v0", [V(0)], [V(0)])
        va("v_lshrrev_b32 v21, 5, v0", [V(21)], [V(0)])
        va("v_lshlrev_b32 v21, 10, v21", [V(21)], [V(21)])
        va("v_bfe_u32 v22, v0, 2, 3", [V(22)], [V(0)])
        va("v_lshl_add_u32 v21, v22, 7, v21", [V(21)], [V(22), V(21)])
        va("v_and_b32 v23, 3, v0", [V(23)], [V(0)])
        va("v_lshl_add_u32 v21, v23, 3, v21", [V(21)], [V(23), V(21)])
        sa(f"s_lshl_b32 s48, s{sP}, 13")
        va("v_add_u32 v21, s48, v21", [V(21)], [V(21)])
        va("v_lshrrev_b32 v22, 1, v22", [V(22)], [V(22)])
        for ee in range(4):
            va(f"v_xor_b32 v23, {ee}, v22", [V(23)], [V(22)])
            va(f"v_lshl_add_u32 v{vT[ee]}, v23, 5, v21", [V(vT[ee])], [V(23), V(21)])
        va("v_bfe_u32 v21, v0, 3, 1", [V(21)], [V(0)])
        va("v_lshlrev_b32 v21, 10, v21", [V(21)], [V(21)])
        va("v_and_b32 v22, 7, v0", [V(22)], [V(0)])
        va("v_lshl_add_u32 v21, v22, 7, v21", [V(21)], [V(22), V(21)])
        va("v_bfe_u32 v22, v0, 4, 1", [V(22)], [V(0)])
        va("v_lshl_add_u32 v21, v22, 3, v21", [V(21)], [V(22), V(21)])
        va("v_bfe_u32 v22, v0, 1, 3", [V(22)], [V(0)])
        va("v_lshrrev_b32 v23, 5, v0", [V(23)], [V(0)])
        va("v_xor_b32 v22, v23, v22", [V(22)], [V(23), V(22)])
        for j in range(4):
            va(f"v_xor_b32 v23, {2*j}, v22", [V(23)], [V(22)])
            va(f"v_lshl_add_u32 v23, v23, 4, v21", [V(23)], [V(23), V(21)])
            va(f"v_add_u32 v{vD[j]}, s48, v23", [V(vD[j])], [V(23)])
        va("v_lshrrev_b32 v21, 4, v0", [V(21)], [V(0)])
        va("v_lshlrev_b32 v21, 10, v21", [V(21)], [V(21)])
        va("v_bfe_u32 v22, v0, 2, 2", [V(22)], [V(0)])
        va("v_lshl_add_u32 v21, v22, 7, v21", [V(21)], [V(22), V(21)])
        va("v_and_b32 v23, 3, v0", [V(23)], [V(0)])
        va("v_lshl_add_u32 v21, v23, 3, v21", [V(21)], [V(23), V(21)])
        sa(f"s_add_u32 s49, s48, {UBASE}")
        va("v_add_u32 v21, s49, v21", [V(21)], [V(21)])
        va("v_bfe_u32 v22, v0, 3, 2", [V(22)], [V(0)])
        for ee in range(4):
            va(f"v_xor_b32 v23, {ee}, v22", [V(23)], [V(22)])
            va(f"v_lshl_add_u32 v{vU[ee]}, v23, 5, v21", [V(vU[ee])], [V(23), V(21)])
        va("v_lshrrev_b32 v21, 3, v0", [V(21)], [V(0)])
        va("v_and_b32 v22, 7, v0", [V(22)], [V(0)])
        va("v_lshrrev_b32 v23, 4, v0", [V(23)], [V(0)])
        sa(f"s_lshl_b32 s50, s{sI}, 2")
        va(f"v_add_u32 v{vLinW}, s50, v23", [V(vLinW)], [V(23)])
        va(f"v_xor_b32 v{vLinW}, v22, v{vLinW}", [V(vLinW)], [V(22), V(vLinW)])
        va(f"v_lshlrev_b32 v{vLinW}, 4, v{vLinW}", [V(vLinW)], [V(vLinW)])
        va(f"v_lshlrev_b32 v23, 1, v23", [V(23)], [V(23)])
        va(f"v_xor_b32 v23, v22, v23", [V(23)], [V(22), V(23)])
        va(f"v_lshlrev_b32 v23, 4, v23", [V(23)], [V(23)])
        sa(f"s_lshl_b32 s50, s{sI}, 3")
        va(f"v_add_u32 v22, s50, v21", [V(22)], [V(21)])
        va(f"v_lshl_add_u32 v{vOffK}, v22, 8, v{vLinW}", [V(vOffK)], [V(22), V(vLinW)])
        va(f"v_lshl_add_u32 v{vOffV}, v22, 8, v23", [V(vOffV)], [V(22), V(23)])
        va(f"v_lshl_add_u32 v{vOffWo}, v22, 10, v23", [V(vOffWo)], [V(22), V(23)])
        va(f"v_bfe_u32 v23, v0, 4, 1", [V(23)], [V(0)])
        sa(f"s_lshl_b32 s50, s{sI}, 1")
        va(f"v_add_u32 v23, s50, v23", [V(23)], [V(23)])
        va(f"v_lshlrev_b32 v23, 1, v23", [V(23)], [V(23)])
        va(f"v_and_b32 v21, 7, v0", [V(21)], [V(0)])
        va(f"v_xor_b32 v23, v21, v23", [V(23)], [V(21), V(23)])
        va(f"v_lshlrev_b32 v23, 4, v23", [V(23)], [V(23)])
        va(f"v_lshl_add_u32 v{vOffWq}, v22, 13, v23", [V(vOffWq)], [V(22), V(23)])
        sa(f"s_mul_i32 s50, s{sP}, 80")
        va(f"v_add_u32 v22, s50, v22", [V(22)], [V(22)])
        va(f"v_lshl_add_u32 v{vOffX}, v22, 10, v{vLinW}", [V(vOffX)], [V(22), V(vLinW)])
        va("v_and_b32 v21, 15, v0", [V(21)], [V(0)])
        va("v_lshlrev_b32 v21, 7, v21", [V(21)], [V(21)])
        sa(f"s_mul_i32 s49, s{sI}, 10240"); sa(f"s_add_u32 s49, s49, {XBASE}")
        va("v_add_u32 v21, s49, v21", [V(21)], [V(21)])
        va("v_bfe_u32 v22, v0, 1, 3", [V(22)], [V(0)])
        va("v_lshrrev_b32 v23, 4, v0", [V(23)], [V(0)])
        va("v_xor_b32 v22, v23, v22", [V(22)], [V(23), V(22)])
        va(f"v_lshl_add_u32 v{vX[0]}, v22, 4, v21", [V(vX[0])], [V(22), V(21)])
        va("v_xor_b32 v22, 4, v22", [V(22)], [V(22)])
        va(f"v_lshl_add_u32 v{vX[1]}, v22, 4, v21", [V(vX[1])], [V(22), V(21)])
        va(f"v_lshlrev_b32 v{vSt}, 4, v0", [V(vSt)], [V(0)])
        sa(f"s_mul_i32 s50, s{sWave}, 20480")
        va(f"v_add_u32 v{vLinW}, s50, v{vSt}", [V(vLinW)], [V(vSt)])
        sa(f"s_xor_b32 s51, s{sWave}, 2"); sa("s_mul_i32 s51, s51, 20480")
        va(f"v_add_u32 v{vLinR}, s51, v{vSt}", [V(vLinR)], [V(vSt)])
        sa(f"s_lshl_b32 s50, s{sI}, 10"); sa(f"s_add_u32 s{sW}, s48, s50", [S(sW)])
        sa(f"s_mul_i32 s51, s{sP}, 10240"); sa(f"s_add_u32 s{sXw}, s51, s50", [S(sXw)])
        sa(f"s_lshl_b32 s{sOwn}, s{sP}, 18"); sa(f"s_xor_b32 s{sOth}, s{sOwn}, 0x40000")
        sa(f"s_mov_b32 s{sC.lo}, 0x{f32(CSCALE):x}"); sa(f"s_mov_b32 s{sC.lo+1}, 0x{f32(CSCALE):x}")
        e(Ins("s_waitcnt lgkmcnt(0)", 'wait'))
        sa("s_cmp_eq_u32 s42, 0")
        sa("s_cselect_b64 s[12:13], s[64:65], s[74:75]"); sa("s_cselect_b64 s[4:5], s[66:67], s[76:77]")
        sa("s_cselect_b64 s[8:9], s[68:69], s[78:79]"); sa("s_cselect_b64 s[16:17], s[70:71], s[80:81]")
        sa("s_cselect_b64 s[20:21], s[72:73], s[82:83]")
        def add64(lo, off):
            sa(f"s_add_u32 s{lo}, s{lo}, {off}"); sa(f"s_addc_u32 s{lo+1}, s{lo+1}, 0")
        sa("s_mul_i32 s50, s44, 163840"); add64(12, "s50"); sa("s_mov_b32 s14, 163840"); sa("s_mov_b32 s15, 0x20000")
        sa(f"s_lshl_b32 s51, s{sP}, 1"); sa(f"s_add_u32 s51, s46, s51")
        sa("s_lshl_b32 s50, s51, 8"); add64(16, "s50"); sa("s_sub_u32 s18, 0x400000, s50"); sa("s_mov_b32 s19, 0x20000")
        sa("s_lshl_b32 s50, s44, 5"); sa("s_add_u32 s50, s50, s51"); sa("s_lshl_b32 s50, s50, 17")
        add64(4, "s50"); sa("s_mov_b32 s6, 0x40000"); sa("s_mov_b32 s7, 0x20000")
        add64(8, "s50"); sa("s_mov_b32 s10, 0x40000"); sa("s_mov_b32 s11, 0x20000")
        sa("s_lshl_b32 s50, s46, 17"); sa(f"s_lshl_b32 s51, s{sP}, 9"); sa("s_add_u32 s50, s50, s51")
        add64(20, "s50"); sa("s_sub_u32 s22, 0x80000, s51"); sa("s_mov_b32 s23, 0x20000")
        sa("s_lshl_b32 s50, s42, 4"); sa("s_add_u32 s50, s50, s44"); sa("s_lshl_b32 s50, s50, 3")
        sa("s_lshl_b32 s51, s43, 1"); sa("s_add_u32 s50, s50, s51"); sa("s_add_u32 s50, s50, s45")
        sa("s_mul_i32 s50, s50, 163840"); sa(f"s_mul_i32 s51, s{sWave}, 40960"); sa("s_add_u32 s50, s50, s51")
        sa("s_mov_b32 s24, s88"); sa("s_mov_b32 s25, s89"); add64(24, "s50"); sa("s_mov_b32 s26, 40960"); sa("s_mov_b32 s27, 0x20000")
        for sg in (sKV, sLq, sLx): sa(f"s_mov_b32 s{sg}, 0")
        sa("s_lshl_b32 s50, s44, 5"); sa(f"s_lshl_b32 s51, s{sI}, 4"); sa("s_add_u32 s50, s50, s51")
        va("v_lshrrev_b32 v21, 2, v0", [V(21)], [V(0)])
        va("v_add_u32 v21, s50, v21", [V(21)], [V(21)])
        if s.o.get('wt') == 1:
            va("v_and_b32 v22, 3, v0", [V(22)], [V(0)])
            va("v_lshlrev_b32 v22, 7, v22", [V(22)], [V(22)])
            va("v_lshl_add_u32 v23, v21, 10, v22", [V(23)], [V(21), V(22)])
        else:
            va("v_and_b32 v22, 1, v0", [V(22)], [V(0)])
            va("v_lshlrev_b32 v22, 6, v22", [V(22)], [V(22)])
            va("v_lshl_add_u32 v23, v21, 10, v22", [V(23)], [V(21), V(22)])
        va("v_and_b32 v22, 3, v0", [V(22)], [V(0)])
        va("v_lshlrev_b32 v22, 6, v22", [V(22)], [V(22)])
        va("v_lshl_add_u32 v21, v21, 13, v22", [V(21)], [V(21), V(22)])
        s.q0touch = []
        if 'q' in str(s.o.get('t0', '')):
            s.q0touch.append(Ins(f"buffer_load_dword v78, v21, {sWq}, 0 offen {s.o.get('t0qf', 'nt')}", 'dma', rd=['v21']))
        if 'x' in str(s.o.get('t0', '')):
            sa("s_mul_i32 s50, s45, 80"); sa(f"s_mul_i32 s51, s{sWave}, 20"); sa("s_add_u32 s50, s50, s51")
            for half in range(2):
                va(f"v_add_u32 v84, {64*half}, v0", [V(84)], [V(0)])
                va(f"v_min_u32 v84, 119, v84", [V(84)], [V(84)])
                va(f"v_mul_u32_u24 v85, 3277, v84", [V(85)], [V(84)])
                va(f"v_lshrrev_b32 v85, 16, v85", [V(85)], [V(85)])
                va(f"v_mul_u32_u24 v86, 20, v85", [V(86)], [V(85)])
                va(f"v_sub_u32 v84, v84, v86", [V(84)], [V(84), V(86)])
                va(f"v_add_u32 v84, s50, v84", [V(84)], [V(84)])
                va(f"v_lshlrev_b32 v84, 10, v84", [V(84)], [V(84)])
                va(f"v_lshl_add_u32 v{88+half}, v85, 7, v84", [V(88+half)], [V(85), V(84)])
                s.q0touch.append(Ins(f"buffer_load_dword v78, v{88+half}, {sX}, 0 offen offset:256 {s.o.get('t0xf', '')}", 'dma', rd=[f'v{88+half}']))
        if s.o.get('ctouch'):
            n = s.o['ctouch']
            sa("s_getpc_b64 s[50:51]")
            e(Ins("L_pc:", 'label'))
            sa(f"s_mul_i32 s52, s{sWave}, {n*8192}")
            va("v_lshlrev_b32 v80, 7, v0", [V(80)], [V(0)])
            va("v_add_u32 v80, s52, v80", [V(80)], [V(80)])
            for j in range(n):
                va("v_min_u32 v82, L_end-L_pc, v80", [V(82)], [V(80)])
                va("v_mov_b32 v83, s51", [V(83)], [])
                va("v_add_co_u32 v82, vcc, s50, v82", [V(82), 'vcc'], [V(82)])
                va("v_addc_co_u32 v83, vcc, 0, v83, vcc", [V(83), 'vcc'], [V(83), 'vcc'])
                e(Ins(f"global_load_dword v78, v[82:83], off", 'dma', rd=['v82', 'v83']))
                if j < n - 1: va("v_add_u32 v80, 0x2000, v80", [V(80)], [V(80)])

    def valu_block(s, L, every=4):
        first = s.sc.n()
        for j, ins in enumerate(L):
            s.sc.add(ins, cap=(2 if (j % every) == every - 1 else 0))
        return first, s.sc.n() - 1

    def build(s):
        o = s.o; sc = s.sc
        s.prologue()
        Wq = [[s.xf_Wq(r, k) for k in range(17)] for r in range(2)]
        X = [[s.xf_X(r, c) for c in range(8)] for r in range(2)]
        K = [s.xf_K(n) for n in range(33)]; Vv = [s.xf_V(n) for n in range(33)]
        Wo = [s.xf_Wo(m // 8, m % 8) for m in range(36)]
        for x in Wq[0] + Wq[1] + K + Vv + Wo: x.nreads = 16
        for x in X[0] + X[1]: x.nreads = 10
        for x in (Wq[0][16], Wq[1][16], K[32], Vv[32], *Wo[32:]): x.nreads = 0
        EXA = Xfer('ex', 'EX', [], fixed=(0, 81920))
        sp_st = o.get('sp_stage', 3); sp_kv = o.get('sp_kv', 6)

        g0 = sc.add(None, cap=0)
        s.stamp(g0)
        xf = lambda k, qb: A(aQ + (k % 2) * 20 + 4 * qb, 4)
        for r in range(2):
            wqf = lambda k, t: A((aKF if k % 2 == 0 else aVF) + 4 * t, 4)
            if r == 0:
                init = [valu(f"v_mov_b32 v44, 0x3f803f80", [V(44)], [])]
                init += [valu(f"v_accvgpr_write_b32 a{aONE+j}, v44", [A(aONE + j)], [V(44)]) for j in range(4)]
                init += [valu(f"v_mov_b32 v{NEGM+j}, 0", [V(NEGM + j)], []) for j in range(20)]
                for x in (X[0][0], Wq[0][0], Wq[0][1], X[0][1], Wq[0][2], Wq[0][3]): s.add_xfer('stage', x, earliest=g0, deadline=g0, prio=0)
                if o.get('t0first'):
                    for ins in s.q0touch: s.em.emit(ins)
                else:
                    gt = sc.add(None, cap=0)
                    for ins in s.q0touch: sc.item('tch', simple(ins, earliest=gt, deadline=gt))
                a_, b_ = s.valu_block(init)
                pre_sync = b_
            else:
                pre_sync = s.next_presync
            q0 = sc.n()
            s.sync_at(pre_sync, [Wq[r][0], X[r][0]], s.pre_free if r == 1 else [])
            for t in range(8): s.rd_Wq('rdT', wqf(0, t), Wq[r][0], t, pre_sync, q0 - 1, name=f"wq{r}.0.{t}")
            for qb in range(5): s.rd_X('rdD', xf(0, qb), X[r][0], 0, qb, pre_sync, q0 - 1, name=f"x{r}.0.{qb}")
            base = {}
            for k in range(16):
                base[k] = sc.n()
                for qb in range(5):
                    for t in range(8):
                        acc = V(OACC + qb * 32 + t * 4, 4)
                        sc.add(mfma(acc, wqf(k, t), xf(k, qb), acc if k else 0))
            qend = sc.n() - 1
            n0 = 16 * r
            for k in range(16):
                bs = base[k]
                if r == 0 and o.get('qst') == 1 and k in (0, 1, 2, 4, 8, 12): s.stamp(bs)
                if k in (1, 5, 9, 13): s.mark(bs - 1, f"Q{r}", {sLq: 4 * 32 * 8192, sLx: 256} if k < 13 else {})
                if k < 15:
                    need = [Wq[r][k + 1]] + ([X[r][(k + 1) // 2]] if (k + 1) % 2 == 0 else [])
                    free = [Wq[r][k]] + ([X[r][k // 2]] if k % 2 == 1 else [])
                    if k == 13: need.append(Wq[r][16]); free.append(Wq[r][16])
                    s.sync_at(bs, need, free)
                    for t in range(8): s.rd_Wq('rdT', wqf(k + 1, t), Wq[r][k + 1], t, bs, bs + 32, name=f"wq{r}.{k+1}.{t}")
                    for qb in range(5): s.rd_X('rdD', xf(k + 1, qb), X[r][(k + 1) // 2], k + 1, qb, bs, bs + 32, name=f"x{r}.{k+1}.{qb}")
                else:
                    s.sync_at(bs, [], [Wq[r][15], X[r][7]])
                if k % 2 == 1 and (k + 3) // 2 < 8: s.add_xfer('stage', X[r][(k + 3) // 2], earliest=bs, deadline=bs + 30, prio=0, spacing=sp_st)
                if k + 4 <= 16: s.add_xfer('stage', Wq[r][k + 4], earliest=bs, deadline=bs + 38, prio=0, spacing=sp_st)
            s.stamp(qend)
            if r == 0:
                kq = o.get('kv0at', 0)
                if kq == 0: e0, d0 = g0, base[1] - 2
                else: e0, d0 = base[13], base[14]
                for x in (K[0], Vv[0], K[1]): s.add_xfer('kv', x, earliest=e0, deadline=d0, prio=4, spacing=o.get('sp_kv0', 2))
            for (x, k) in ((K[n0 + 2], 13), (Vv[n0 + 1], 13), (Vv[n0 + 2], 14), (K[n0 + 3], 15), (Vv[n0 + 3], 15)):
                s.add_xfer('kv', x, earliest=base[k], deadline=qend + 60, prio=4, spacing=sp_st)
            ep = []
            for qb in range(5):
                for u in range(4):
                    src = OACC + qb * 32 + u * 8
                    for j in range(4):
                        ep.append(valu(f"v_pk_mul_f32 v[{src+2*j}:{src+2*j+1}], v[{src+2*j}:{src+2*j+1}], {sC}", [V(src + 2*j, 2)], [V(src + 2*j, 2)]))
                    for j in range(4):
                        ep.append(valu(f"v_cvt_pk_bf16_f32 v{src+j}, v{src+2*j}, v{src+2*j+1}", [V(src + j)], [V(src + 2*j, 2)]))
                    for j in range(4):
                        ep.append(valu(f"v_accvgpr_write_b32 a{aQ+qb*16+u*4+j}, v{src+j}", [A(aQ + qb*16 + u*4 + j)], [V(src + j)]))
            ea, eb = s.valu_block(ep)
            s.setbase(ea, sLq, 0); s.setbase(ea, sLx, 0)
            if o.get('dump') == f'Q{r}':
                s.finish_dump('a', aQ, 80); return
            a0 = sc.n()
            kf = lambda kt, u: A(aKF + (u * 2 + kt) * 4, 4)
            vf = lambda dt: A(aVF + dt * 4, 4)
            Sb = lambda tau, kt: V(SBUF + (tau % NSB) * 8 + kt * 4, 4)
            Pb = lambda tau: V(PBUF + (tau % NSB) * 4, 4)
            asy = ea + 100
            s.sync_at(asy, [K[n0], Vv[n0]], [])
            for u in range(4):
                for kt in range(2): s.rd_K('rdD', kf(kt, u), K[n0], kt, u, asy, a0 - 1, name=f"k{n0}")
            for dt in range(8): s.rd_V('rdT', vf(dt), Vv[n0], dt, asy, a0 + 8, name=f"v{n0}")
            qk_pos = {}; pv_pos = {}; slot0 = {}
            for tau in range(82):
                slot0[tau] = sc.n()
                if tau < 80:
                    st, qb = divmod(tau, 5)
                    for u in range(4):
                        for kt in range(2):
                            d = Sb(tau, kt)
                            c = d if u else V(NEGM + qb * 4, 4)
                            qk_pos[(tau, kt, u)] = sc.add(mfma(d, kf(kt, u), A(aQ + qb * 16 + u * 4, 4), c))
                if tau >= 2:
                    t2 = tau - 2; st, qb = divmod(t2, 5)
                    for dt in range(8):
                        acc = V(OACC + qb * 32 + dt * 4, 4)
                        pv_pos[(t2, dt)] = sc.add(mfma(acc, vf(dt), Pb(t2), acc if st else 0))
                    l = A(aL + qb * 4, 4)
                    pv_pos[(t2, 8)] = sc.add(mfma(l, A(aONE, 4), Pb(t2), l if st else 0))
            aend = sc.n() - 1
            if r == 0 and o.get('ast'):
                for j in range(6): s.stamp(slot0[5 * o['ast'] + j])
            s.stamp(aend)
            for tau in (8, 28, 48, 68): s.mark(slot0[tau] - 1, f"A{r}", {sKV: 32768} if tau < 68 else {})
            for tau in range(80):
                e0 = qk_pos[(tau, 1, 3)] + 2
                dl = pv_pos[(tau, 0)] - 2
                for kt in range(2):
                    for j in range(4):
                        rr = Sb(tau, kt).lo + j
                        sc.item('sm', simple(trans(f"v_exp_f32 v{rr}, v{rr}", [V(rr)], [V(rr)]), earliest=e0, deadline=dl - 4, prio=2, name=f"exp{tau}"))
                    for j in range(2):
                        rr = Sb(tau, kt).lo + 2 * j
                        pd = Pb(tau).lo + 2 * kt + j
                        sc.item('sm', simple(valu(f"v_cvt_pk_bf16_f32 v{pd}, v{rr}, v{rr+1}", [V(pd)], [V(rr, 2)]), earliest=e0, deadline=dl, prio=2, name=f"cvt{tau}"))
            sy = {}
            for st in range(15):
                t4 = 5 * st + 4
                sy[st + 1] = slot0[t4] - 1
                s.sync_at(sy[st + 1], [K[n0 + st + 1], Vv[n0 + st + 1]], [K[n0 + st], Vv[n0 + st]])
                for u in range(4):
                    for kt in range(2):
                        s.rd_K('rdD', kf(kt, u), K[n0 + st + 1], kt, u, qk_pos[(t4, kt, u)], qk_pos[(t4 + 1, kt, u)] - 7, name=f"k{n0+st+1}")
                for dt in range(8):
                    s.rd_V('rdT', vf(dt), Vv[n0 + st + 1], dt, pv_pos[(t4, dt)], pv_pos[(t4 + 1, dt)] - 7, name=f"v{n0+st+1}")
                if st + 4 <= 16:
                    s.add_xfer('kv', K[n0 + st + 4], earliest=sy[st + 1], deadline=sy[st + 1] + 70, prio=4, spacing=sp_kv)
                    s.add_xfer('kv', Vv[n0 + st + 4], earliest=sy[st + 1], deadline=sy[st + 1] + 75, prio=4, spacing=sp_kv)
            if r == 0 and o.get('wt') == 1:
                s.touch_item('tch', sWq, 21, None, 256, '', slot0[1], slot0[4], "wq1t")
                s.touch_item('tch', sWo, 23, None, 0, '', slot0[4], slot0[7], "wot")
            if o.get('wt') == 2:
                if r == 0: s.touch_item('tch', sWq, 21, None, 256, o.get('wtf', 'nt'), slot0[68], slot0[69], "wq1t")
                else: s.touch_item('tch', sWo, 23, None, 0, o.get('wtf', 'nt'), slot0[68], slot0[69], "wot0")
            ep = []
            for qb in range(5):
                ep.append(valu(f"v_accvgpr_read_b32 v{SBUF+2*qb}, a{aL+4*qb}", [V(SBUF + 2*qb)], [A(aL + 4*qb)]))
            for qb in range(5):
                ep.append(trans(f"v_rcp_f32 v{SBUF+2*qb}, v{SBUF+2*qb}", [V(SBUF + 2*qb)], [V(SBUF + 2*qb)]))
            for qb in range(5):
                for u in range(4):
                    src = OACC + qb * 32 + u * 8
                    dst = OACC + qb * 16 + u * 4
                    for j in range(4):
                        ep.append(valu(f"v_pk_mul_f32 v[{src+2*j}:{src+2*j+1}], v[{src+2*j}:{src+2*j+1}], v[{SBUF+2*qb}:{SBUF+2*qb+1}] op_sel_hi:[1,0]",
                                       [V(src + 2*j, 2)], [V(src + 2*j, 2), V(SBUF + 2*qb)]))
                    for j in range(4):
                        ep.append(valu(f"v_cvt_pk_bf16_f32 v{dst+j}, v{src+2*j}, v{src+2*j+1}", [V(dst + j)], [V(src + 2*j, 2)]))
                    if r == 0:
                        for j in range(4):
                            ep.append(valu(f"v_accvgpr_write_b32 a{aST+qb*16+u*4+j}, v{dst+j}", [A(aST + qb*16 + u*4 + j)], [V(dst + j)]))
            ea, eb = s.valu_block(ep)
            if o.get('dump') == f'O{r}':
                s.finish_dump('v', OACC, 80); return
            s.next_presync = ea + 20
            s.pre_free = [K[n0 + 15], Vv[n0 + 15]]
            tl = slot0[68]
            if r == 0:
                s.add_xfer('stage', X[1][0], earliest=tl, deadline=sy[14], prio=0, spacing=sp_st)
                s.add_xfer('stage', Wq[1][0], earliest=sy[14], deadline=sy[15], prio=0, spacing=sp_st)
                s.add_xfer('kv', K[17], earliest=sy[14], deadline=sy[15], prio=4, spacing=sp_kv)
                s.add_xfer('stage', Wq[1][1], earliest=sy[15], deadline=aend - 30, prio=0, spacing=sp_st)
                s.add_xfer('stage', Wq[1][2], earliest=sy[15], deadline=aend, prio=0, spacing=sp_st)
                s.add_xfer('stage', X[1][1], earliest=ea + 20, deadline=ea + 60, prio=0, spacing=1)
                s.add_xfer('stage', Wq[1][3], earliest=ea + 20, deadline=ea + 100, prio=0, spacing=1)
            else:
                s.add_xfer('stage', Wo[0], earliest=tl, deadline=sy[15], prio=0, spacing=sp_st)
                s.add_xfer('stage', Wo[1], earliest=tl, deadline=sy[15], prio=0, spacing=sp_st)
                s.add_xfer('stage', Wo[2], earliest=ea + 20, deadline=ea + 60, prio=0, spacing=1)
                s.add_xfer('stage', Wo[3], earliest=ea + 20, deadline=ea + 100, prio=0, spacing=1)
                s.pre_free += [K[32], Vv[32]]
        p_pre = s.next_presync
        p0 = sc.n()
        wof = lambda j, nt: V((64 if j % 2 == 0 else 240) + 4 * nt, 4)
        def bfrag(ks, qb):
            grp, u = divmod(ks, 4)
            if grp == 0: return V(OACC + qb * 16 + u * 4, 4)
            if grp == 1: return A(aST + qb * 16 + u * 4, 4)
            idx = (grp - 2) * 20 + qb * 4 + u
            return A(idx * 4, 4) if idx < 36 else A(aL + (idx - 36) * 4, 4)
        pacc = lambda nt, qb: V(160 + (qb * 4 + nt) * 4, 4)
        pk = lambda qb, up: V(24 + (qb * 2 + up) * 4, 4)
        s.sync_at(p_pre, [Wo[0], K[32], Vv[32]], s.pre_free)
        def take_ex():
            s.al.take_range(0, 81920, EXA); EXA.addr = 0; return 0
        sc.post(p_pre, take_ex)
        s.setbase(p_pre, sLo, 0); s.setbase(p_pre, 40, 0)
        def rd_wo(j, e0, dl):
            x = Wo[j // 2]
            for nt in range(4):
                for rd in (0, 1):
                    s.ds_item('rdT', "ds_read_b64_tr_b16", wof(j, nt).sub(2 * rd, 2), s.aT[nt], x, (j & 1) * 4096 + rd * 2048, WBASE, e0, dl, name=f"wo{j}")
        rd_wo(0, p_pre, p0 - 1)
        ppos = {}; kst = {}
        for j in range(65):
            ch, ks = divmod(j, 16)
            kst[j] = sc.n()
            if j == 64: break
            for qb in range(5):
                for nt in range(4):
                    acc = pacc(nt, qb)
                    ppos[(j, nt, qb)] = sc.add(mfma(acc, wof(j, nt), bfrag(ks, qb), acc if ks else 0))
        pend = sc.n() - 1
        PM = o.get('pmark', 13)
        for c in range(4): s.mark(kst[PM + 16 * c] - 1, "P", {sOwn: 128, sOth: 128, sLo: 10240, 40: 128} if c < 3 else {})
        for j in range(63):
            if j % 2 == 1:
                m = (j + 1) // 2
                s.sync_at(kst[j], [Wo[m]], [Wo[m - 1]])
                if m + 3 < 36 and j < PM + 48: s.add_xfer('stage', Wo[m + 3], earliest=kst[j], deadline=kst[j] + 30, prio=0, spacing=sp_st)
            rd_wo(j + 1, kst[j], kst[j] + 12)
        if o.get('wt') == 2:
            s.touch_item('tch', sWo, 23, None, 128, o.get('wtf', 'nt'), kst[1], kst[2], "wot1")
            for c in range(3):
                s.touch_item('tch', sWo, 23, 40, 128 * (c + 2), o.get('wtf', 'nt'), kst[PM + 16 * c] + 60, kst[PM + 16 * c] + 80, "wot")
        EXA.nreads = 0
        def exw(rnd, e0, dl):
            L = []
            for qb in range(5):
                for u in range(4):
                    src = bfrag(rnd * 4 + u, qb)
                    ins = Ins(f"ds_write_b128 v{vLinW}, {src} offset:{(qb*4+u)*1024}", 'ds_w', rd=[f"v{vLinW}"] + src.regs())
                    L.append(sc.item('ex', simple(ins, earliest=e0, deadline=dl, prio=3, name=f"exw{rnd}")))
            return L
        def exr(rnd, e0, dl):
            L = []
            for u in range(4):
                for qb in range(5):
                    dst = bfrag(8 + rnd * 4 + u, qb)
                    ins = Ins(f"ds_read_b128 {dst}, v{vLinR} offset:{(qb*4+u)*1024}", 'ds_r', rd=[f"v{vLinR}"], wr=dst.regs())
                    L.append(sc.item('ex', simple(ins, earliest=e0, deadline=dl, prio=3, name=f"exr{rnd}")))
            return L
        def bar_after(idx, items):
            def fn():
                for it in items: assert it.ins is not None, (it.name, "not issued before barrier")
                n = 0
                if s.em.wait(s.em.lgkm_needed([it.ins for it in items]), None): n += 1
                s.em.raw(Ins("s_barrier", 'barrier')); return n + 1
            sc.post(idx, fn)
        w0 = exw(0, p0, kst[3] - 2); bar_after(kst[3] + 4, w0)
        r0 = exr(0, kst[3] + 4, kst[5] - 2); bar_after(kst[5] + 4, r0)
        w1 = exw(1, kst[5] + 4, kst[9] - 2); bar_after(kst[9] + 4, w1)
        r1 = exr(1, kst[9] + 4, kst[11])
        def all_ex_done():
            s.em.wait(s.em.lgkm_needed([it.ins for it in r1]), None); return 1
        sc.post(kst[12] - 2, all_ex_done)
        tail = []
        for ch in range(4):
            j = ch * 16 + 15
            for qb in range(5):
                for up in range(2):
                    for h in range(2):
                        nt = 2 * up + h
                        a = pacc(nt, qb); d = pk(qb, up)
                        for jj in range(2):
                            ins = valu(f"v_cvt_pk_bf16_f32 v{d.lo+2*h+jj}, v{a.lo+2*jj}, v{a.lo+2*jj+1}", [V(d.lo + 2*h + jj)], [V(a.lo + 2*jj, 2)])
                            if ch < 3: sc.item('cv', simple(ins, earliest=ppos[(j, nt, qb)] + 2, deadline=ppos[(j + 1, nt, qb)] - 1, prio=1, name=f"pcvt{ch}"))
                            else: tail.append(ins)
                    off = ((ch * 5 + qb) * 2 + up) * 1024
                    mkso = lambda off=off: salu(f"s_add_u32 s37, s{sLo}, 0x{(off - s.bval[sLo]) & 0xffffffff:x}", [S(37)], [S(sLo)])
                    stx = Ins(f"buffer_store_dwordx4 {pk(qb, up)}, v{vSt}, {sWs}, s37 offen {o.get('stflags','')}", 'vst', rd=pk(qb, up).regs() + [f"v{vSt}", 's37'] + sWs.regs())
                    if ch < 3:
                        e0 = kst[j + 1] + 20 + (qb * 2 + up) * o.get('sp_store', 16)
                        sc.item('st', Item(lambda mkso=mkso: ('salu', mkso(), True), earliest=e0, deadline=e0 + 10, prio=6, name="sto"))
                        sc.item('st', simple(stx, earliest=e0, deadline=e0 + 12, prio=6, name="st"))
                    else:
                        tail += [mkso, stx]
        s.stamp(pend)
        sc.run()
        for ins in tail: s.em.emit(ins() if callable(ins) else ins)
        s.finish()

    def make_pins(s):
        pins = {}
        groups = {}
        for (gname, idx) in s.marks: groups.setdefault(gname, []).append(idx)
        for gname, m in groups.items():
            n = len(m) - 1; L = m[1] - m[0]
            assert all(m[j + 1] - m[j] == L for j in range(n))
            for k, items in s.sc.streams.items():
                T = [i for i, it in enumerate(items) if m[n - 1] <= it.gap < m[n]]
                c = len(T)
                if c == 0:
                    inside = [i for i, it in enumerate(items) if m[0] <= it.gap < m[n]]
                    for i in inside: pins[(k, i)] = (None, m[0] - 1)
                    continue
                for j in range(n):
                    for i in T:
                        pins[(k, i - (n - 1 - j) * c)] = (items[i].gap - (n - 1 - j) * L, items[i].gap - (n - 1 - j) * L)
                first = T[0] - (n - 1) * c
                for i in range(first - 1, -1, -1):
                    if items[i].gap < m[0] - 60: break
                    if (k, i) not in pins: pins[(k, i)] = (None, m[0] - 1)
                if T[-1] + 1 < len(items) and (k, T[-1] + 1) not in pins: pins[(k, T[-1] + 1)] = (m[n], None)
        return pins

    def roll(s):
        out = s.em.out
        groups = {}
        for i, ins in enumerate(out):
            if ins.kind == 'comment' and ins.tag and ins.tag[0] == 'mark': groups.setdefault(ins.tag[1], []).append(i)
        def split(seg):
            body = []; waits = {}
            for x in seg:
                if x.kind == 'wait':
                    w = waits.setdefault(len(body), {})
                    for nm, v in re.findall(r"(\w+)\((\d+)\)", x.text): w[nm] = min(w.get(nm, 99), int(v))
                else: body.append(x)
            return body, waits
        edits = []
        for gname, idx in groups.items():
            segs = [split(out[idx[j]:idx[j + 1]]) for j in range(len(idx) - 1)]
            txt = [[x.text for x in b] for b, w in segs]
            best = (0, 1); j = 0
            while j < len(segs):
                k = j + 1
                while k < len(segs) and txt[k] == txt[j]: k += 1
                if k - j > best[1]: best = (j, k - j)
                j = k
            sys.stderr.write(f"roll {gname}: {len(segs)} periods, lens {[len(x) for x in txt]}, identical run start {best[0]} x{best[1]}\n")
            if best[1] < len(segs) and s.o.get('rolldiff'):
                import difflib
                for j in range(len(segs) - 1):
                    d = [l for l in difflib.unified_diff(txt[j], txt[j + 1], lineterm='', n=0)]
                    if d: sys.stderr.write(f"  diff {j}->{j+1} ({len(d)} lines):\n" + "\n".join(d[:30]) + "\n")
            if best[1] >= 2:
                body = segs[best[0]][0]; mw = {}
                last = segs[best[0] + best[1] - 1][1]
                for j in range(best[0], best[0] + best[1]):
                    for p, w in segs[j][1].items():
                        for nm, v in w.items(): mw.setdefault(p, {})[nm] = min(mw.get(p, {}).get(nm, 99), v)
                for p, w in sorted(mw.items()):
                    if w != last.get(p): sys.stderr.write(f"   merged wait at {p}: {w} (steady {last.get(p)})\n")
                new = []
                for p in range(len(body) + 1):
                    if p in mw: new.append(Ins("s_waitcnt " + " ".join(f"{nm}({v})" for nm, v in sorted(mw[p].items(), reverse=True)), 'wait'))
                    if p < len(body): new.append(body[p])
                edits.append((idx[best[0]], idx[best[0] + best[1]], new, best[1], gname))
        for (a, c, new, n, gname) in sorted(edits, key=lambda e: -e[0]):
            pre = [salu(f"s_mov_b32 s{sCnt}, {n}"), Ins(f"L_{gname}:", 'label')]
            post = [salu(f"s_sub_u32 s{sCnt}, s{sCnt}, 1"), salu(f"s_cmp_lg_u32 s{sCnt}, 0"), Ins(f"s_cbranch_scc1 L_{gname}", 'salu')]
            s.em.out = s.em.out[:a] + pre + new + post + s.em.out[c:]

    def finish_dump(s, kind, lo, n):
        s.sc.run()
        e = s.em.emit
        for j in range(n // 4):
            e(salu(f"s_mov_b32 s37, 0x{j*1024:x}", [S(37)]))
            e(Ins(f"buffer_store_dwordx4 {Reg(kind, lo + 4*j, 4)}, v{vSt}, {sWs}, s37 offen", 'vst', rd=Reg(kind, lo + 4*j, 4).regs() + [f"v{vSt}", 's37']))
        s.finish()

    def finish(s):
        e = s.em
        if s.o.get('stamps'):
            k = s.stamps
            e.raw(Ins(f"s_waitcnt vmcnt(0)", 'wait'))
            e.raw(Ins(f"s_memtime s[{50+2*k}:{51+2*k}]", 'salu'))
            e.raw(Ins(f"s_memrealtime s[92:93]", 'salu'))
            e.raw(Ins("s_waitcnt lgkmcnt(0)", 'wait'))
            e.raw(salu(f"s_lshl_b32 s40, s2, 2")); e.raw(salu(f"s_add_u32 s40, s40, s{sWave}")); e.raw(salu("s_lshl_b32 s40, s40, 6"))
            e.raw(salu("s_add_u32 s24, s88, 0x4000000")); e.raw(salu("s_addc_u32 s25, s89, 0")); e.raw(salu("s_mov_b32 s26, 0x100000"))
            e.raw(salu("s_mov_b64 exec, 1"))
            for j in range(k + 1):
                e.raw(valu(f"v_mov_b32 v21, s{50+2*j}", [V(21)], [])); e.raw(valu(f"v_mov_b32 v22, {4*j}", [V(22)], []))
                e.raw(Ins(f"buffer_store_dword v21, v22, s[24:27], s40 offen", 'vst'))
                e.raw(Ins("s_nop 1", 'nop'))
            for j, sr in ((13, 94), (14, 90), (15, 92)):
                e.raw(valu(f"v_mov_b32 v21, s{sr}", [V(21)], [])); e.raw(valu(f"v_mov_b32 v22, {4*j}", [V(22)], []))
                e.raw(Ins(f"buffer_store_dword v21, v22, s[24:27], s40 offen", 'vst'))
                e.raw(Ins("s_nop 1", 'nop'))
        e.raw(Ins("L_end:", 'label'))
        e.raw(Ins("s_endpgm", 'salu'))

def reduce_kernel(rf=''):
    L = []; a = L.append
    a("s_cmp_ge_u32 s2, 640"); a("s_cbranch_scc1 LR_end")
    a("s_load_dwordx2 s[4:5], s[0:1], 80"); a("s_load_dwordx2 s[8:9], s[0:1], 96")
    a("v_lshrrev_b32 v1, 6, v0"); a("s_nop 0"); a("v_readfirstlane_b32 s12, v1"); a("v_and_b32 v0, 63, v0")
    a("s_lshl_b32 s13, s2, 2"); a("s_nop 2"); a("s_add_u32 s13, s13, s12")
    a(f"s_mul_hi_u32 s14, s13, {(2**32 + 79)//80}")
    a("s_mul_i32 s15, s14, 80"); a("s_sub_u32 s15, s13, s15")
    a(f"s_mul_hi_u32 s16, s15, {(2**32 + 19)//20}")
    a("s_mul_i32 s17, s16, 20"); a("s_sub_u32 s17, s15, s17")
    a(f"s_mul_hi_u32 s18, s17, {(2**32 + 4)//5}")
    a("s_mul_i32 s19, s18, 5"); a("s_sub_u32 s19, s17, s19")
    a("s_mul_i32 s20, s14, 1310720"); a("s_mul_i32 s21, s16, 40960"); a("s_add_u32 s20, s20, s21")
    a("s_lshl_b32 s21, s17, 11"); a("s_add_u32 s20, s20, s21")
    a("v_lshlrev_b32 v1, 4, v0")
    a("s_waitcnt lgkmcnt(0)")
    a("s_mov_b32 s10, 41943040"); a("s_mov_b32 s11, 0x20000")
    a("s_mov_b32 s6, 5242880"); a("s_mov_b32 s7, 0x20000")
    for sl in range(8):
        for up in range(2):
            d = 16 + (sl * 2 + up) * 4
            a(f"buffer_load_dwordx4 v[{d}:{d+3}], v1, s[8:11], s20 offen offset:{up*1024} {rf}")
        if sl < 7: a("s_add_u32 s20, s20, 163840")
    a("s_and_b32 s22, s14, 15"); a("s_lshr_b32 s23, s14, 4")
    a("s_mul_i32 s22, s22, 160"); a("s_and_b32 s24, s16, 1"); a("s_mul_i32 s24, s24, 80"); a("s_add_u32 s22, s22, s24")
    a("s_lshl_b32 s24, s19, 4"); a("s_add_u32 s22, s22, s24"); a("s_lshl_b32 s22, s22, 11")
    a("s_lshl_b32 s23, s23, 10"); a("s_lshr_b32 s24, s16, 1"); a("s_lshl_b32 s24, s24, 9"); a("s_add_u32 s23, s23, s24")
    a("s_lshl_b32 s24, s18, 7"); a("s_add_u32 s23, s23, s24"); a("s_add_u32 s22, s22, s23")
    a("v_and_b32 v2, 15, v0"); a("v_lshlrev_b32 v2, 11, v2"); a("v_lshrrev_b32 v3, 4, v0"); a("v_lshl_add_u32 v2, v3, 3, v2")
    a("s_mov_b32 s25, 0xffff0000")
    for sl in range(8):
        a(f"s_waitcnt vmcnt({14 - 2*sl})")
        for j in range(8):
            src = 16 + sl * 8 + j
            if sl == 0:
                a(f"v_lshlrev_b32 v{80+2*j}, 16, v{src}"); a(f"v_and_b32 v{81+2*j}, s25, v{src}")
            else:
                a(f"v_lshlrev_b32 v4, 16, v{src}"); a(f"v_and_b32 v5, s25, v{src}")
                a(f"v_add_f32 v{80+2*j}, v{80+2*j}, v4"); a(f"v_add_f32 v{81+2*j}, v{81+2*j}, v5")
    for j in range(8):
        a(f"v_cvt_pk_bf16_f32 v{8+j}, v{80+2*j}, v{81+2*j}")
    for t in range(4):
        a(f"buffer_store_dwordx2 v[{8+2*t}:{9+2*t}], v2, s[4:7], s22 offen offset:{32*t}")
    a("LR_end:"); a("s_endpgm")
    return "\n".join(L)

HEADER = open('cdna_kernels/' + NAME + '.s.ref').read().split("; Override launch")[0]

def kd(name, nv, acc):
    return f""".amdhsa_kernel {name}
  .amdhsa_next_free_vgpr {nv}
  .amdhsa_next_free_sgpr 102
  .amdhsa_accum_offset {acc}
  .amdhsa_group_segment_fixed_size 0
  .amdhsa_kernarg_size 104
  .amdhsa_user_sgpr_count 2
  .amdhsa_user_sgpr_kernarg_segment_ptr 1
  .amdhsa_system_sgpr_workgroup_id_x 1
.end_amdhsa_kernel
"""

def make(opts):
    g = Gen(opts)
    g.build()
    if opts.get('roll', 1):
        pins = g.make_pins()
        g = Gen(opts); g.sc.pins = pins
        g.build()
    if opts.get('roll', 1): g.roll()
    if opts.get('drop'):
        dr = opts['drop'].split(',')
        g.em.out = [i for i in g.em.out if i.kind not in dr or 's[24:27], s40' in i.text]
    main = g.em.text()
    kn = NAME + "_kernel"
    launches = f"; @launch kernel={kn} grid=(256,1,1) block=(256,1,1) lds={LDS_BYTES}\n"
    if not opts.get('dump') and not opts.get('noreduce'):
        launches += f"; @launch kernel=reduce_kernel grid=(640,1,1) block=(256,1,1) lds=0\n"
    t = HEADER + launches + '.amdgcn_target "amdgcn-amd-amdhsa--gfx950"\n.text\n'
    t += f".globl {kn}\n.p2align 8\n.type {kn},@function\n{kn}:\n" + main + "\n"
    t += ".globl reduce_kernel\n.p2align 8\n.type reduce_kernel,@function\nreduce_kernel:\n" + reduce_kernel(opts.get('rflags', '')) + "\n"
    t += '.section .rodata,"a"\n.p2align 6\n' + kd(kn, 512, 256) + ".p2align 6\n" + kd("reduce_kernel", 96, 96)
    n = {}
    for i in g.em.out: n[i.kind] = n.get(i.kind, 0) + 1
    sys.stderr.write(f"instr counts {n} overflow units {g.sc.overflow} nops {g.em.nnop}\n")
    return t, g

if __name__ == "__main__":
    opts = {}
    out = sys.argv[1]
    for kv in sys.argv[2:]:
        k, v = kv.split("=", 1)
        opts[k] = int(v) if v.lstrip('-').isdigit() else v
    t, g = make(opts)
    open(out, "w").write(t)
```

```python
import re

def R(kind, lo, n=1):
    return [f"{kind}{lo+i}" for i in range(n)]
def rng(kind, lo, n):
    return f"{kind}{lo}" if n == 1 else f"{kind}[{lo}:{lo+n-1}]"

class Reg:
    def __init__(s, kind, lo, n=1): s.kind, s.lo, s.n = kind, lo, n
    def __str__(s): return rng(s.kind, s.lo, s.n)
    def regs(s): return R(s.kind, s.lo, s.n)
    def sub(s, off, n=1): return Reg(s.kind, s.lo + off, n)
def V(lo, n=1): return Reg('v', lo, n)
def A(lo, n=1): return Reg('a', lo, n)
def S(lo, n=1): return Reg('s', lo, n)

class Ins:

    def __init__(s, text, kind, rd=(), wr=(), cread=(), tag=None, states=1):
        s.text = text; s.kind = kind
        s.rd = set(rd); s.wr = set(wr); s.cread = set(cread)
        s.tag = tag; s.pos = None; s.states = states; s.tag_gap = -100
    def __repr__(s): return s.text

def mfma(d, a, b, c):
    cr = c.regs() if isinstance(c, Reg) else []
    return Ins(f"v_mfma_f32_16x16x32_bf16 {d}, {a}, {b}, {c}", 'mfma', rd=a.regs() + b.regs() + cr, wr=d.regs(), cread=cr)
def valu(text, wr, rd):
    f = lambda L: [r for x in L for r in (x.regs() if isinstance(x, Reg) else [x])]
    return Ins(text, 'valu', rd=f(rd), wr=f(wr))
def trans(text, wr, rd):
    i = valu(text, wr, rd); i.kind = 'trans'; return i
def salu(text, wr=(), rd=()):
    f = lambda L: [r for x in L for r in (x.regs() if isinstance(x, Reg) else [x])]
    return Ins(text, 'salu', rd=f(rd), wr=f(wr))

VEC = ('valu', 'trans')
MEMV = ('ds_r', 'ds_w', 'dma', 'vld', 'vst')

class Emitter:
    def __init__(s):
        s.out = []
        s.lgkm = []
        s.vm = []
        s.pend = {}
        s.nstates = 0
        s.hist = []
        s.nnop = 0
    def need_states(s, ins):
        need = 0
        for (st, p) in reversed(s.hist):
            d = s.nstates - st
            if d >= 12: break
            req = 0
            if p.kind == 'mfma':
                if ins.kind == 'mfma':
                    ab = ins.rd - ins.cread
                    if p.wr & ab: req = 8
                    elif p.wr & ins.cread:
                        req = 0 if ins.cread == p.wr else 6
                elif ins.kind in VEC:
                    if p.wr & (ins.rd | ins.wr): req = 8
                    if p.cread & ins.wr: req = max(req, 3)
                elif ins.kind in MEMV:
                    if p.wr & (ins.rd | ins.wr): req = 8
            elif p.kind in VEC:
                if ins.kind == 'mfma' and (p.wr & ins.rd): req = 2
                if p.kind == 'trans' and ins.kind == 'valu' and (p.wr & ins.rd): req = max(req, 1)
                if ins.kind in VEC and 'permlane' in ins.text and (p.wr & ins.rd): req = max(req, 2)
                if ins.kind in VEC and 'dpp' in ins.text and (p.wr & ins.rd): req = max(req, 2)
                if ins.kind in VEC and ('readfirstlane' in ins.text or 'readlane' in ins.text) and (p.wr & ins.rd): req = max(req, 1)
                sw = {r for r in p.wr if r[0] == 's' or r == 'vcc'}
                if sw:
                    if ins.kind in VEC and (sw & ins.rd): req = max(req, 2)
                    if ins.kind in MEMV and (sw & ins.rd): req = max(req, 5)
                    if ins.kind == 'salu' and (sw & ins.rd): req = max(req, 4)
            elif p.kind == 'salu':
                if 'm0' in p.wr and ins.kind == 'dma': req = 1
            elif p.kind == 'vst' or p.kind == 'ds_w':
                if ins.kind in VEC and (p.rd & ins.wr): req = 2
                elif (p.rd & ins.wr): req = 1
            need = max(need, req - d)
        return need
    def raw(s, ins):
        ins.pos = len(s.out)
        s.out.append(ins)
        if ins.kind in ('label', 'comment'): return ins
        s.nstates += ins.states
        s.hist.append((s.nstates, ins))
        if len(s.hist) > 40: s.hist.pop(0)
        if ins.kind in ('ds_r', 'ds_w'): s.lgkm.append(ins)
        if ins.kind in ('dma', 'vld', 'vst'): s.vm.append(ins)
        if ins.kind in ('ds_r', 'vld'):
            for r in ins.wr: s.pend[r] = ins
        return ins
    def nop(s, n):
        while n > 0:
            k = min(n, 16)
            s.raw(Ins(f"s_nop {k-1}", 'nop', states=k)); n -= k; s.nnop += 1
    def lgkm_needed(s, inss):
        idx = -1
        for i, o in enumerate(s.lgkm):
            if any(o is x for x in inss): idx = i
        if idx < 0: return None
        return min(len(s.lgkm) - 1 - idx, 15)
    def vm_needed(s, inss):
        idx = -1
        for i, o in enumerate(s.vm):
            if any(o is x for x in inss): idx = i
        if idx < 0: return None
        return min(len(s.vm) - 1 - idx, 63)
    def wait(s, lg=None, vm=None):
        if lg is None and vm is None: return False
        t = []
        if vm is not None:
            t.append(f"vmcnt({vm})")
            done = s.vm[:len(s.vm) - vm]; s.vm = s.vm[len(s.vm) - vm:]
            for o in done:
                for r in o.wr:
                    if s.pend.get(r) is o: del s.pend[r]
        if lg is not None:
            t.append(f"lgkmcnt({lg})")
            done = s.lgkm[:len(s.lgkm) - lg]; s.lgkm = s.lgkm[len(s.lgkm) - lg:]
            for o in done:
                for r in o.wr:
                    if s.pend.get(r) is o: del s.pend[r]
        s.raw(Ins("s_waitcnt " + " ".join(t), 'wait'))
        return True
    def deps_wait(s, ins):
        ds = [s.pend[r] for r in (ins.rd | ins.wr) if r in s.pend and s.pend[r].kind == 'ds_r']
        vl = [s.pend[r] for r in (ins.rd | ins.wr) if r in s.pend and s.pend[r].kind == 'vld']
        return s.lgkm_needed(ds), s.vm_needed(vl)
    def emit(s, ins):
        if ins.kind not in ('label', 'comment', 'wait', 'nop', 'barrier'):
            lg, vm = s.deps_wait(ins)
            s.wait(lg, vm)
            n = s.need_states(ins)
            if n > 0: s.nop(n)
        return s.raw(ins)
    def text(s):
        L = []
        for i in s.out:
            L.append(i.text)
        return "\n".join(L)

UNITS = {'ds_r': 1, 'valu': 1, 'trans': 2, 'dma': 2, 'vld': 2, 'ds_w': 2, 'vst': 2, 'salu': 0, 'skip': 0}

class Item:
    def __init__(s, peek, earliest=-1, deadline=10**9, prio=0, name="", commit=None, areg=None):
        s.peek = peek; s.earliest = earliest; s.deadline = deadline
        s.prio = prio; s.name = name; s.gap = None; s.ins = None; s.commit = commit
        s.pinned = False
        s.areg = areg

def simple(ins, **kw):
    return Item(lambda: (ins.kind, ins, True), **kw)

class BB:
    def __init__(s, ins, cap=2):
        s.ins = ins; s.cap = cap; s.post = []

class Sched:
    def __init__(s, em):
        s.em = em
        s.bb = []
        s.streams = {}
        s.overflow = 0
        s.g = -1
        s.ovf_log = []
        s.ldspace = 0; s.dsg = {}; s.pins = {}; s.markidx = []; s.late = []
    def add(s, ins, cap=2):
        s.bb.append(BB(ins, cap)); return len(s.bb) - 1
    def n(s): return len(s.bb)
    def item(s, stream, it):
        s.streams.setdefault(stream, []).append(it); return it
    def post(s, idx, fn):
        s.bb[idx].post.append(fn)
    def run(s):
        em = s.em
        for (k, i), (lo, hi) in s.pins.items():
            it = s.streams[k][i]
            if lo is not None:
                it.earliest = max(it.earliest, lo)
            if hi is not None:
                it.deadline = min(it.deadline, hi) if lo is None else hi
                it.pinned = lo is not None
        for k, L in s.streams.items():
            for i in range(len(L) - 2, -1, -1):
                if L[i + 1].deadline < L[i].deadline: L[i].deadline = max(L[i + 1].deadline, L[i].earliest)
        heads = {k: 0 for k in s.streams}
        nb = len(s.bb)
        for g in range(nb):
            b = s.bb[g]
            s.g = g
            if b.ins is not None:
                em.emit(b.ins)
            nscalar = 0
            for fn in b.post:
                nscalar += (fn() or 0)
            if g + 1 < nb and s.bb[g + 1].ins is not None:
                lg, vm = em.deps_wait(s.bb[g + 1].ins)
                if lg is not None:
                    for k in (2, 3, 4):
                        if g + k < nb and s.bb[g + k].ins is not None:
                            l2, _ = em.deps_wait(s.bb[g + k].ins)
                            if l2 is not None and l2 < lg:
                                o = em.lgkm[len(em.lgkm) - 1 - l2]
                                if g - o.tag_gap >= 8: lg = l2
                if em.wait(lg, vm): nscalar += 1
            used = max(0, nscalar - 1)
            cap = b.cap
            valu_seen = False
            vec_seen = False
            def try_place(it, forced):
                nonlocal used, nscalar, valu_seen, vec_seen
                if any(x.pos is None for x in getattr(it, 'after', ())): return None
                r = it.peek()
                if r is None: return None
                kind, ins, consume = r
                u = UNITS[kind]
                if kind == 'skip':
                    it.gap = g
                    if it.commit: it.commit(None, True)
                    return 'consumed'
                if kind == 'salu':
                    cost = 0 if (nscalar == 0 and not vec_seen and cap > 0) else 1
                    if not forced and (vec_seen or used + cost > cap): return None
                else:
                    cost = u
                    if not forced:
                        if kind in MEMV and valu_seen: return None
                        if used + cost > cap: return None
                        if kind == 'ds_r' and s.ldspace and s.dsg.get(g, 0) + s.dsg.get(g - 1, 0) >= s.ldspace and it.deadline > g + 1: return None
                if not forced:
                    if em.need_states(ins) > 0: return None
                    lg, vm = em.deps_wait(ins)
                    if lg is not None or vm is not None: return None
                em.emit(ins)
                if kind == 'ds_r': s.dsg[g] = s.dsg.get(g, 0) + 1
                ins.tag_gap = g
                used += cost
                if kind == 'salu': nscalar += 1
                else:
                    vec_seen = True
                    if kind in VEC: valu_seen = True
                if it.commit: it.commit(ins, consume)
                if consume:
                    it.ins = ins; it.gap = g
                    if g > it.deadline: s.late.append((it.name, g, it.deadline))
                    return 'consumed'
                return 'partial'
            progress = True
            while progress:
                progress = False
                cands = []
                for k, L in s.streams.items():
                    h = heads[k]
                    if h >= len(L): continue
                    it = L[h]
                    if it.earliest > g: continue
                    r = it.peek()
                    if r is None: continue
                    cands.append((it.deadline, it.prio, k, it, r[0]))
                cands.sort(key=lambda x: (x[0], x[1]))
                order = [c for c in cands if c[4] in ('skip', 'salu')]
                rest = [c for c in cands if c[4] not in ('skip', 'salu')]
                if rest and rest[0][4] == 'valu' and cap - used >= 2:
                    rest = [c for c in rest if c[4] == 'ds_r'][:1] + rest
                order += rest
                for (dl, pr, k, it, kd) in order:
                    r = try_place(it, dl <= g)
                    if r is not None:
                        if r == 'consumed': heads[k] += 1
                        progress = True
                        break
            if used < cap:
                for k, L in s.streams.items():
                    seen = set()
                    for it in L[heads[k]:heads[k] + 24]:
                        if it.areg is None: continue
                        if it.earliest > g + 30: break
                        if any(g < m <= it.earliest for m in s.markidx): break
                        ar, tgt = it.areg
                        if id(ar) in seen: continue
                        seen.add(id(ar))
                        t = tgt()
                        if t is None: continue
                        if not ar.reach(t) and used < cap:
                            ins = ar.rebase_ins(t)
                            if em.need_states(ins) == 0:
                                em.emit(ins); ar.rebased(t); used += 1
            if used > cap and cap > 0:
                s.overflow += used - cap; s.ovf_log.append((g, used - cap))
        hard = [x for x in s.late if x[0].startswith(('exp', 'cvt', 'pcvt', 'unp', 'negm'))]
        if hard: raise RuntimeError(f"hard deadline missed: {hard[:10]}")
        s.softlate = [x for x in s.late if x not in hard]
        for k, L in s.streams.items():
            if heads[k] < len(L):
                raise RuntimeError(f"stream {k}: {len(L)-heads[k]} items unscheduled; first {L[heads[k]].name} earliest {L[heads[k]].earliest}")

class AddrReg:
    def __init__(s, v, base=0):
        s.v = v; s.base = base
    def reach(s, t): return s.base == t[1]
    def rebase_ins(s, t):
        d = (t[1] - s.base) & 0xffffffff
        return valu(f"v_add_u32 v{s.v}, 0x{d:x}, v{s.v}", [V(s.v)], [V(s.v)])
    def rebased(s, t): s.base = t[1]
```

```python
import sys, struct, re
from core import *

NAME = "concat_heads__mha_block_cached__mha_block_cached__near_ridge"
LDS_BYTES = 163840
BLK = 16384
RPK = [0, 2, 4, 6]; RPV = [1, 3, 5, 7]
WQB = [3, 4, 5, 6]; WOB = [8, 9, 6, 7]
WBASE = 98304; UBASE = 49152
XAREA = [143360, 122880]; XBASE = 122880

sK, sV, sX, sWq, sWo, sWs = S(4,4), S(8,4), S(12,4), S(16,4), S(20,4), S(24,4)
sW, sXw, sOff, sOwn, sOth = 28, 29, 30, 31, 32
sWave, sP, sI, sRedo = 33, 34, 35, 36
sC = S(38, 2)
vT = [1,2,3,4]; vD = [5,6,7,8]; vU = [9,10,11,12]
vOffK, vOffV, vOffX, vOffWq, vOffWo = 13, 14, 15, 16, 17
vLinW, vLinR, vSt = 18, 19, 20
vX = [76, 77]; vDummy = 78; vZero = 79
L_LO = (127 - 40) << 23; L_HI = (127 + 40) << 23
NEGM, SBUF, PBUF, OACC = 24, 44, 240, 80
NSB = 4
sKV, sLq, sLx, sLo, sCnt = 42, 43, 48, 49, 96
sRot, sT, sHi3 = 98, 99, 97
aQ, aKF, aVF, aST, aL, aONE = 0, 80, 112, 144, 224, 244

def f32(x): return struct.unpack('<I', struct.pack('<f', x))[0]
CSCALE = 1.4426950408889634 * (128 ** -0.5)

class Alloc:
    def __init__(s):
        s.gr = [None] * 40
        s.order = []
    def free_blocks(s):
        return [b for b in range(10) if all(s.gr[4*b+j] is None for j in range(4))]
    def take_block(s, b, who):
        for j in range(4):
            assert s.gr[4*b+j] is None
            s.gr[4*b+j] = who
    def range_free(s, lo, n): return all(s.gr[j] is None for j in range(lo // 4096, (lo + n) // 4096))
    def take_range(s, lo, n, who):
        for j in range(lo // 4096, (lo + n) // 4096):
            assert s.gr[j] is None
            s.gr[j] = who
    def release(s, who):
        for j in range(40):
            if s.gr[j] is who: s.gr[j] = None
    def held(s, cls): return len({id(x) for x in s.gr if isinstance(x, Xfer) and x.cls == cls})

class Xfer:
    def __init__(s, cls, name, pieces, allowed=None, fixed=None):
        s.cls = cls; s.name = name; s.pieces = pieces
        s.allowed = allowed; s.fixed = fixed
        s.addr = None; s.ins = []; s.reads = []; s.issued = 0

class Gen:
    def __init__(s, opts, var):
        s.o = opts; s.var = var; s.pf = var
        s.em = Emitter()
        s.sc = Sched(s.em)
        s.al = Alloc()
        s.sc.ldspace = opts.get('ldspace', 2)
        s.aT = [AddrReg(v) for v in vT]
        s.aD = [AddrReg(v) for v in vD]
        s.aU = [AddrReg(v, base=UBASE) for v in vU]
        s.aX = [AddrReg(v, base=XBASE) for v in vX]
        s.bval = {}
        s.marks = []
        s.fb = {}
        s.kvpair = 0
        s.m0own = None
        s.soff_cur = None
        s.last_dma_gap = {}
        s.gate = {}
        s.stamps = 0
    def try_alloc(s, x, dry):
        if x.addr is not None: return True
        if x.cls in s.gate and not s.gate[x.cls](x): return False
        if x.fixed is not None:
            lo, n = x.fixed
            if not s.al.range_free(lo, n): return False
            if not dry: s.al.take_range(lo, n, x); x.addr = lo
            return True
        fb = [b for b in s.al.free_blocks() if x.allowed is None or b in x.allowed(x)]
        if not fb: return False
        if not dry:
            s.al.take_block(fb[0], x); x.addr = fb[0] * BLK
        return True
    def add_xfer(s, stream, x, earliest=-1, deadline=10**9, spacing=0, prio=5):
        for pi, (srd, voff, sbase, sconst, imm, ldsoff, m0b, flags) in enumerate(x.pieces):
            def mk(pi=pi, srd=srd, voff=voff, sbase=sbase, sconst=sconst, imm=imm, ldsoff=ldsoff, m0b=m0b, flags=flags):
                st = {}
                def peek_m0():
                    if s.m0own is not None: return None
                    if s.sc.g - s.last_dma_gap.get(stream, -999) < (spacing if not (s.o.get('pair') and x.cls == 'kv') else (2 * spacing - 2 if pi % 2 == 0 else 1)) - 1: return None
                    if not s.try_alloc(x, True): return None
                    a = x.addr
                    if a is None:
                        if x.fixed is not None: a = x.fixed[0]
                        else: a = [b for b in s.al.free_blocks() if x.allowed is None or b in x.allowed(x)][0] * BLK
                    val = (a + ldsoff - imm - s.bval.get(m0b, 0)) & 0xffffffff
                    return ('salu', salu(f"s_add_u32 m0, s{m0b}, 0x{val:x}", ['m0'], [S(m0b)]), True)
                def commit_m0(ins, c):
                    s.try_alloc(x, False); s.m0own = stream
                    for it in st['next']:
                        if not it.pinned: it.deadline = min(it.deadline, s.sc.g + (5 if rot else 3))
                rot = (x.cls == 'kv')
                def peek_so():
                    key = (sbase, sconst)
                    if s.soff_cur == key: st['skip'] = True; return ('skip', None, True)
                    st['skip'] = False
                    c = sconst & 0x1ffff if rot else sconst
                    if sbase is None: i = salu(f"s_mov_b32 s{sOff}, 0x{c:x}", [S(sOff)])
                    elif rot: i = salu(f"s_add_u32 s{sOff}, s{sbase}, 0x{(c - s.bval.get(sbase, 0)) & 0x1ffff:x}", [S(sOff)], [S(sbase)])
                    else: i = salu(f"s_add_u32 s{sOff}, s{sbase}, 0x{(c - s.bval.get(sbase, 0)) & 0xffffffff:x}", [S(sOff)], [S(sbase)])
                    return ('salu', i, True)
                def commit_so(ins, c): s.soff_cur = (sbase, sconst)
                def peek_so2():
                    if st['skip']: return ('skip', None, True)
                    return ('salu', salu(f"s_and_b32 s{sOff}, s{sOff}, 0x1ffff", [S(sOff)], [S(sOff)]), True)
                def peek_so3():
                    if st['skip']: return ('skip', None, True)
                    if getattr(x, 'dynhi', False): return ('salu', salu(f"s_add_u32 s{sOff}, s{sOff}, s{sHi3}", [S(sOff)], [S(sOff), S(sHi3)]), True)
                    d = (sconst >> 17) - s.kvpair
                    if d == 0: return ('skip', None, True)
                    return ('salu', salu(f"s_add_u32 s{sOff}, s{sOff}, 0x{d << 17:x}", [S(sOff)], [S(sOff)]), True)
                def peek_dma():
                    t = f"buffer_load_dwordx4 v{voff}, {srd}, s{sOff} offen" + (f" offset:{imm}" if imm else "") + (f" {flags}" if flags else "") + " lds"
                    return ('dma', Ins(t, 'dma', rd=[f"v{voff}", f"s{sOff}", 'm0'] + srd.regs()), True)
                def commit_dma(ins, c):
                    ins.tag = (x, srd, voff, sbase, sconst, imm, ldsoff, m0b, flags)
                    s.m0own = None; x.ins.append(ins); x.issued += 1; s.last_dma_gap[stream] = s.sc.g
                s.sc.item(stream, Item(peek_m0, earliest, deadline, prio, f"{x.name}.m0.{pi}", commit_m0))
                st['next'] = [s.sc.item(stream, Item(peek_so, earliest, deadline, prio, f"{x.name}.so.{pi}", commit_so))]
                if rot:
                    st['next'].append(s.sc.item(stream, Item(peek_so2, earliest, deadline, prio, f"{x.name}.so2.{pi}")))
                    st['next'].append(s.sc.item(stream, Item(peek_so3, earliest, deadline, prio, f"{x.name}.so3.{pi}")))
                st['next'].append(s.sc.item(stream, Item(peek_dma, earliest, deadline, prio, f"{x.name}.dma.{pi}", commit_dma)))
            mk()
    def blk_pieces(s, srd, voff, sbase, c0, rowstep16, cbstep, flags="", sW=sW):
        P = []
        for hi in (0, 1):
            for cb in (0, 1):
                if cbstep < 4096: P.append((srd, voff, sbase, c0 + hi * rowstep16, cb * cbstep, cb * 4096 + hi * 2048, sW, flags))
                else: P.append((srd, voff, sbase, c0 + hi * rowstep16 + cb * cbstep, 0, cb * 4096 + hi * 2048, sW, flags))
        return P
    def xf_K(s, n, m0b=sW): return Xfer('kv', f"K{n}", s.blk_pieces(sK, vOffK, sKV, n * 8192, 4096, 128, s.o.get('kvflags', 'nt'), m0b), fixed=(RPK[n % 4] * BLK, BLK))
    def xf_V(s, n, m0b=sW): return Xfer('kv', f"V{n}", s.blk_pieces(sV, vOffV, sKV, n * 8192, 4096, 128, s.o.get('kvflags', 'nt'), m0b), fixed=(RPV[n % 4] * BLK, BLK))
    def xf_Wq(s, r, k): return Xfer('wq', f"Wq{r}.{k}", s.blk_pieces(sWq, vOffWq, sLq, k * 32 * 8192 + r * 256, 16 * 8192, 128, s.o.get('wqflags', '')), fixed=(WQB[k % 4] * BLK, BLK))
    def xf_X(s, r, c):
        P = [(sX, vOffX, sLx, m * 16384 + (c >> 1) * 256, (c & 1) * 128, m * 2048, sXw, s.o.get('xflags', '')) for m in range(5)]
        return Xfer('x', f"X{r}.{c}", P, fixed=(XAREA[c & 1], 20480))
    def xf_Wo(s, ch, m):
        grp = m // 2; sb = sOwn if grp < 2 else sOth
        hrow = 128 if grp in (0, 2) else 0
        k0 = hrow + (m & 1) * 64
        return Xfer('wo', f"Wo{ch}.{m}", s.blk_pieces(sWo, vOffWo, sb, k0 * 1024 + ch * 128, 16 * 1024, 32 * 1024, s.o.get('woflags', '')), fixed=(WOB[m % 4] * BLK, BLK))
    def xf_WoH(s, r, ch, m):
        sb = sOwn if m < 2 else sOth
        k0 = 128 * r + (m & 1) * 64
        return Xfer('wo', f"WoH{r}.{ch}.{m}", s.blk_pieces(sWo, vOffWo, sb, k0 * 1024 + ch * 128, 16 * 1024, 32 * 1024, s.o.get('woflags', '')), fixed=(WOB[m % 4] * BLK, BLK))
    def mark(s, idx, group, incs):
        def fn():
            if group: s.em.raw(Ins(f"; MARK {group}", 'comment', tag=('mark', group))); s.marks.append((group, idx))
            n = 0
            for sg, d in incs.items():
                if sg == 'hi3':
                    s.em.raw(salu(f"s_add_u32 s{sT}, s{sT}, 0xc000", [S(sT)], [S(sT)])); s.em.raw(salu(f"s_and_b32 s{sHi3}, s{sT}, 0x20000", [S(sHi3)], [S(sT)])); n += 2
                elif sg == 'vx': s.em.emit(valu(f"v_add_u32 v{vOffX}, 0x{d & 0xffffffff:x}, v{vOffX}", [V(vOffX)], [V(vOffX)])); n += 1
                else: s.em.raw(salu(f"s_add_u32 s{sg}, s{sg}, 0x{d & 0xffffffff:x}", [S(sg)], [S(sg)])); n += 1
                s.bval[sg] = s.bval.get(sg, 0) + d
            s.soff_cur = None
            return n
        s.sc.post(idx, fn)
        if group: s.sc.markidx.append(idx)
    def setbase(s, idx, sg, val=0):
        def fn():
            s.em.raw(salu(f"s_mov_b32 s{sg}, 0x{val:x}", [S(sg)])); s.bval[sg] = val; s.soff_cur = None; return 1
        s.sc.post(idx, fn)
    def touch_item(s, stream, srd, voff, sbase, sconst, flags, earliest, deadline, name):
        mk = lambda: salu(f"s_mov_b32 s41, 0x{sconst:x}", [S(41)]) if sbase is None else salu(f"s_add_u32 s41, s{sbase}, 0x{(sconst - s.bval.get(sbase, 0)) & 0xffffffff:x}", [S(41)], [S(sbase)])
        ld = Ins(f"buffer_load_dword v22, v{voff}, {srd}, s41 offen {flags}", 'dma', rd=[f"v{voff}", 's41'] + srd.regs())
        s.sc.item(stream, Item(lambda: ('salu', mk(), True), earliest=earliest, deadline=deadline, prio=7, name=name))
        s.sc.item(stream, simple(ld, earliest=earliest, deadline=deadline + 2, prio=7, name=name))
    def ds_item(s, stream, op, dst, ar, x, off, wb, earliest, deadline, prio=1, name=""):
        tgt = lambda: (x.fixed[0] + off, wb)
        def peek():
            t = tgt()
            assert x.addr is not None, (x.name, "read before alloc")
            if not ar.reach(t): return ('valu', ar.rebase_ins(t), False)
            assert 0 <= t[0] - ar.base <= 65535
            return ('ds_r', Ins(f"{op} {dst}, v{ar.v} offset:{t[0] - ar.base}", 'ds_r', rd=[f"v{ar.v}"], wr=dst.regs()), True)
        def commit(ins, consume):
            if consume: x.reads.append(ins); ins.tag = (ar, ar.base)
            else: ar.rebased(tgt())
        return s.sc.item(stream, Item(peek, earliest, deadline, prio, name, commit, areg=(ar, tgt)))
    def rd_V(s, stream, frag, x, t, e0, dl, name=""):
        wb = (x.fixed[0] // 65536) * 65536
        for rd in (0, 1):
            s.ds_item(stream, "ds_read_b64_tr_b16", frag.sub(2 * rd, 2), s.aT[t & 3], x, (t >> 2) * 4096 + rd * 2048, wb, e0, dl, name=name)
    def rd_Wq(s, stream, frag, x, t, e0, dl, name=""):
        for rd in (0, 1):
            s.ds_item(stream, "ds_read_b64_tr_b16", frag.sub(2 * rd, 2), s.aU[t & 3], x, (t >> 2) * 4096 + rd * 512, UBASE, e0, dl, name=name)
    def rd_K(s, stream, frag, x, kt, u, e0, dl, name=""):
        wb = (x.fixed[0] // 65536) * 65536
        for pc in (0, 1):
            s.ds_item(stream, "ds_read_b64", frag.sub(2 * pc, 2), s.aD[2 * (u & 1) + pc], x, (u >> 1) * 4096 + kt * 2048, wb, e0, dl, name=name)
    def rd_X(s, stream, frag, x, k, qb, e0, dl, name=""):
        s.ds_item(stream, "ds_read_b128", frag, s.aX[k & 1], x, qb * 2048, XBASE, e0, dl, name=name)
    def sync_at(s, idx, need, free):
        def fn():
            n = 0
            for x in need: assert x.issued == len(x.pieces), (x.name, "not issued by sync", s.sc.g)
            vm = s.em.vm_needed([i for x in need for i in x.ins])
            lg = s.em.lgkm_needed([i for x in free for i in x.reads])
            for x in free: assert len(x.reads) == x.nreads, (x.name, len(x.reads), x.nreads, s.sc.g)
            if s.em.wait(lg, vm): n += 1
            s.em.raw(Ins("s_barrier", 'barrier')); n += 1
            for x in free: s.al.release(x)
            return n
        s.sc.post(idx, fn)
    def stamp(s, idx):
        if not s.o.get('stamps'): return
        k = s.stamps; s.stamps += 1
        def fn():
            s.em.raw(Ins(f"s_memtime s[{50+2*k}:{51+2*k}]", 'salu'))
            return 1
        s.sc.post(idx, fn)

    def prologue(s):
        e = s.em.emit
        sa = lambda t, w=(), r=(): e(salu(t, w, r))
        va = lambda t, w, r: e(valu(t, w, r))
        sa("s_cmp_ge_u32 s2, 256"); e(Ins("s_cbranch_scc1 L_end", 'salu'))
        if s.o.get('stamps'):
            e(Ins("s_memtime s[94:95]", 'salu')); e(Ins("s_memrealtime s[90:91]", 'salu'))
        e(Ins("s_load_dwordx16 s[64:79], s[0:1], 0", 'salu'))
        e(Ins("s_load_dwordx8 s[80:87], s[0:1], 64", 'salu'))
        e(Ins("s_load_dwordx2 s[88:89], s[0:1], 96", 'salu'))
        va("v_lshrrev_b32 v21, 6, v0", [V(21)], [V(0)])
        sa("s_and_b32 s40, s2, 7"); sa("s_lshr_b32 s41, s2, 3"); sa("s_lshr_b32 s42, s40, 2"); sa("s_and_b32 s43, s40, 3")
        va(f"v_readfirstlane_b32 s{sWave}, v21", [S(sWave)], [V(21)])
        sa("s_lshr_b32 s44, s41, 1"); sa("s_and_b32 s45, s41, 1")
        sa("s_lshl_b32 s46, s43, 3"); sa("s_lshl_b32 s47, s45, 2"); sa("s_add_u32 s46, s46, s47")
        sa(f"s_lshr_b32 s{sP}, s{sWave}, 1", [S(sP)], [S(sWave)]); sa(f"s_and_b32 s{sI}, s{sWave}, 1")
        sa(f"s_mov_b32 s{sRedo}, 0")
        va("v_and_b32 v0, 63, v0", [V(0)], [V(0)])
        va("v_lshrrev_b32 v21, 5, v0", [V(21)], [V(0)])
        va("v_lshlrev_b32 v21, 10, v21", [V(21)], [V(21)])
        va("v_bfe_u32 v22, v0, 2, 3", [V(22)], [V(0)])
        va("v_lshl_add_u32 v21, v22, 7, v21", [V(21)], [V(22), V(21)])
        va("v_and_b32 v23, 3, v0", [V(23)], [V(0)])
        va("v_lshl_add_u32 v21, v23, 3, v21", [V(21)], [V(23), V(21)])
        sa(f"s_lshl_b32 s48, s{sP}, 13")
        va("v_add_u32 v21, s48, v21", [V(21)], [V(21)])
        va("v_lshrrev_b32 v22, 1, v22", [V(22)], [V(22)])
        for ee in range(4):
            va(f"v_xor_b32 v23, {ee}, v22", [V(23)], [V(22)])
            va(f"v_lshl_add_u32 v{vT[ee]}, v23, 5, v21", [V(vT[ee])], [V(23), V(21)])
        va("v_bfe_u32 v21, v0, 3, 1", [V(21)], [V(0)])
        va("v_lshlrev_b32 v21, 10, v21", [V(21)], [V(21)])
        va("v_and_b32 v22, 7, v0", [V(22)], [V(0)])
        va("v_lshl_add_u32 v21, v22, 7, v21", [V(21)], [V(22), V(21)])
        va("v_bfe_u32 v22, v0, 4, 1", [V(22)], [V(0)])
        va("v_lshl_add_u32 v21, v22, 3, v21", [V(21)], [V(22), V(21)])
        va("v_bfe_u32 v22, v0, 1, 3", [V(22)], [V(0)])
        va("v_lshrrev_b32 v23, 5, v0", [V(23)], [V(0)])
        va("v_xor_b32 v22, v23, v22", [V(22)], [V(23), V(22)])
        for j in range(4):
            va(f"v_xor_b32 v23, {2*j}, v22", [V(23)], [V(22)])
            va(f"v_lshl_add_u32 v23, v23, 4, v21", [V(23)], [V(23), V(21)])
            va(f"v_add_u32 v{vD[j]}, s48, v23", [V(vD[j])], [V(23)])
        va("v_lshrrev_b32 v21, 4, v0", [V(21)], [V(0)])
        va("v_lshlrev_b32 v21, 10, v21", [V(21)], [V(21)])
        va("v_bfe_u32 v22, v0, 2, 2", [V(22)], [V(0)])
        va("v_lshl_add_u32 v21, v22, 7, v21", [V(21)], [V(22), V(21)])
        va("v_and_b32 v23, 3, v0", [V(23)], [V(0)])
        va("v_lshl_add_u32 v21, v23, 3, v21", [V(21)], [V(23), V(21)])
        sa(f"s_add_u32 s49, s48, {UBASE}")
        va("v_add_u32 v21, s49, v21", [V(21)], [V(21)])
        va("v_bfe_u32 v22, v0, 3, 2", [V(22)], [V(0)])
        for ee in range(4):
            va(f"v_xor_b32 v23, {ee}, v22", [V(23)], [V(22)])
            va(f"v_lshl_add_u32 v{vU[ee]}, v23, 5, v21", [V(vU[ee])], [V(23), V(21)])
        va("v_lshrrev_b32 v21, 3, v0", [V(21)], [V(0)])
        va("v_and_b32 v22, 7, v0", [V(22)], [V(0)])
        va("v_lshrrev_b32 v23, 4, v0", [V(23)], [V(0)])
        sa(f"s_lshl_b32 s50, s{sI}, 2")
        va(f"v_add_u32 v{vLinW}, s50, v23", [V(vLinW)], [V(23)])
        va(f"v_xor_b32 v{vLinW}, v22, v{vLinW}", [V(vLinW)], [V(22), V(vLinW)])
        va(f"v_lshlrev_b32 v{vLinW}, 4, v{vLinW}", [V(vLinW)], [V(vLinW)])
        va(f"v_lshlrev_b32 v23, 1, v23", [V(23)], [V(23)])
        va(f"v_xor_b32 v23, v22, v23", [V(23)], [V(22), V(23)])
        va(f"v_lshlrev_b32 v23, 4, v23", [V(23)], [V(23)])
        sa(f"s_lshl_b32 s50, s{sI}, 3")
        va(f"v_add_u32 v22, s50, v21", [V(22)], [V(21)])
        va(f"v_lshl_add_u32 v{vOffK}, v22, 8, v{vLinW}", [V(vOffK)], [V(22), V(vLinW)])
        va(f"v_lshl_add_u32 v{vOffV}, v22, 8, v23", [V(vOffV)], [V(22), V(23)])
        va(f"v_lshl_add_u32 v{vOffWo}, v22, 10, v23", [V(vOffWo)], [V(22), V(23)])
        va(f"v_bfe_u32 v23, v0, 4, 1", [V(23)], [V(0)])
        sa(f"s_lshl_b32 s50, s{sI}, 1")
        va(f"v_add_u32 v23, s50, v23", [V(23)], [V(23)])
        va(f"v_lshlrev_b32 v23, 1, v23", [V(23)], [V(23)])
        va(f"v_and_b32 v21, 7, v0", [V(21)], [V(0)])
        va(f"v_xor_b32 v23, v21, v23", [V(23)], [V(21), V(23)])
        va(f"v_lshlrev_b32 v23, 4, v23", [V(23)], [V(23)])
        va(f"v_lshl_add_u32 v{vOffWq}, v22, 13, v23", [V(vOffWq)], [V(22), V(23)])
        sa(f"s_mul_i32 s50, s{sP}, 80")
        va(f"v_add_u32 v22, s50, v22", [V(22)], [V(22)])
        va(f"v_lshl_add_u32 v{vOffX}, v22, 10, v{vLinW}", [V(vOffX)], [V(22), V(vLinW)])
        va("v_and_b32 v21, 15, v0", [V(21)], [V(0)])
        va("v_lshlrev_b32 v21, 7, v21", [V(21)], [V(21)])
        sa(f"s_mul_i32 s49, s{sI}, 10240"); sa(f"s_add_u32 s49, s49, {XBASE}")
        va("v_add_u32 v21, s49, v21", [V(21)], [V(21)])
        va("v_bfe_u32 v22, v0, 1, 3", [V(22)], [V(0)])
        va("v_lshrrev_b32 v23, 4, v0", [V(23)], [V(0)])
        va("v_xor_b32 v22, v23, v22", [V(22)], [V(23), V(22)])
        va(f"v_lshl_add_u32 v{vX[0]}, v22, 4, v21", [V(vX[0])], [V(22), V(21)])
        va("v_xor_b32 v22, 4, v22", [V(22)], [V(22)])
        va(f"v_lshl_add_u32 v{vX[1]}, v22, 4, v21", [V(vX[1])], [V(22), V(21)])
        va(f"v_lshlrev_b32 v{vSt}, 4, v0", [V(vSt)], [V(0)])
        sa(f"s_lshl_b32 s50, s{sI}, 10"); sa(f"s_add_u32 s{sW}, s48, s50", [S(sW)])
        sa(f"s_mul_i32 s51, s{sP}, 10240"); sa(f"s_add_u32 s{sXw}, s51, s50", [S(sXw)])
        sa(f"s_lshl_b32 s{sOwn}, s{sP}, 18"); sa(f"s_xor_b32 s{sOth}, s{sOwn}, 0x40000")
        sa(f"s_mov_b32 s{sC.lo}, 0x{f32(CSCALE):x}"); sa(f"s_mov_b32 s{sC.lo+1}, 0x{f32(CSCALE):x}")
        e(Ins("s_waitcnt lgkmcnt(0)", 'wait'))
        sa("s_cmp_eq_u32 s42, 0")
        sa("s_cselect_b64 s[12:13], s[64:65], s[74:75]"); sa("s_cselect_b64 s[4:5], s[66:67], s[76:77]")
        sa("s_cselect_b64 s[8:9], s[68:69], s[78:79]"); sa("s_cselect_b64 s[16:17], s[70:71], s[80:81]")
        sa("s_cselect_b64 s[20:21], s[72:73], s[82:83]")
        def add64(lo, off):
            sa(f"s_add_u32 s{lo}, s{lo}, {off}"); sa(f"s_addc_u32 s{lo+1}, s{lo+1}, 0")
        sa("s_mul_i32 s50, s44, 163840"); add64(12, "s50"); sa("s_mov_b32 s14, 163840"); sa("s_mov_b32 s15, 0x20000")
        sa(f"s_lshl_b32 s51, s{sP}, 1"); sa(f"s_add_u32 s51, s46, s51")
        sa("s_lshl_b32 s50, s51, 8"); add64(16, "s50"); sa("s_sub_u32 s18, 0x400000, s50"); sa("s_mov_b32 s19, 0x20000")
        sa("s_lshl_b32 s50, s44, 5"); sa("s_add_u32 s50, s50, s51"); sa("s_lshl_b32 s50, s50, 17")
        add64(4, "s50"); sa("s_mov_b32 s6, 0x40000"); sa("s_mov_b32 s7, 0x20000")
        add64(8, "s50"); sa("s_mov_b32 s10, 0x40000"); sa("s_mov_b32 s11, 0x20000")
        sa("s_lshl_b32 s50, s46, 17"); sa(f"s_lshl_b32 s51, s{sP}, 9"); sa("s_add_u32 s50, s50, s51")
        add64(20, "s50"); sa("s_sub_u32 s22, 0x80000, s51"); sa("s_mov_b32 s23, 0x20000")
        sa("s_lshl_b32 s50, s42, 4"); sa("s_add_u32 s50, s50, s44"); sa("s_lshl_b32 s50, s50, 3")
        sa("s_lshl_b32 s51, s43, 1"); sa("s_add_u32 s50, s50, s51"); sa("s_add_u32 s50, s50, s45")
        sa("s_mul_i32 s50, s50, 163840"); sa(f"s_mul_i32 s51, s{sWave}, 40960"); sa("s_add_u32 s50, s50, s51")
        sa("s_mov_b32 s24, s88"); sa("s_mov_b32 s25, s89"); add64(24, "s50"); sa("s_mov_b32 s26, 40960"); sa("s_mov_b32 s27, 0x20000")
        for sg in (sLq, sLx): sa(f"s_mov_b32 s{sg}, 0")
        rm = s.o.get('rot', 5)
        if rm == 0: sa(f"s_mov_b32 s{sRot}, 0")
        elif rm == 5:
            sa(f"s_mul_i32 s{sRot}, s2, 5"); sa(f"s_add_u32 s{sRot}, s{sRot}, s41"); sa(f"s_mul_i32 s50, s{sP}, 7"); sa(f"s_add_u32 s{sRot}, s{sRot}, s50")
        elif rm == 1:
            sa(f"s_lshl_b32 s{sRot}, s{sP}, 3"); sa(f"s_add_u32 s{sRot}, s{sRot}, s44")
        elif rm == 2:
            sa(f"s_lshl_b32 s{sRot}, s40, 1"); sa(f"s_add_u32 s{sRot}, s{sRot}, s41"); sa(f"s_mul_i32 s50, s{sP}, 7"); sa(f"s_add_u32 s{sRot}, s{sRot}, s50")
        elif rm == 3:
            sa(f"s_mul_i32 s{sRot}, s44, 3"); sa(f"s_lshl_b32 s50, s{sP}, 1"); sa("s_add_u32 s50, s50, s46"); sa("s_lshr_b32 s50, s50, 1"); sa("s_mul_i32 s50, s50, 5"); sa(f"s_add_u32 s{sRot}, s{sRot}, s50")
        elif rm == 4:
            sa(f"s_lshl_b32 s50, s2, 1"); sa(f"s_add_u32 s50, s50, s{sP}"); sa(f"s_mul_i32 s50, s50, 0x9e3779b1"); sa(f"s_lshr_b32 s{sRot}, s50, 28")
        sa(f"s_and_b32 s{sRot}, s{sRot}, 15"); sa(f"s_lshl_b32 s{sRot}, s{sRot}, 13"); sa(f"s_mov_b32 s{sKV}, s{sRot}")
        sa("s_lshl_b32 s50, s44, 5"); sa(f"s_lshl_b32 s51, s{sI}, 4"); sa("s_add_u32 s50, s50, s51")
        va("v_lshrrev_b32 v21, 2, v0", [V(21)], [V(0)])
        va("v_add_u32 v21, s50, v21", [V(21)], [V(21)])
        if s.o.get('wt') == 1:
            va("v_and_b32 v22, 3, v0", [V(22)], [V(0)])
            va("v_lshlrev_b32 v22, 7, v22", [V(22)], [V(22)])
            va("v_lshl_add_u32 v23, v21, 10, v22", [V(23)], [V(21), V(22)])
        else:
            va("v_and_b32 v22, 1, v0", [V(22)], [V(0)])
            va("v_lshlrev_b32 v22, 6, v22", [V(22)], [V(22)])
            va("v_lshl_add_u32 v23, v21, 10, v22", [V(23)], [V(21), V(22)])
        va("v_and_b32 v22, 3, v0", [V(22)], [V(0)])
        va("v_lshlrev_b32 v22, 6, v22", [V(22)], [V(22)])
        va("v_lshl_add_u32 v21, v21, 13, v22", [V(21)], [V(21), V(22)])

    def valu_block(s, L, every=4):
        first = s.sc.n()
        for j, ins in enumerate(L):
            s.sc.add(ins, cap=(2 if (j % every) == every - 1 else 0))
        return first, s.sc.n() - 1

    def setup(s):
        o = s.o
        s.Wq = [[s.xf_Wq(r, k) for k in range(17)] for r in range(2)]
        s.X = [[s.xf_X(r, c) for c in range(8)] for r in range(2)]
        s.K = [s.xf_K(n) for n in range(33)]; s.Vv = [s.xf_V(n) for n in range(33)]
        for x in s.Wq[0] + s.Wq[1] + s.K + s.Vv: x.nreads = 16
        for x in s.X[0] + s.X[1]: x.nreads = 10
        for x in (s.Wq[0][16], s.Wq[1][16], s.K[32], s.Vv[32]): x.nreads = 0
        for n in (8, 12, 16, 24, 28, 32): s.K[n].dynhi = True; s.Vv[n].dynhi = True
        s.sp_st = o.get('sp_stage', 3); s.sp_kv = o.get('sp_kv', 6)
        s.pre_free = []

    def start(s):
        o = s.o; sc = s.sc
        g0 = sc.add(None, cap=0); s.g0 = g0
        s.stamp(g0)
        init = [valu(f"v_mov_b32 v44, 0x3f803f80", [V(44)], []), valu(f"v_mov_b32 v{vZero}, 0", [V(vZero)], [])]
        init += [valu(f"v_accvgpr_write_b32 a{aONE+j}, v44", [A(aONE + j)], [V(44)]) for j in range(4)]
        init += [valu(f"v_mov_b32 v{NEGM+j}, 0", [V(NEGM + j)], []) for j in range(20)]
        exs = 20480 if s.var != 'X' else 10240; exb = 0 if s.var != 'X' else 32768
        init += [salu(f"s_mul_i32 s46, s{sWave}, {exs}", [S(46)]), salu(f"s_add_u32 s46, s46, {exb}", [S(46)]),
                 valu(f"v_add_u32 v{vLinW}, s46, v{vSt}", [V(vLinW)], [V(vSt)]),
                 salu(f"s_xor_b32 s47, s{sWave}, 2", [S(47)]), salu(f"s_mul_i32 s47, s47, {exs}", [S(47)]), salu(f"s_add_u32 s47, s47, {exb}", [S(47)]),
                 valu(f"v_add_u32 v{vLinR}, s47, v{vSt}", [V(vLinR)], [V(vSt)])]
        if o.get('kvt'):
            init += [salu(f"s_cmp_eq_u32 s{sI}, 0"), salu("s_cselect_b64 s[100:101], s[4:5], s[8:9]" if not o.get('kvtm') else "s_mov_b64 s[100:101], s[4:5]"), salu("s_cselect_b32 s46, 8192, 0", [S(46)]),
                     valu(f"v_lshlrev_b32 v78, 3, v{vSt}", [V(78)], [V(vSt)]), valu(f"v_add_u32 v78, s46, v78", [V(78)], [V(78)]),
                     salu("s_mov_b32 s44, s100"), salu("s_mov_b32 s45, s101"), salu("s_mov_b32 s46, 0x40000"), salu("s_mov_b32 s47, 0x20000"), salu("s_mov_b32 s97, 0")]
        for x in (s.X[0][0], s.Wq[0][0], s.Wq[0][1], s.X[0][1], s.Wq[0][2], s.Wq[0][3]): s.add_xfer('stage', x, earliest=g0, deadline=g0, prio=0)
        gt = sc.add(None, cap=0)
        if 'q' in str(o.get('t0', '')):
            sc.item('tch', simple(Ins(f"buffer_load_dword v22, v21, {sWq}, 0 offen {o.get('t0qf', '')}", 'dma', rd=['v21']), earliest=gt, deadline=gt))
        if o.get('ct'):
            pf = s.pf
            init += [salu("s_getpc_b64 s[100:101]"), Ins(f"L_{pf}pc:", 'label'),
                     salu("s_lshr_b32 s46, s2, 3", [S(46)]), salu("s_lshl_b32 s46, s46, 2", [S(46)]), salu(f"s_add_u32 s46, s46, s{sWave}", [S(46)]), salu("s_lshl_b32 s46, s46, 9", [S(46)]),
                     valu(f"v_and_b32 v80, 48, v{vSt}", [V(80)], [V(vSt)]), valu("v_lshlrev_b32 v80, 3, v80", [V(80)], [V(80)]), valu("v_add_u32 v80, s46, v80", [V(80)], [V(80)]),
                     valu(f"v_min_u32 v80, L_{pf}end-L_{pf}pc, v80", [V(80)], [V(80)]), valu("v_mov_b32 v81, s101", [V(81)], []),
                     valu("v_add_co_u32 v80, vcc, s100, v80", [V(80), 'vcc'], [V(80)]), valu("v_addc_co_u32 v81, vcc, 0, v81, vcc", [V(81), 'vcc'], [V(81), 'vcc']),
                     Ins("global_load_dword v22, v[80:81], off", 'dma', rd=['v80', 'v81'])]
        a_, b_ = s.valu_block(init)
        s.presync = b_; s.first_dl = None

    def phase_Q(s, r, dst, nxt, k0order=None):
        o = s.o; sc = s.sc; Wq = s.Wq; X = s.X; K = s.K; Vv = s.Vv; sp_st = s.sp_st
        wqf = lambda k, t: A((aKF if k % 2 == 0 else aVF) + 4 * t, 4)
        xf = lambda k, qb: A(aQ + (k % 2) * 20 + 4 * qb, 4)
        pre = s.presync
        q0 = sc.n()
        s.sync_at(pre, [Wq[r][0], X[r][0]], s.pre_free); s.pre_free = []
        for t in range(8): s.rd_Wq('rdT', wqf(0, t), Wq[r][0], t, pre, q0 - 1, name=f"wq{r}.0.{t}")
        for qb in range(5): s.rd_X('rdD', xf(0, qb), X[r][0], 0, qb, pre, q0 - 1, name=f"x{r}.0.{qb}")
        base = {}; s.qpos0 = {}
        for k in range(16):
            base[k] = sc.n()
            for qb in (k0order if (k == 0 and k0order) else range(5)):
                for t in range(8):
                    acc = V(OACC + qb * 32 + t * 4, 4)
                    i = sc.add(mfma(acc, wqf(k, t), xf(k, qb), acc if k else 0))
                    if k == 0: s.qpos0[acc.lo] = i
        qend = sc.n() - 1
        s.qbase = base
        for k in range(16):
            bs = base[k]
            if k in (1, 5, 9, 13):
                inc = {sLq: 4 * 32 * 8192, sLx: 256} if k < 13 else {}
                if o.get('kvt') and nxt == 'A' and k < 13:
                    m = o['kvt']
                    mul = 2 if o.get('kvtm') else 1
                    inc[97] = 8192 * m * mul
                    for jj in range(m):
                        e0 = bs + o.get('kvt_at', 20) + jj * (160 // m)
                        off = (s.nextA * 16 + o.get('kvts', 1) + ((k // 4) * m + jj) * mul) * 8192
                        s.touch_item('tch', S(44, 4), 78, 97, off, o.get('kvtf', 'nt'), e0, e0 + 10, "kvt")
                        if o.get('kvth'): s.touch_item('tch', S(44, 4), 78, 97, off + 64, o.get('kvtf', 'nt'), e0 + 2, e0 + 14, "kvt")
                s.mark(bs - 1, f"Q{r}", inc)
            if k < 15:
                need = [Wq[r][k + 1]] + ([X[r][(k + 1) // 2]] if (k + 1) % 2 == 0 else [])
                free = [Wq[r][k]] + ([X[r][k // 2]] if k % 2 == 1 else [])
                if k == 13: need.append(Wq[r][16]); free.append(Wq[r][16])
                s.sync_at(bs, need, free)
                for t in range(8): s.rd_Wq('rdT', wqf(k + 1, t), Wq[r][k + 1], t, bs, bs + 32, name=f"wq{r}.{k+1}.{t}")
                for qb in range(5): s.rd_X('rdD', xf(k + 1, qb), X[r][(k + 1) // 2], k + 1, qb, bs, bs + 32, name=f"x{r}.{k+1}.{qb}")
            else:
                s.sync_at(bs, [], [Wq[r][15], X[r][7]])
            if k % 2 == 1 and (k + 3) // 2 < 8: s.add_xfer('stage', X[r][(k + 3) // 2], earliest=bs, deadline=bs + 30, prio=0, spacing=sp_st)
            if k + 4 <= 16: s.add_xfer('stage', Wq[r][k + 4], earliest=bs, deadline=bs + 38, prio=0, spacing=sp_st)
        if o.get('qst') and r == o['qst'] - 1:
            s.stamp(base[0]); s.stamp(base[1] - 2); s.stamp(base[13])
        s.stamp(qend)
        if r == 0:
            e0, d0 = (s.g0, base[1] - 2) if not o.get('kv0at') else (base[13], base[14])
            for x in (K[0], Vv[0], K[1]): s.add_xfer('kv', x, earliest=e0, deadline=d0, prio=4, spacing=o.get('sp_kv0', 3))
        ep = []
        for qb in range(5):
            for u in range(4):
                src = OACC + qb * 32 + u * 8
                for j in range(4):
                    ep.append(valu(f"v_pk_mul_f32 v[{src+2*j}:{src+2*j+1}], v[{src+2*j}:{src+2*j+1}], {sC}", [V(src + 2*j, 2)], [V(src + 2*j, 2)]))
                for j in range(4):
                    ep.append(valu(f"v_cvt_pk_bf16_f32 v{src+j}, v{src+2*j}, v{src+2*j+1}", [V(src + j)], [V(src + 2*j, 2)]))
                for j in range(4):
                    ep.append(valu(f"v_accvgpr_write_b32 a{dst+qb*16+u*4+j}, v{src+j}", [A(dst + qb*16 + u*4 + j)], [V(src + j)]))
        if nxt == 'A':
            n0 = s.nextA * 16
            for (x, k) in ((K[n0 + 2], 13), (Vv[n0 + 1], 13), (Vv[n0 + 2], 14), (K[n0 + 3], 15), (Vv[n0 + 3], 15)):
                s.add_xfer('kv', x, earliest=base[k], deadline=qend + 60, prio=4, spacing=sp_st)
        else:
            s.setbase(base[13], sLq, 0); s.setbase(base[13], sLx, 0)
            if o.get('wt') == 2: s.touch_item('tch', sWq, 21, None, 256, o.get('wtf', ''), base[0], base[0] + 20, "wq1t")
            for (x, k) in ((X[1][0], 13), (Wq[1][0], 13), (Wq[1][1], 13), (Wq[1][2], 14), (X[1][1], 15), (Wq[1][3], 15)):
                s.add_xfer('stage', x, earliest=base[k], deadline=min(base[k] + 60, qend + 30), prio=0, spacing=sp_st)
        ea, eb = s.valu_block(ep)
        if nxt == 'A':
            s.setbase(ea, sLq, 0); s.setbase(ea, sLx, 0)
        s.presync = ea + (100 if nxt == 'A' else 140)

    def phase_A(s, r, qs, nxt, stash):
        o = s.o; sc = s.sc; K = s.K; Vv = s.Vv; sp_kv = s.sp_kv; sp_st = s.sp_st
        n0 = 16 * r; pf = s.pf
        aent = sc.add(None, cap=0)
        def entry():
            assert s.m0own is None
            if r == 1:
                for lo in (4, 8):
                    s.em.raw(salu(f"s_add_u32 s{lo}, s{lo}, 0x20000")); s.em.raw(salu(f"s_addc_u32 s{lo+1}, s{lo+1}, 0")); s.em.raw(salu(f"s_mov_b32 s{lo+2}, 0x20000"))
                s.kvpair = 1
            s.soff_cur = None
            s.em.raw(Ins(f"L_{pf}Aent{r}:", 'label'))
            s.fb[r] = dict(bval=dict(s.bval), aT=[a.base for a in s.aT], aD=[a.base for a in s.aD], qs=qs,
                           dmas=[i for x in K[n0:n0 + 4] + Vv[n0:n0 + 4] for i in x.ins],
                           reads=list(K[n0].reads) + list(Vv[n0].reads))
            assert len(s.fb[r]['reads']) == 32 and all(i.tag[0].base == i.tag[1] for i in s.fb[r]['reads'])
            return 0
        sc.post(aent, entry)
        kf = lambda kt, u: A(aKF + (u * 2 + kt) * 4, 4)
        vf = lambda dt: A(aVF + dt * 4, 4)
        Sb = lambda tau, kt: V(SBUF + (tau % NSB) * 8 + kt * 4, 4)
        Pb = lambda tau: V(PBUF + (tau % NSB) * 4, 4)
        asy = s.presync
        s.sync_at(asy, [K[n0], Vv[n0]], s.pre_free); s.pre_free = []
        for u in range(4):
            for kt in range(2): s.rd_K('rdD', kf(kt, u), K[n0], kt, u, asy, aent - 1, name=f"k{n0}")
        for dt in range(8): s.rd_V('rdT', vf(dt), Vv[n0], dt, asy, aent - 1, name=f"v{n0}")
        qk_pos = {}; pv_pos = {}; slot0 = {}
        for tau in range(82):
            slot0[tau] = sc.n()
            if tau < 80:
                st, qb = divmod(tau, 5)
                for u in range(4):
                    for kt in range(2):
                        d = Sb(tau, kt)
                        c = d if u else V(NEGM + qb * 4, 4)
                        qk_pos[(tau, kt, u)] = sc.add(mfma(d, kf(kt, u), A(qs + qb * 16 + u * 4, 4), c))
            if tau >= 2:
                t2 = tau - 2; st, qb = divmod(t2, 5)
                for dt in range(8):
                    acc = V(OACC + qb * 32 + dt * 4, 4)
                    pv_pos[(t2, dt)] = sc.add(mfma(acc, vf(dt), Pb(t2), acc if st else 0))
                l = A(aL + qb * 4, 4)
                pv_pos[(t2, 8)] = sc.add(mfma(l, A(aONE, 4), Pb(t2), l if st else 0))
        aend = sc.n() - 1
        s.stamp(aend)
        for tau in (8, 28, 48, 68): s.mark(slot0[tau] - 1, f"A{r}", {sKV: 32768, 'hi3': 1} if tau < 68 else {})
        s.setbase(aent, sT, 0)
        for tau in range(80):
            e0 = qk_pos[(tau, 1, 3)] + 2
            dl = pv_pos[(tau, 0)] - 2
            for kt in range(2):
                for j in range(4):
                    rr = Sb(tau, kt).lo + j
                    sc.item('sm', simple(trans(f"v_exp_f32 v{rr}, v{rr}", [V(rr)], [V(rr)]), earliest=e0, deadline=dl - 4, prio=2, name=f"exp{tau}"))
                for j in range(2):
                    rr = Sb(tau, kt).lo + 2 * j
                    pd = Pb(tau).lo + 2 * kt + j
                    sc.item('sm', simple(valu(f"v_cvt_pk_bf16_f32 v{pd}, v{rr}, v{rr+1}", [V(pd)], [V(rr, 2)]), earliest=e0, deadline=dl, prio=2, name=f"cvt{tau}"))
        sy = {}
        for st in range(15):
            t4 = 5 * st + 4
            sy[st + 1] = slot0[t4] - 1
            s.sync_at(sy[st + 1], [K[n0 + st + 1], Vv[n0 + st + 1]], [K[n0 + st], Vv[n0 + st]])
            for u in range(4):
                for kt in range(2):
                    s.rd_K('rdD', kf(kt, u), K[n0 + st + 1], kt, u, qk_pos[(t4, kt, u)], qk_pos[(t4 + 1, kt, u)] - 7, name=f"k{n0+st+1}")
            for dt in range(8):
                s.rd_V('rdT', vf(dt), Vv[n0 + st + 1], dt, pv_pos[(t4, dt)], pv_pos[(t4 + 1, dt)] - 7, name=f"v{n0+st+1}")
            if st + 4 <= 16:
                s.add_xfer('kv', K[n0 + st + 4], earliest=sy[st + 1], deadline=sy[st + 1] + 70, prio=4, spacing=sp_kv)
                s.add_xfer('kv', Vv[n0 + st + 4], earliest=sy[st + 1], deadline=sy[st + 1] + 75, prio=4, spacing=sp_kv)
        ep = []
        RC = 64 if nxt == 'H' else SBUF
        T0 = 240 if nxt == 'H' else SBUF + 12
        flag_off = 131072 if nxt in ('Q', 'A') else 32768
        for qb in range(5):
            ep.append(valu(f"v_accvgpr_read_b32 v{RC+2*qb}, a{aL+4*qb}", [V(RC + 2*qb)], [A(aL + 4*qb)]))
        for qb in range(5):
            ep.append(valu(f"v_subrev_u32 v{T0+qb}, 0x{L_LO:x}, v{RC+2*qb}", [V(T0 + qb)], [V(RC + 2*qb)]))
        ep.append(valu(f"v_max3_u32 v{T0}, v{T0}, v{T0+1}, v{T0+2}", [V(T0)], [V(T0, 3)]))
        ep.append(valu(f"v_max3_u32 v{T0}, v{T0}, v{T0+3}, v{T0+4}", [V(T0)], [V(T0), V(T0 + 3, 2)]))
        ep.append(valu(f"v_cmp_lt_u32 vcc, 0x{L_HI - L_LO:x}, v{T0}", ['vcc'], [V(T0)]))
        for qb in range(5):
            ep.append(trans(f"v_rcp_f32 v{RC+2*qb}, v{RC+2*qb}", [V(RC + 2*qb)], [V(RC + 2*qb)]))
        ep.append(salu("s_cmp_lg_u64 vcc, 0", [], ['vcc']))
        ep.append(salu("s_cselect_b32 s40, 1, 0", [S(40)]))
        ep.append(valu(f"v_mov_b32 v{T0+1}, s40", [V(T0 + 1)], []))
        ep.append(salu(f"s_lshl_b32 s40, s{sWave}, 2", [S(40)]))
        ep.append(valu(f"v_add_u32 v{T0+2}, 0x{flag_off:x}, v{vZero}", [V(T0 + 2)], []))
        ep.append(valu(f"v_add_u32 v{T0+3}, s40, v{T0+2}", [V(T0 + 3)], [V(T0 + 2)]))
        fw = Ins(f"ds_write_b32 v{T0+3}, v{T0+1}", 'ds_w', rd=[f"v{T0+3}", f"v{T0+1}"])
        ep.append(fw)
        body = []; late = []
        for qb in range(5):
            for u in range(4):
                src = OACC + qb * 32 + u * 8
                dst = OACC + qb * 16 + u * 4
                for j in range(4):
                    body.append(valu(f"v_pk_mul_f32 v[{src+2*j}:{src+2*j+1}], v[{src+2*j}:{src+2*j+1}], v[{RC+2*qb}:{RC+2*qb+1}] op_sel_hi:[1,0]",
                                   [V(src + 2*j, 2)], [V(src + 2*j, 2), V(RC + 2*qb)]))
                for j in range(4):
                    body.append(valu(f"v_cvt_pk_bf16_f32 v{dst+j}, v{src+2*j}, v{src+2*j+1}", [V(dst + j)], [V(src + 2*j, 2)]))
                if stash is not None:
                    for j in range(4):
                        late.append(valu(f"v_accvgpr_write_b32 a{stash+qb*16+u*4+j}, v{dst+j}", [A(stash + qb*16 + u*4 + j)], [V(dst + j)]))
        ep += body[:16]
        i_bar1 = len(ep) - 1
        ep.append(Ins(f"ds_read_b128 v[{T0+4}:{T0+7}], v{T0+2}", 'ds_r', rd=[f"v{T0+2}"], wr=R('v', T0 + 4, 4)))
        ep += body[16:44]
        ep.append(valu(f"v_or3_b32 v{T0+4}, v{T0+4}, v{T0+5}, v{T0+6}", [V(T0 + 4)], [V(T0 + 4, 3)]))
        ep.append(valu(f"v_or_b32 v{T0+4}, v{T0+4}, v{T0+7}", [V(T0 + 4)], [V(T0 + 4), V(T0 + 7)]))
        ep += body[44:46]
        ep.append(valu(f"v_readfirstlane_b32 s40, v{T0+4}", [S(40)], [V(T0 + 4)]))
        ep += body[46:50]
        ep.append(salu(f"s_or_b32 s40, s40, s{sRedo}", [S(40)], [S(40)]))
        ep.append(Ins(f"s_cbranch_scc1 L_{pf}FB{r}", 'salu'))
        ep.append(Ins(f"L_{pf}Ret{r}:", 'label'))
        i_chk = len(ep) - 1
        ep += body[50:] + late
        ea, eb = s.valu_block(ep)
        for j in range(ea, ea + i_chk + 1): sc.bb[j].cap = 0
        def bar1():
            s.em.wait(s.em.lgkm_needed([fw]), None); s.em.raw(Ins("s_barrier", 'barrier')); return 2
        sc.post(ea + i_bar1, bar1)
        def at_ret():
            assert s.m0own is None
            s.fb[r]['end_aT'] = [a.base for a in s.aT]; s.fb[r]['end_aD'] = [a.base for a in s.aD]
            return 0
        sc.post(ea + i_chk, at_ret)
        ps = s.presync = ea + i_chk
        s.aeb = eb
        s.pre_free = [K[n0 + 15], Vv[n0 + 15]]
        tl = slot0[68]
        wtf = o.get('wtf', '')
        if nxt == 'Q':
            X = s.X; Wq = s.Wq
            if o.get('wt') == 2: s.touch_item('tch', sWq, 21, None, 256, wtf, slot0[68], slot0[69], "wq1t")
            s.add_xfer('stage', X[1][0], earliest=tl, deadline=sy[14], prio=0, spacing=sp_st)
            s.add_xfer('stage', Wq[1][0], earliest=sy[14], deadline=sy[15], prio=0, spacing=sp_st)
            s.add_xfer('kv', K[17], earliest=sy[14], deadline=sy[15], prio=4, spacing=sp_kv)
            s.add_xfer('stage', Wq[1][1], earliest=sy[15], deadline=aend - 30, prio=0, spacing=sp_st)
            s.add_xfer('stage', Wq[1][2], earliest=sy[15], deadline=aend, prio=0, spacing=sp_st)
            s.add_xfer('stage', X[1][1], earliest=ps, deadline=ps + 40, prio=0, spacing=1)
            s.add_xfer('stage', Wq[1][3], earliest=ps, deadline=ps + 80, prio=0, spacing=1)
        elif nxt == 'A':
            s.add_xfer('kv', K[17], earliest=sy[14], deadline=sy[15], prio=4, spacing=sp_kv)
            s.add_xfer('kv', Vv[17], earliest=sy[14], deadline=sy[15], prio=4, spacing=sp_kv)
            s.add_xfer('kv', K[18], earliest=sy[15], deadline=aend, prio=4, spacing=sp_kv)
            s.add_xfer('kv', Vv[18], earliest=sy[15], deadline=aend, prio=4, spacing=sp_kv)
            s.add_xfer('kv', K[19], earliest=ps, deadline=eb - 40, prio=4, spacing=10)
            s.add_xfer('kv', Vv[19], earliest=ps, deadline=eb - 2, prio=4, spacing=10)
        else:
            Wo = s.Wo
            if o.get('wt') == 2 and not (nxt == 'H' and r == 1): s.touch_item('tch', sWo, 23, None, 0, wtf, slot0[68], slot0[69], "wot0")
            s.add_xfer('stage', Wo[0], earliest=tl, deadline=sy[15], prio=0, spacing=sp_st)
            s.add_xfer('stage', Wo[1], earliest=tl, deadline=sy[15], prio=0, spacing=sp_st)
            s.add_xfer('stage', Wo[2], earliest=ps, deadline=ps + 40, prio=0, spacing=1)
            s.add_xfer('stage', Wo[3], earliest=ps, deadline=ps + 80, prio=0, spacing=1)
            s.a_tl = tl; s.a_end = aend

    def bar_after(s, idx, items, extra=None):
        def fn():
            for it in items: assert it.ins is not None, (it.name, "not issued before barrier")
            n = 0
            if s.em.wait(s.em.lgkm_needed([it.ins for it in items]), None): n += 1
            s.em.raw(Ins("s_barrier", 'barrier'))
            if extra: extra()
            return n + 1
        s.sc.post(idx, fn)

    def phase_P(s):
        o = s.o; sc = s.sc; Wo = s.Wo; K = s.K; Vv = s.Vv; sp_st = s.sp_st
        EXA = Xfer('ex', 'EX', [], fixed=(0, 81920))
        p_pre = s.presync
        p0 = sc.n()
        wof = lambda j, nt: V((64 if j % 2 == 0 else 240) + 4 * nt, 4)
        def bfrag(ks, qb):
            grp, u = divmod(ks, 4)
            if grp == 0: return V(OACC + qb * 16 + u * 4, 4)
            if grp == 1: return A(aST + qb * 16 + u * 4, 4)
            idx = (grp - 2) * 20 + qb * 4 + u
            return A(idx * 4, 4) if idx < 36 else A(aL + (idx - 36) * 4, 4)
        pacc = lambda nt, qb: V(160 + (qb * 4 + nt) * 4, 4)
        pk = lambda qb, up: V(24 + (qb * 2 + up) * 4, 4)
        s.sync_at(p_pre, [Wo[0], K[32], Vv[32]], s.pre_free + [K[32], Vv[32]])
        def take_ex():
            s.al.take_range(0, 81920, EXA); EXA.addr = 0; return 0
        sc.post(p_pre, take_ex)
        s.setbase(p_pre, sLo, 0); s.setbase(p_pre, 40, 0)
        def rd_wo(j, e0, dl):
            x = Wo[j // 2]
            for nt in range(4):
                for rd in (0, 1):
                    s.ds_item('rdT', "ds_read_b64_tr_b16", wof(j, nt).sub(2 * rd, 2), s.aT[nt], x, (j & 1) * 4096 + rd * 2048, WBASE, e0, dl, name=f"wo{j}")
        rd_wo(0, p_pre, p0 - 1)
        ppos = {}; kst = {}
        for j in range(65):
            ch, ks = divmod(j, 16)
            kst[j] = sc.n()
            if j == 64: break
            for qb in range(5):
                for nt in range(4):
                    acc = pacc(nt, qb)
                    ppos[(j, nt, qb)] = sc.add(mfma(acc, wof(j, nt), bfrag(ks, qb), acc if ks else 0))
        pend = sc.n() - 1
        PM = o.get('pmark', 13)
        if o.get('pst'):
            s.stamp(kst[0]); s.stamp(kst[4]); s.stamp(kst[PM] - 2); s.stamp(kst[PM + 48])
        for c in range(4): s.mark(kst[PM + 16 * c] - 1, "P", {sOwn: 128, sOth: 128, sLo: 10240, 40: 128} if c < 3 else {})
        for j in range(63):
            if j % 2 == 1:
                m = (j + 1) // 2
                s.sync_at(kst[j], [Wo[m]], [Wo[m - 1]])
                if m + 3 < 36 and j < PM + 48: s.add_xfer('stage', Wo[m + 3], earliest=kst[j], deadline=kst[j] + 30, prio=0, spacing=sp_st)
            rd_wo(j + 1, kst[j], kst[j] + 12)
        if o.get('wt') == 2:
            s.touch_item('tch', sWo, 23, None, 128, o.get('wtf', ''), kst[1], kst[2], "wot1")
            for c in range(3):
                s.touch_item('tch', sWo, 23, 40, 128 * (c + 2), o.get('wtf', ''), kst[PM + 16 * c] + 60, kst[PM + 16 * c] + 80, "wot")
        def exw(rnd, e0, dl):
            L = []
            for qb in range(5):
                for u in range(4):
                    src = bfrag(rnd * 4 + u, qb)
                    ins = Ins(f"ds_write_b128 v{vLinW}, {src} offset:{(qb*4+u)*1024}", 'ds_w', rd=[f"v{vLinW}"] + src.regs())
                    L.append(sc.item('ex', simple(ins, earliest=e0, deadline=dl, prio=3, name=f"exw{rnd}")))
            return L
        def exr(rnd, e0, dl):
            L = []
            for u in range(4):
                for qb in range(5):
                    dst = bfrag(8 + rnd * 4 + u, qb)
                    ins = Ins(f"ds_read_b128 {dst}, v{vLinR} offset:{(qb*4+u)*1024}", 'ds_r', rd=[f"v{vLinR}"], wr=dst.regs())
                    L.append(sc.item('ex', simple(ins, earliest=e0, deadline=dl, prio=3, name=f"exr{rnd}")))
            return L
        w0 = exw(0, p0, kst[3] - 2); s.bar_after(kst[3] + 4, w0)
        r0 = exr(0, kst[3] + 4, kst[5] - 2); s.bar_after(kst[5] + 4, r0)
        w1 = exw(1, kst[5] + 4, kst[9] - 2); s.bar_after(kst[9] + 4, w1)
        r1 = exr(1, kst[9] + 4, kst[11])
        def all_ex_done():
            s.em.wait(s.em.lgkm_needed([it.ins for it in r1]), None); return 1
        sc.post(kst[12] - 2, all_ex_done)
        tail = []
        for ch in range(4):
            j = ch * 16 + 15
            for qb in range(5):
                for up in range(2):
                    for h in range(2):
                        nt = 2 * up + h
                        a = pacc(nt, qb); d = pk(qb, up)
                        for jj in range(2):
                            ins = valu(f"v_cvt_pk_bf16_f32 v{d.lo+2*h+jj}, v{a.lo+2*jj}, v{a.lo+2*jj+1}", [V(d.lo + 2*h + jj)], [V(a.lo + 2*jj, 2)])
                            if ch < 3: sc.item('cv', simple(ins, earliest=ppos[(j, nt, qb)] + 2, deadline=ppos[(j + 1, nt, qb)] - 1, prio=1, name=f"pcvt{ch}"))
                            else: tail.append(ins)
                    off = ((ch * 5 + qb) * 2 + up) * 1024
                    mkso = lambda off=off: salu(f"s_add_u32 s37, s{sLo}, 0x{(off - s.bval[sLo]) & 0xffffffff:x}", [S(37)], [S(sLo)])
                    stx = Ins(f"buffer_store_dwordx4 {pk(qb, up)}, v{vSt}, {sWs}, s37 offen {o.get('stflags','')}", 'vst', rd=pk(qb, up).regs() + [f"v{vSt}", 's37'] + sWs.regs())
                    if ch < 3:
                        e0 = kst[j + 1] + 20 + (qb * 2 + up) * o.get('sp_store', 16)
                        sc.item('st', Item(lambda mkso=mkso: ('salu', mkso(), True), earliest=e0, deadline=e0 + 10, prio=6, name="sto"))
                        sc.item('st', simple(stx, earliest=e0, deadline=e0 + 12, prio=6, name="st"))
                    else:
                        tail += [mkso, stx]
        s.stamp(pend)
        s.tail = tail

    def phase_H(s, r):
        o = s.o; sc = s.sc; Wo = s.Wo; K = s.K; Vv = s.Vv; sp_st = s.sp_st
        EXA = Xfer('ex', 'EX', [], fixed=(32768, 40960))
        ps = s.presync
        accs = [160, 80]
        pacc = lambda ch, nt, qb: V(accs[ch & 1] + (qb * 4 + nt) * 4, 4)
        pk = lambda qb, up: V(24 + (qb * 2 + up) * 4, 4)
        ldb = [64, 68, 72, 76, 240, 244, 248, 252]
        wof = lambda j, nt: A(aVF + (j % 2) * 16 + 4 * nt, 4)
        own_v = lambda u, qb: V(OACC + qb * 16 + u * 4, 4)
        own_a = lambda u, qb: A(aQ + qb * 16 + u * 4, 4)
        def bfrag(ch, ks, qb):
            if ks < 4: return own_v(ks, qb) if ch == 0 else own_a(ks, qb)
            return A(aST + qb * 16 + (ks - 4) * 4, 4)
        def ld_items(dst, unit, e0, dl):
            so = salu(f"s_mov_b32 s41, 0x{unit*1024:x}", [S(41)])
            ld = Ins(f"buffer_load_dwordx4 {dst}, v{vSt}, {sWs}, s41 offen", 'vld', rd=[f"v{vSt}", 's41'] + sWs.regs(), wr=dst.regs())
            sc.item('tch', simple(so, earliest=e0, deadline=dl, prio=5, name="cio"))
            return sc.item('tch', simple(ld, earliest=e0, deadline=dl + 2, prio=5, name="cil"))
        def unpack(src, ch, qb, up):
            L = []
            for h in range(2):
                a = pacc(ch, 2 * up + h, qb)
                for jj in range(2):
                    sr = src.lo + 2 * h + jj
                    L.append(valu(f"v_lshlrev_b32 v{a.lo+2*jj}, 16, v{sr}", [V(a.lo + 2*jj)], [V(sr)]))
                    L.append(valu(f"v_and_b32 v{a.lo+2*jj+1}, 0xffff0000, v{sr}", [V(a.lo + 2*jj + 1)], [V(sr)]))
            return L
        if r == 1:
            for qb in range(5):
                for up in range(2): ld_items(pk(qb, up), qb * 2 + up, ps, ps + 30 + 3 * (qb * 2 + up))
            s.valu_block([x for qb in range(5) for up in range(2) for x in unpack(pk(qb, up), 0, qb, up)])
        p0 = sc.n()
        fr = s.pre_free + ([K[32], Vv[32]] if r == 1 else [])
        s.sync_at(ps, [Wo[0]] + ([K[32], Vv[32]] if r == 1 else []), fr); s.pre_free = []
        def take_ex():
            s.al.take_range(32768, 40960, EXA); EXA.addr = 32768; return 0
        sc.post(ps, take_ex)
        def rd_wo(j, e0, dl):
            x = Wo[j // 2]
            for nt in range(4):
                for rd in (0, 1):
                    s.ds_item('rdT', "ds_read_b64_tr_b16", wof(j, nt).sub(2 * rd, 2), s.aT[nt], x, (j & 1) * 4096 + rd * 2048, WBASE, e0, dl, name=f"wo{j}")
        rd_wo(0, ps, p0 - 1)
        ppos = {}; kst = {}
        for j in range(33):
            ch, ks = divmod(j, 8)
            kst[j] = sc.n()
            if j == 32: break
            for qb in range(5):
                for nt in range(4):
                    acc = pacc(ch, nt, qb)
                    ppos[(j, nt, qb)] = sc.add(mfma(acc, wof(j, nt), bfrag(ch, ks, qb), acc if (ks or r == 1) else 0))
        pend = sc.n() - 1
        for j in range(31):
            if j % 2 == 1:
                m = (j + 1) // 2
                s.sync_at(kst[j], [Wo[m]], [Wo[m - 1]])
                if m + 3 < 16: s.add_xfer('stage', Wo[m + 3], earliest=kst[j], deadline=kst[j] + 30, prio=0, spacing=sp_st)
            rd_wo(j + 1, kst[j], kst[j] + 12)
        if o.get('wt') == 2 and r == 0:
            for c in range(1, 4): s.touch_item('tch', sWo, 23, None, 128 * c, o.get('wtf', ''), kst[8 * (c - 1)] if c > 1 else ps, kst[8 * (c - 1)] + 20, "wot")
        def exw(rnd, e0, dl):
            return [sc.item('ex', simple(Ins(f"ds_write_b128 v{vLinW}, {own_v(2*rnd+uu, qb)} offset:{(qb*2+uu)*1024}", 'ds_w', rd=[f"v{vLinW}"] + own_v(2*rnd+uu, qb).regs()),
                                         earliest=e0, deadline=dl, prio=3, name=f"exw{rnd}")) for qb in range(5) for uu in range(2)]
        def exr(rnd, e0, dl):
            L = []
            for uu in range(2):
                for qb in range(5):
                    dst = bfrag(0, 4 + 2 * rnd + uu, qb)
                    L.append(sc.item('ex', simple(Ins(f"ds_read_b128 {dst}, v{vLinR} offset:{(qb*2+uu)*1024}", 'ds_r', rd=[f"v{vLinR}"], wr=dst.regs()), earliest=e0, deadline=dl, prio=3, name=f"exr{rnd}")))
            for uu in range(2):
                for qb in range(5):
                    dst = own_a(2 * rnd + uu, qb)
                    L.append(sc.item('ex', simple(Ins(f"ds_read_b128 {dst}, v{vLinW} offset:{(qb*2+uu)*1024}", 'ds_r', rd=[f"v{vLinW}"], wr=dst.regs()), earliest=e0, deadline=dl, prio=3, name=f"exo{rnd}")))
            return L
        w0 = exw(0, p0, kst[1] - 2); s.bar_after(kst[1] + 3, w0)
        r0 = exr(0, kst[1] + 3, kst[2] + 6); s.bar_after(kst[2] + 14, r0)
        w1 = exw(1, kst[2] + 14, kst[3] + 14); s.bar_after(kst[4] + 2, w1)
        r1 = exr(1, kst[4] + 2, kst[5] + 6)
        exdone = kst[6] + 4
        s.bar_after(exdone, r1, extra=lambda: s.al.release(EXA))
        tail = []; s.late_cvt = []; prev_unp = {}
        for ch in range(4):
            j = ch * 8 + 7
            qbs = list(range(5)) if (ch < 3 or r == 1) else [4, 3, 2, 1, 0]
            for n_, qb in enumerate(qbs):
                for up in ((0, 1) if (ch < 3 or r == 1) else (1, 0)):
                    cv = []
                    for h in range(2):
                        nt = 2 * up + h
                        a = pacc(ch, nt, qb); d = pk(qb, up)
                        for jj in range(2):
                            cv.append((valu(f"v_cvt_pk_bf16_f32 v{d.lo+2*h+jj}, v{a.lo+2*jj}, v{a.lo+2*jj+1}", [V(d.lo + 2*h + jj)], [V(a.lo + 2*jj, 2)]), ppos[(j, nt, qb)], a.lo))
                    off = ((ch * 5 + qb) * 2 + up) * 1024
                    so = salu(f"s_mov_b32 s37, 0x{off:x}", [S(37)])
                    stx = Ins(f"buffer_store_dwordx4 {pk(qb, up)}, v{vSt}, {sWs}, s37 offen {o.get('stflags','')}", 'vst', rd=pk(qb, up).regs() + [f"v{vSt}", 's37'] + sWs.regs())
                    if ch < 3:
                        e0 = kst[j + 1] + 4 + (n_ * 2 + up) * o.get('sp_storeh', 10)
                        for (ins, pos, alo) in cv: sc.item('cv', simple(ins, earliest=pos + 2, deadline=e0 - 1, prio=4, name=f"pcvt{ch}"))
                        sc.item('st', simple(so, earliest=e0, deadline=e0 + 6, prio=6, name="sto"))
                        sc.item('st', simple(stx, earliest=e0, deadline=e0 + 8, prio=6, name="st")).after = [c[0] for c in cv]
                    elif r == 1:
                        tail += [c[0] for c in cv] + [so, stx]
                    else:
                        s.late_cvt.append((cv, so, stx))
            if r == 1 and ch < 3:
                nx = ch + 1
                free_at = kst[4] + 1 if nx == 1 else kst[8 * (nx - 1)] + 4 + 9 * o.get('sp_storeh', 10)
                l0 = kst[8 * ch] + (2 if ch else 0)
                for n_ in range(10):
                    qb, up = divmod(n_, 2)
                    buf = V(ldb[n_ % 8], 4)
                    e_ld = l0 + 6 * n_ if n_ < 8 else max(free_at, l0 + 60) + 10 + 4 * n_
                    li = ld_items(buf, (nx * 5 + qb) * 2 + up, e_ld, e_ld + 6)
                    li.after = prev_unp.get(buf.lo, [])
                    e_un = max(free_at, l0 + 60) + 4 * n_ + (0 if n_ < 8 else 44)
                    U = unpack(buf, nx, qb, up); prev_unp[buf.lo] = U
                    for ins in U:
                        it = sc.item('un', simple(ins, earliest=e_un, deadline=(e_un + 8 if n_ < 2 else ppos[(8 * nx, 2 * up, qb)] - 2), prio=5, name=f"unp{nx}"))
                        it.after = [li.peek()[1]]
        s.stamp(pend)
        if r == 0:
            X = s.X; Wq = s.Wq
            if o.get('wt') == 2: s.touch_item('tch', sWq, 21, None, 256, o.get('wtf', ''), kst[17], kst[18], "wq1t")
            s.add_xfer('kv', K[17], earliest=exdone, deadline=kst[14], prio=4, spacing=20)
            s.add_xfer('stage', Wq[1][0], earliest=kst[24], deadline=kst[25] + 10, prio=0, spacing=sp_st)
            s.add_xfer('stage', Wq[1][1], earliest=kst[25], deadline=kst[26] + 10, prio=0, spacing=sp_st)
            s.add_xfer('stage', X[1][0], earliest=kst[27], deadline=kst[28] + 4, prio=0, spacing=sp_st)
            s.add_xfer('stage', Wq[1][2], earliest=kst[28], deadline=kst[29], prio=0, spacing=sp_st)
            s.add_xfer('stage', Wq[1][3], earliest=kst[29], deadline=kst[30] + 10, prio=0, spacing=sp_st)
            s.presync = kst[31]; s.pre_free = [Wo[15]]
            s.add_xfer('stage', X[1][1], earliest=kst[31], deadline=pend, prio=0, spacing=sp_st)
        else:
            s.tail = tail

    def after_H0(s):
        sc = s.sc; b0 = s.qbase[0]
        last = b0
        for n_, (cv, so, stx) in enumerate(s.late_cvt):
            dl = min(s.qpos0[alo] for (_, _, alo) in cv) - 1
            for (ins, pos, alo) in cv: sc.item('cv', simple(ins, earliest=pos + 2, deadline=s.qpos0[alo] - 1, prio=1, name="pcvtL"))
            e0 = min(b0 + 3 * n_, s.qbase[1] - 8)
            sc.item('st', simple(so, earliest=e0, deadline=s.qbase[1] - 4, prio=6, name="sto", ))
            it = sc.item('st', simple(stx, earliest=max(e0, max(s.qpos0[alo] for (_, _, alo) in cv) - 1 if False else e0), deadline=s.qbase[1] - 3, prio=6, name="st"))
            it.after = [c[0] for c in cv]
        for j in range(20):
            sc.item('cv', simple(valu(f"v_mov_b32 v{NEGM+j}, 0", [V(NEGM + j)], []), earliest=s.qbase[13], deadline=s.qbase[15], prio=8, name="negm0"))

    def build(s):
        s.setup(); s.start()
        mkWo = lambda L: [setattr(x, 'nreads', 16) or x for x in L]
        if s.var == 'Z':
            s.nextA = 0; s.phase_Q(0, aQ, 'A'); s.phase_A(0, aQ, 'Q', aST)
            s.nextA = 1; s.phase_Q(1, aQ, 'A')
            s.Wo = mkWo([s.xf_Wo(m // 8, m % 8) for m in range(36)])
            s.phase_A(1, aQ, 'P', None); s.phase_P(); s.stamp(s.sc.n() - 1)
        elif s.var == 'Y':
            s.phase_Q(0, aST, 'Q'); s.nextA = 0; s.phase_Q(1, aQ, 'A')
            s.phase_A(0, aST, 'A', aST)
            s.Wo = mkWo([s.xf_Wo(m // 8, m % 8) for m in range(36)])
            s.phase_A(1, aQ, 'P', None); s.phase_P(); s.stamp(s.sc.n() - 1)
        else:
            s.nextA = 0; s.phase_Q(0, aQ, 'A')
            s.Wo = mkWo([s.xf_WoH(0, m // 4, m % 4) for m in range(16)])
            s.phase_A(0, aQ, 'H', None); s.phase_H(0)
            s.nextA = 1; s.phase_Q(1, aQ, 'A', k0order=[4, 3, 2, 1, 0]); s.after_H0()
            s.Wo = mkWo([s.xf_WoH(1, m // 4, m % 4) for m in range(16)])
            s.phase_A(1, aQ, 'H', None); s.phase_H(1)
        s.sc.run()
        for ins in s.tail: s.em.emit(ins() if callable(ins) else ins)
        s.finish()

    def make_pins(s):
        pins = {}
        groups = {}
        for (gname, idx) in s.marks: groups.setdefault(gname, []).append(idx)
        for gname, m in groups.items():
            n = len(m) - 1; L = m[1] - m[0]
            assert all(m[j + 1] - m[j] == L for j in range(n))
            for k, items in s.sc.streams.items():
                T = [i for i, it in enumerate(items) if m[n - 1] <= it.gap < m[n]]
                c = len(T)
                if c == 0:
                    inside = [i for i, it in enumerate(items) if m[0] <= it.gap < m[n]]
                    for i in inside: pins[(k, i)] = (None, m[0] - 1)
                    continue
                for j in range(n):
                    for i in T:
                        pins[(k, i - (n - 1 - j) * c)] = (items[i].gap - (n - 1 - j) * L, items[i].gap - (n - 1 - j) * L)
                first = T[0] - (n - 1) * c
                for i in range(first - 1, -1, -1):
                    if items[i].gap < m[0] - 60: break
                    if (k, i) not in pins: pins[(k, i)] = (None, m[0] - 1)
                if T[-1] + 1 < len(items) and (k, T[-1] + 1) not in pins: pins[(k, T[-1] + 1)] = (m[n], None)
        return pins

    def roll(s):
        out = s.em.out
        groups = {}
        for i, ins in enumerate(out):
            if ins.kind == 'comment' and ins.tag and ins.tag[0] == 'mark': groups.setdefault(ins.tag[1], []).append(i)
        def split(seg):
            body = []; waits = {}
            for x in seg:
                if x.kind == 'wait':
                    w = waits.setdefault(len(body), {})
                    for nm, v in re.findall(r"(\w+)\((\d+)\)", x.text): w[nm] = min(w.get(nm, 99), int(v))
                else: body.append(x)
            return body, waits
        edits = []
        for gname, idx in groups.items():
            segs = [split(out[idx[j]:idx[j + 1]]) for j in range(len(idx) - 1)]
            txt = [[x.text for x in b] for b, w in segs]
            best = (0, 1); j = 0
            while j < len(segs):
                k = j + 1
                while k < len(segs) and txt[k] == txt[j]: k += 1
                if k - j > best[1]: best = (j, k - j)
                j = k
            sys.stderr.write(f"roll {gname}: {len(segs)} periods, lens {[len(x) for x in txt]}, identical run start {best[0]} x{best[1]}\n")
            if best[1] < len(segs) and s.o.get('rolldiff'):
                import difflib
                for j in range(len(segs) - 1):
                    d = [l for l in difflib.unified_diff(txt[j], txt[j + 1], lineterm='', n=0)]
                    if d: sys.stderr.write(f"  diff {j}->{j+1} ({len(d)} lines):\n" + "\n".join(d[:30]) + "\n")
            if best[1] >= 2:
                body = segs[best[0]][0]; mw = {}
                last = segs[best[0] + best[1] - 1][1]
                for j in range(best[0], best[0] + best[1]):
                    for p, w in segs[j][1].items():
                        for nm, v in w.items(): mw.setdefault(p, {})[nm] = min(mw.get(p, {}).get(nm, 99), v)
                for p, w in sorted(mw.items()):
                    if w != last.get(p): sys.stderr.write(f"   merged wait at {p}: {w} (steady {last.get(p)})\n")
                new = []
                for p in range(len(body) + 1):
                    if p in mw: new.append(Ins("s_waitcnt " + " ".join(f"{nm}({v})" for nm, v in sorted(mw[p].items(), reverse=True)), 'wait'))
                    if p < len(body): new.append(body[p])
                edits.append((idx[best[0]], idx[best[0] + best[1]], new, best[1], gname))
        for (a, c, new, n, gname) in sorted(edits, key=lambda e: -e[0]):
            pre = [salu(f"s_mov_b32 s{sCnt}, {n}"), Ins(f"L_{s.pf}{gname}:", 'label')]
            post = [salu(f"s_sub_u32 s{sCnt}, s{sCnt}, 1"), salu(f"s_cmp_lg_u32 s{sCnt}, 0"), Ins(f"s_cbranch_scc1 L_{s.pf}{gname}", 'salu')]
            s.em.out = s.em.out[:a] + pre + new + post + s.em.out[c:]

    def finish(s):
        e = s.em
        if s.o.get('stamps'):
            k = s.stamps
            e.raw(Ins(f"s_waitcnt vmcnt(0)", 'wait'))
            e.raw(Ins(f"s_memtime s[{50+2*k}:{51+2*k}]", 'salu'))
            e.raw(Ins(f"s_memrealtime s[92:93]", 'salu'))
            e.raw(Ins("s_waitcnt lgkmcnt(0)", 'wait'))
            e.raw(salu(f"s_lshl_b32 s40, s2, 2")); e.raw(salu(f"s_add_u32 s40, s40, s{sWave}")); e.raw(salu("s_lshl_b32 s40, s40, 6"))
            e.raw(salu("s_add_u32 s24, s88, 0x4000000")); e.raw(salu("s_addc_u32 s25, s89, 0")); e.raw(salu("s_mov_b32 s26, 0x100000"))
            e.raw(salu("s_mov_b64 exec, 1"))
            for j in range(k + 1):
                e.raw(valu(f"v_mov_b32 v21, s{50+2*j}", [V(21)], [])); e.raw(valu(f"v_mov_b32 v22, {4*j}", [V(22)], []))
                e.raw(Ins(f"buffer_store_dword v21, v22, s[24:27], s40 offen", 'vst'))
                e.raw(Ins("s_nop 1", 'nop'))
            for j, sr in ((13, 94), (14, 90), (15, 92)):
                e.raw(valu(f"v_mov_b32 v21, s{sr}", [V(21)], [])); e.raw(valu(f"v_mov_b32 v22, {4*j}", [V(22)], []))
                e.raw(Ins(f"buffer_store_dword v21, v22, s[24:27], s40 offen", 'vst'))
                e.raw(Ins("s_nop 1", 'nop'))
        e.raw(Ins("s_endpgm", 'salu'))
        e.raw(Ins(f"L_{s.pf}end:", 'label'))
        for r in sorted(s.fb): s.fallback(r)

    def fallback(s, r):
        fb = s.fb[r]; pf = s.pf
        em = Emitter(); e = em.emit
        sa = lambda t, w=(), rd=(): e(salu(t, w, rd))
        va = lambda t, w, rd: e(valu(t, w, rd))
        e(Ins(f"L_{pf}FB{r}:", 'label'))
        sa(f"s_cmp_eq_u32 s{sRedo}, 0"); e(Ins(f"s_cbranch_scc1 L_{pf}FBgo{r}", 'salu'))
        for j in range(20): va(f"v_mov_b32 v{NEGM+j}, 0", [V(NEGM + j)], [])
        sa(f"s_mov_b32 s{sRedo}, 0"); e(Ins(f"s_branch L_{pf}Ret{r}", 'salu'))
        e(Ins(f"L_{pf}FBgo{r}:", 'label'))
        e(Ins("s_waitcnt vmcnt(0) lgkmcnt(0)", 'wait')); e(Ins("s_barrier", 'barrier'))
        KF, ST, MX, AD = 80, 96, 116, 124
        va(f"v_bfe_u32 v{AD}, v{vSt}, 4, 4", [V(AD)], [V(vSt)])
        va(f"v_lshlrev_b32 v{AD}, 8, v{AD}", [V(AD)], [V(AD)])
        va(f"v_lshrrev_b32 v{AD+1}, 8, v{vSt}", [V(AD + 1)], [V(vSt)])
        va(f"v_lshl_add_u32 v{AD}, v{AD+1}, 3, v{AD}", [V(AD)], [V(AD + 1), V(AD)])
        for qb in range(5): va(f"v_mov_b32 v{MX+qb}, 0xff800000", [V(MX + qb)], [])
        sa(f"s_mov_b32 s40, 0", [S(40)]); sa(f"s_mov_b32 s{sCnt}, 32")
        e(Ins(f"L_{pf}FBloop{r}:", 'label'))
        for u in range(4):
            for pc in range(2):
                d = V(KF + 4 * u + 2 * pc, 2)
                e(Ins(f"buffer_load_dwordx2 {d}, v{AD}, {sK}, s40 offen offset:{64*u+32*pc}", 'vld', rd=[f"v{AD}", 's40'], wr=d.regs()))
        for qb in range(5):
            for u in range(4):
                d = V(ST + 4 * qb, 4)
                e(mfma(d, V(KF + 4 * u, 4), A(fb['qs'] + qb * 16 + u * 4, 4), d if u else 0))
        for qb in range(5):
            va(f"v_max3_f32 v{MX+qb}, v{MX+qb}, v{ST+4*qb}, v{ST+4*qb+1}", [V(MX + qb)], [V(MX + qb), V(ST + 4*qb, 2)])
            va(f"v_max3_f32 v{MX+qb}, v{MX+qb}, v{ST+4*qb+2}, v{ST+4*qb+3}", [V(MX + qb)], [V(MX + qb), V(ST + 4*qb + 2, 2)])
        sa("s_add_u32 s40, s40, 4096", [S(40)]); sa(f"s_sub_u32 s{sCnt}, s{sCnt}, 1"); sa(f"s_cmp_lg_u32 s{sCnt}, 0")
        e(Ins("s_nop 7", 'nop', states=8))
        e(Ins(f"s_cbranch_scc1 L_{pf}FBloop{r}", 'salu'))
        for xm in (16, 32):
            va(f"v_lshrrev_b32 v{AD}, 2, v{vSt}", [V(AD)], [V(vSt)])
            va(f"v_xor_b32 v{AD}, {4*xm}, v{AD}", [V(AD)], [V(AD)])
            for qb in range(5):
                e(Ins(f"ds_bpermute_b32 v{ST+qb}, v{AD}, v{MX+qb}", 'ds_r', rd=[f"v{AD}", f"v{MX+qb}"], wr=[f"v{ST+qb}"]))
            for qb in range(5):
                va(f"v_max_f32 v{MX+qb}, v{MX+qb}, v{ST+qb}", [V(MX + qb)], [V(MX + qb), V(ST + qb)])
        for qb in range(5):
            for j in range(4): va(f"v_sub_f32 v{NEGM+4*qb+j}, 0, v{MX+qb}", [V(NEGM + 4*qb + j)], [V(MX + qb)])
        sa(f"s_add_u32 s{sKV}, s{sRot}, 0x{fb['bval'].get(sKV, 0):x}", [S(sKV)])
        for regs, b0, b1 in ((vT, fb['aT'], fb['end_aT']), (vD, fb['aD'], fb['end_aD'])):
            for v, x0, x1 in zip(regs, b0, b1):
                if x0 != x1: va(f"v_add_u32 v{v}, 0x{(x0 - x1) & 0xffffffff:x}, v{v}", [V(v)], [V(v)])
        for i in fb['dmas']:
            (x, srd, voff, sbase, sconst, imm, ldsoff, m0b, flags) = i.tag
            sa(f"s_add_u32 m0, s{m0b}, 0x{x.fixed[0] + ldsoff - imm:x}", ['m0'])
            sa(f"s_add_u32 s{sOff}, s{sRot}, 0x{sconst & 0x1ffff:x}", [S(sOff)]); sa(f"s_and_b32 s{sOff}, s{sOff}, 0x1ffff", [S(sOff)])
            e(Ins(i.text, 'dma', rd=i.rd))
        e(Ins("s_waitcnt vmcnt(0)", 'wait')); e(Ins("s_barrier", 'barrier'))
        for i in fb['reads']: em.raw(Ins(i.text, 'ds_r'))
        e(Ins("s_waitcnt lgkmcnt(0)", 'wait'))
        sa(f"s_mov_b32 s{sRedo}, 1")
        e(Ins(f"s_branch L_{pf}Aent{r}", 'salu'))
        s.em.out += em.out

def reduce_kernel(rf=''):
    L = []; a = L.append
    a("s_cmp_ge_u32 s2, 640"); a("s_cbranch_scc1 LR_end")
    a("s_load_dwordx2 s[4:5], s[0:1], 80"); a("s_load_dwordx2 s[8:9], s[0:1], 96")
    a("v_lshrrev_b32 v1, 6, v0"); a("s_nop 0"); a("v_readfirstlane_b32 s12, v1"); a("v_and_b32 v0, 63, v0")
    a("s_lshl_b32 s13, s2, 2"); a("s_nop 2"); a("s_add_u32 s13, s13, s12")
    a(f"s_mul_hi_u32 s14, s13, {(2**32 + 79)//80}")
    a("s_mul_i32 s15, s14, 80"); a("s_sub_u32 s15, s13, s15")
    a(f"s_mul_hi_u32 s16, s15, {(2**32 + 19)//20}")
    a("s_mul_i32 s17, s16, 20"); a("s_sub_u32 s17, s15, s17")
    a(f"s_mul_hi_u32 s18, s17, {(2**32 + 4)//5}")
    a("s_mul_i32 s19, s18, 5"); a("s_sub_u32 s19, s17, s19")
    a("s_mul_i32 s20, s14, 1310720"); a("s_mul_i32 s21, s16, 40960"); a("s_add_u32 s20, s20, s21")
    a("s_lshl_b32 s21, s17, 11"); a("s_add_u32 s20, s20, s21")
    a("v_lshlrev_b32 v1, 4, v0")
    a("s_waitcnt lgkmcnt(0)")
    a("s_mov_b32 s10, 41943040"); a("s_mov_b32 s11, 0x20000")
    a("s_mov_b32 s6, 5242880"); a("s_mov_b32 s7, 0x20000")
    for sl in range(8):
        for up in range(2):
            d = 16 + (sl * 2 + up) * 4
            a(f"buffer_load_dwordx4 v[{d}:{d+3}], v1, s[8:11], s20 offen offset:{up*1024} {rf}")
        if sl < 7: a("s_add_u32 s20, s20, 163840")
    a("s_and_b32 s22, s14, 15"); a("s_lshr_b32 s23, s14, 4")
    a("s_mul_i32 s22, s22, 160"); a("s_and_b32 s24, s16, 1"); a("s_mul_i32 s24, s24, 80"); a("s_add_u32 s22, s22, s24")
    a("s_lshl_b32 s24, s19, 4"); a("s_add_u32 s22, s22, s24"); a("s_lshl_b32 s22, s22, 11")
    a("s_lshl_b32 s23, s23, 10"); a("s_lshr_b32 s24, s16, 1"); a("s_lshl_b32 s24, s24, 9"); a("s_add_u32 s23, s23, s24")
    a("s_lshl_b32 s24, s18, 7"); a("s_add_u32 s23, s23, s24"); a("s_add_u32 s22, s22, s23")
    a("v_and_b32 v2, 15, v0"); a("v_lshlrev_b32 v2, 11, v2"); a("v_lshrrev_b32 v3, 4, v0"); a("v_lshl_add_u32 v2, v3, 3, v2")
    a("s_mov_b32 s25, 0xffff0000")
    for sl in range(8):
        a(f"s_waitcnt vmcnt({14 - 2*sl})")
        for j in range(8):
            src = 16 + sl * 8 + j
            if sl == 0:
                a(f"v_lshlrev_b32 v{80+2*j}, 16, v{src}"); a(f"v_and_b32 v{81+2*j}, s25, v{src}")
            else:
                a(f"v_lshlrev_b32 v4, 16, v{src}"); a(f"v_and_b32 v5, s25, v{src}")
                a(f"v_add_f32 v{80+2*j}, v{80+2*j}, v4"); a(f"v_add_f32 v{81+2*j}, v{81+2*j}, v5")
    for j in range(8):
        a(f"v_cvt_pk_bf16_f32 v{8+j}, v{80+2*j}, v{81+2*j}")
    for t in range(4):
        a(f"buffer_store_dwordx2 v[{8+2*t}:{9+2*t}], v2, s[4:7], s22 offen offset:{32*t}")
    a("LR_end:"); a("s_endpgm")
    return "\n".join(L)

HEADER = open('cdna_kernels/' + NAME + '.s.ref').read().split("; Override launch")[0]

def kd(name, nv, acc):
    return f""".amdhsa_kernel {name}
  .amdhsa_next_free_vgpr {nv}
  .amdhsa_next_free_sgpr 102
  .amdhsa_accum_offset {acc}
  .amdhsa_group_segment_fixed_size 0
  .amdhsa_kernarg_size 104
  .amdhsa_user_sgpr_count 2
  .amdhsa_user_sgpr_kernarg_segment_ptr 1
  .amdhsa_system_sgpr_workgroup_id_x 1
.end_amdhsa_kernel
"""

def make(opts):
    vs = opts.get('var', 'XY')
    gens = []
    for v in dict.fromkeys(vs):
        g = Gen(opts, v); g.build()
        if opts.get('roll', 1):
            pins = g.make_pins()
            g = Gen(opts, v); g.sc.pins = pins
            g.build(); g.roll()
        if opts.get('drop'):
            dr = opts['drop'].split(',')
            first = next(j for j, i in enumerate(g.em.out) if i.kind == 'dma' and 'lds' in i.text)
            last = max(j for j, i in enumerate(g.em.out) if i.kind == 'mfma' and 'FB' not in i.text and j < next(t for t, z in enumerate(g.em.out) if z.text == 's_endpgm'))
            g.em.out = [i for j, i in enumerate(g.em.out) if i.kind not in dr or 's[24:27], s40' in i.text or j < first or (j > last and i.kind == 'valu')]
        n = {}
        for i in g.em.out: n[i.kind] = n.get(i.kind, 0) + 1
        sys.stderr.write(f"{v}: instr counts {n} overflow units {g.sc.overflow} nops {g.em.nnop} late {g.sc.softlate[:8]}\n")
        gens.append(g)
    pg = Gen(opts, 'Z'); pg.prologue()
    main = pg.em.text() + "\n"
    if len(gens) == 2:
        main += f"s_cmp_eq_u32 s45, 0\ns_cbranch_scc1 L_path0\ns_branch L_path1\nL_end:\ns_endpgm\nL_path0:\n" + gens[0].em.text() + "\nL_path1:\n" + gens[1].em.text()
    else:
        main += "s_branch L_path0\nL_end:\ns_endpgm\nL_path0:\n" + gens[0].em.text()
    g = gens[0]
    kn = NAME + "_kernel"
    launches = f"; @launch kernel={kn} grid=(256,1,1) block=(256,1,1) lds={LDS_BYTES}\n"
    if not opts.get('dump') and not opts.get('noreduce'):
        launches += f"; @launch kernel=reduce_kernel grid=(640,1,1) block=(256,1,1) lds=0\n"
    t = HEADER + launches + '.amdgcn_target "amdgcn-amd-amdhsa--gfx950"\n.text\n'
    t += f".globl {kn}\n.p2align 8\n.type {kn},@function\n{kn}:\n" + main + "\n"
    t += ".globl reduce_kernel\n.p2align 8\n.type reduce_kernel,@function\nreduce_kernel:\n" + reduce_kernel(opts.get('rflags', '')) + "\n"
    t += '.section .rodata,"a"\n.p2align 6\n' + kd(kn, 512, 256) + ".p2align 6\n" + kd("reduce_kernel", 96, 96)
    return t, g

if __name__ == "__main__":
    opts = {}
    out = sys.argv[1]
    for kv in sys.argv[2:]:
        k, v = kv.split("=", 1)
        opts[k] = int(v) if v.lstrip('-').isdigit() else v
    t, g = make(opts)
    open(out, "w").write(t)
```

```python
import sys, struct, re
from core import *

NAME = "concat_heads__mha_block_cached__mha_block_cached__near_ridge"
LDS_BYTES = 163840
BLK = 16384
RPK = [0, 2, 4, 6]; RPV = [1, 3, 5, 7]
WQB = [3, 4, 5, 6]; WOB = [8, 9, 6, 7]
WBASE = 98304; UBASE = 49152
XAREA = [143360, 122880]; XBASE = 122880

sK, sV, sX, sWq, sWo, sWs = S(4,4), S(8,4), S(12,4), S(16,4), S(20,4), S(24,4)
sW, sXw, sOff, sOwn, sOth = 28, 29, 30, 31, 32
sWave, sP, sI, sRedo = 33, 34, 35, 36
sC = S(38, 2)
vT = [1,2,3,4]; vD = [5,6,7,8]; vU = [9,10,11,12]
vOffK, vOffV, vOffX, vOffWq, vOffWo = 13, 14, 15, 16, 17
vLinW, vLinR, vSt = 18, 19, 20
vX = [76, 77]; vDummy = 78; vZero = 79
L_LO = (127 - 40) << 23; L_HI = (127 + 40) << 23
NEGM, SBUF, PBUF, OACC = 24, 44, 240, 80
NSB = 4
sKV, sLq, sLx, sLo, sCnt = 42, 43, 48, 49, 96
sRot, sT, sHi3 = 98, 99, 97
aQ, aKF, aVF, aST, aL, aONE = 0, 80, 112, 144, 224, 244

def f32(x): return struct.unpack('<I', struct.pack('<f', x))[0]
CSCALE = 1.4426950408889634 * (128 ** -0.5)

class Alloc:
    def __init__(s):
        s.gr = [None] * 40
        s.order = []
    def free_blocks(s):
        return [b for b in range(10) if all(s.gr[4*b+j] is None for j in range(4))]
    def take_block(s, b, who):
        for j in range(4):
            assert s.gr[4*b+j] is None
            s.gr[4*b+j] = who
    def range_free(s, lo, n): return all(s.gr[j] is None for j in range(lo // 4096, (lo + n) // 4096))
    def take_range(s, lo, n, who):
        for j in range(lo // 4096, (lo + n) // 4096):
            assert s.gr[j] is None
            s.gr[j] = who
    def release(s, who):
        for j in range(40):
            if s.gr[j] is who: s.gr[j] = None
    def held(s, cls): return len({id(x) for x in s.gr if isinstance(x, Xfer) and x.cls == cls})

class Xfer:
    def __init__(s, cls, name, pieces, allowed=None, fixed=None):
        s.cls = cls; s.name = name; s.pieces = pieces
        s.allowed = allowed; s.fixed = fixed
        s.addr = None; s.ins = []; s.reads = []; s.issued = 0

class Gen:
    def __init__(s, opts, var):
        s.o = opts; s.var = var; s.pf = var
        s.em = Emitter()
        s.sc = Sched(s.em)
        s.al = Alloc()
        s.sc.ldspace = opts.get('ldspace', 2)
        s.aT = [AddrReg(v) for v in vT]
        s.aD = [AddrReg(v) for v in vD]
        s.aU = [AddrReg(v, base=UBASE) for v in vU]
        s.aX = [AddrReg(v, base=XBASE) for v in vX]
        s.bval = {}
        s.marks = []
        s.fb = {}
        s.kvpair = 0
        s.m0own = None
        s.soff_cur = None
        s.last_dma_gap = {}
        s.gate = {}
        s.stamps = 0
    def try_alloc(s, x, dry):
        if x.addr is not None: return True
        if x.cls in s.gate and not s.gate[x.cls](x): return False
        if x.fixed is not None:
            lo, n = x.fixed
            if not s.al.range_free(lo, n): return False
            if not dry: s.al.take_range(lo, n, x); x.addr = lo
            return True
        fb = [b for b in s.al.free_blocks() if x.allowed is None or b in x.allowed(x)]
        if not fb: return False
        if not dry:
            s.al.take_block(fb[0], x); x.addr = fb[0] * BLK
        return True
    def add_xfer(s, stream, x, earliest=-1, deadline=10**9, spacing=0, prio=5):
        for pi, (srd, voff, sbase, sconst, imm, ldsoff, m0b, flags) in enumerate(x.pieces):
            def mk(pi=pi, srd=srd, voff=voff, sbase=sbase, sconst=sconst, imm=imm, ldsoff=ldsoff, m0b=m0b, flags=flags):
                st = {}
                def peek_m0():
                    if s.m0own is not None: return None
                    if s.sc.g - s.last_dma_gap.get(stream, -999) < (spacing if not (s.o.get('pair') and x.cls == 'kv') else (2 * spacing - 2 if pi % 2 == 0 else 1)) - 1: return None
                    if not s.try_alloc(x, True): return None
                    a = x.addr
                    if a is None:
                        if x.fixed is not None: a = x.fixed[0]
                        else: a = [b for b in s.al.free_blocks() if x.allowed is None or b in x.allowed(x)][0] * BLK
                    val = (a + ldsoff - imm - s.bval.get(m0b, 0)) & 0xffffffff
                    return ('salu', salu(f"s_add_u32 m0, s{m0b}, 0x{val:x}", ['m0'], [S(m0b)]), True)
                def commit_m0(ins, c):
                    s.try_alloc(x, False); s.m0own = stream
                    for it in st['next']:
                        if not it.pinned: it.deadline = min(it.deadline, s.sc.g + (5 if rot else 3))
                rot = (x.cls == 'kv')
                def peek_so():
                    key = (sbase, sconst)
                    if s.soff_cur == key: st['skip'] = True; return ('skip', None, True)
                    st['skip'] = False
                    c = sconst & 0x1ffff if rot else sconst
                    if sbase is None: i = salu(f"s_mov_b32 s{sOff}, 0x{c:x}", [S(sOff)])
                    elif rot: i = salu(f"s_add_u32 s{sOff}, s{sbase}, 0x{(c - s.bval.get(sbase, 0)) & 0x1ffff:x}", [S(sOff)], [S(sbase)])
                    else: i = salu(f"s_add_u32 s{sOff}, s{sbase}, 0x{(c - s.bval.get(sbase, 0)) & 0xffffffff:x}", [S(sOff)], [S(sbase)])
                    return ('salu', i, True)
                def commit_so(ins, c): s.soff_cur = (sbase, sconst)
                def peek_so2():
                    if st['skip']: return ('skip', None, True)
                    return ('salu', salu(f"s_and_b32 s{sOff}, s{sOff}, 0x1ffff", [S(sOff)], [S(sOff)]), True)
                def peek_so3():
                    if st['skip']: return ('skip', None, True)
                    if getattr(x, 'dynhi', False): return ('salu', salu(f"s_add_u32 s{sOff}, s{sOff}, s{sHi3}", [S(sOff)], [S(sOff), S(sHi3)]), True)
                    d = (sconst >> 17) - s.kvpair
                    if d == 0: return ('skip', None, True)
                    return ('salu', salu(f"s_add_u32 s{sOff}, s{sOff}, 0x{d << 17:x}", [S(sOff)], [S(sOff)]), True)
                def peek_dma():
                    t = f"buffer_load_dwordx4 v{voff}, {srd}, s{sOff} offen" + (f" offset:{imm}" if imm else "") + (f" {flags}" if flags else "") + " lds"
                    return ('dma', Ins(t, 'dma', rd=[f"v{voff}", f"s{sOff}", 'm0'] + srd.regs()), True)
                def commit_dma(ins, c):
                    ins.tag = (x, srd, voff, sbase, sconst, imm, ldsoff, m0b, flags)
                    s.m0own = None; x.ins.append(ins); x.issued += 1; s.last_dma_gap[stream] = s.sc.g
                s.sc.item(stream, Item(peek_m0, earliest, deadline, prio, f"{x.name}.m0.{pi}", commit_m0))
                st['next'] = [s.sc.item(stream, Item(peek_so, earliest, deadline, prio, f"{x.name}.so.{pi}", commit_so))]
                if rot:
                    st['next'].append(s.sc.item(stream, Item(peek_so2, earliest, deadline, prio, f"{x.name}.so2.{pi}")))
                    st['next'].append(s.sc.item(stream, Item(peek_so3, earliest, deadline, prio, f"{x.name}.so3.{pi}")))
                st['next'].append(s.sc.item(stream, Item(peek_dma, earliest, deadline, prio, f"{x.name}.dma.{pi}", commit_dma)))
            mk()
    def blk_pieces(s, srd, voff, sbase, c0, rowstep16, cbstep, flags="", sW=sW):
        P = []
        for hi in (0, 1):
            for cb in (0, 1):
                if cbstep < 4096: P.append((srd, voff, sbase, c0 + hi * rowstep16, cb * cbstep, cb * 4096 + hi * 2048, sW, flags))
                else: P.append((srd, voff, sbase, c0 + hi * rowstep16 + cb * cbstep, 0, cb * 4096 + hi * 2048, sW, flags))
        return P
    def xf_K(s, n, m0b=sW): return Xfer('kv', f"K{n}", s.blk_pieces(sK, vOffK, sKV, n * 8192, 4096, 128, s.o.get('kvflags', 'nt'), m0b), fixed=(RPK[n % 4] * BLK, BLK))
    def xf_V(s, n, m0b=sW): return Xfer('kv', f"V{n}", s.blk_pieces(sV, vOffV, sKV, n * 8192, 4096, 128, s.o.get('kvflags', 'nt'), m0b), fixed=(RPV[n % 4] * BLK, BLK))
    def xf_Wq(s, r, k): return Xfer('wq', f"Wq{r}.{k}", s.blk_pieces(sWq, vOffWq, sLq, k * 32 * 8192 + r * 256, 16 * 8192, 128, s.o.get('wqflags', '')), fixed=(WQB[k % 4] * BLK, BLK))
    def xf_X(s, r, c):
        P = [(sX, vOffX, sLx, m * 16384 + (c >> 1) * 256, (c & 1) * 128, m * 2048, sXw, s.o.get('xflags', '')) for m in range(5)]
        return Xfer('x', f"X{r}.{c}", P, fixed=(XAREA[c & 1], 20480))
    def xf_Wo(s, ch, m):
        grp = m // 2; sb = sOwn if grp < 2 else sOth
        hrow = 128 if grp in (0, 2) else 0
        k0 = hrow + (m & 1) * 64
        return Xfer('wo', f"Wo{ch}.{m}", s.blk_pieces(sWo, vOffWo, sb, k0 * 1024 + ch * 128, 16 * 1024, 32 * 1024, s.o.get('woflags', '')), fixed=(WOB[m % 4] * BLK, BLK))
    def xf_WoH(s, r, ch, m):
        sb = sOwn if m < 2 else sOth
        k0 = 128 * r + (m & 1) * 64
        return Xfer('wo', f"WoH{r}.{ch}.{m}", s.blk_pieces(sWo, vOffWo, sb, k0 * 1024 + ch * 128, 16 * 1024, 32 * 1024, s.o.get('woflags', '')), fixed=(WOB[m % 4] * BLK, BLK))
    def mark(s, idx, group, incs):
        def fn():
            if group: s.em.raw(Ins(f"; MARK {group}", 'comment', tag=('mark', group))); s.marks.append((group, idx))
            n = 0
            for sg, d in incs.items():
                if sg == 'hi3':
                    s.em.raw(salu(f"s_add_u32 s{sT}, s{sT}, 0xc000", [S(sT)], [S(sT)])); s.em.raw(salu(f"s_and_b32 s{sHi3}, s{sT}, 0x20000", [S(sHi3)], [S(sT)])); n += 2
                elif sg == 'vx': s.em.emit(valu(f"v_add_u32 v{vOffX}, 0x{d & 0xffffffff:x}, v{vOffX}", [V(vOffX)], [V(vOffX)])); n += 1
                else: s.em.raw(salu(f"s_add_u32 s{sg}, s{sg}, 0x{d & 0xffffffff:x}", [S(sg)], [S(sg)])); n += 1
                s.bval[sg] = s.bval.get(sg, 0) + d
            s.soff_cur = None
            return n
        s.sc.post(idx, fn)
        if group: s.sc.markidx.append(idx)
    def setbase(s, idx, sg, val=0):
        def fn():
            s.em.raw(salu(f"s_mov_b32 s{sg}, 0x{val:x}", [S(sg)])); s.bval[sg] = val; s.soff_cur = None; return 1
        s.sc.post(idx, fn)
    def touch_item(s, stream, srd, voff, sbase, sconst, flags, earliest, deadline, name):
        mk = lambda: salu(f"s_mov_b32 s41, 0x{sconst:x}", [S(41)]) if sbase is None else salu(f"s_add_u32 s41, s{sbase}, 0x{(sconst - s.bval.get(sbase, 0)) & 0xffffffff:x}", [S(41)], [S(sbase)])
        ld = Ins(f"buffer_load_dword v22, v{voff}, {srd}, s41 offen {flags}", 'dma', rd=[f"v{voff}", 's41'] + srd.regs())
        s.sc.item(stream, Item(lambda: ('salu', mk(), True), earliest=earliest, deadline=deadline, prio=7, name=name))
        s.sc.item(stream, simple(ld, earliest=earliest, deadline=deadline + 2, prio=7, name=name))
    def ds_item(s, stream, op, dst, ar, x, off, wb, earliest, deadline, prio=1, name=""):
        tgt = lambda: (x.fixed[0] + off, wb)
        def peek():
            t = tgt()
            assert x.addr is not None, (x.name, "read before alloc")
            if not ar.reach(t): return ('valu', ar.rebase_ins(t), False)
            assert 0 <= t[0] - ar.base <= 65535
            return ('ds_r', Ins(f"{op} {dst}, v{ar.v} offset:{t[0] - ar.base}", 'ds_r', rd=[f"v{ar.v}"], wr=dst.regs()), True)
        def commit(ins, consume):
            if consume: x.reads.append(ins); ins.tag = (ar, ar.base)
            else: ar.rebased(tgt())
        return s.sc.item(stream, Item(peek, earliest, deadline, prio, name, commit, areg=(ar, tgt)))
    def rd_V(s, stream, frag, x, t, e0, dl, name=""):
        wb = (x.fixed[0] // 65536) * 65536
        for rd in (0, 1):
            s.ds_item(stream, "ds_read_b64_tr_b16", frag.sub(2 * rd, 2), s.aT[t & 3], x, (t >> 2) * 4096 + rd * 2048, wb, e0, dl, name=name)
    def rd_Wq(s, stream, frag, x, t, e0, dl, name=""):
        for rd in (0, 1):
            s.ds_item(stream, "ds_read_b64_tr_b16", frag.sub(2 * rd, 2), s.aU[t & 3], x, (t >> 2) * 4096 + rd * 512, UBASE, e0, dl, name=name)
    def rd_K(s, stream, frag, x, kt, u, e0, dl, name=""):
        wb = (x.fixed[0] // 65536) * 65536
        for pc in (0, 1):
            s.ds_item(stream, "ds_read_b64", frag.sub(2 * pc, 2), s.aD[2 * (u & 1) + pc], x, (u >> 1) * 4096 + kt * 2048, wb, e0, dl, name=name)
    def rd_X(s, stream, frag, x, k, qb, e0, dl, name=""):
        s.ds_item(stream, "ds_read_b128", frag, s.aX[k & 1], x, qb * 2048, XBASE, e0, dl, name=name)
    def sync_at(s, idx, need, free):
        def fn():
            n = 0
            for x in need: assert x.issued == len(x.pieces), (x.name, "not issued by sync", s.sc.g)
            vm = s.em.vm_needed([i for x in need for i in x.ins])
            lg = s.em.lgkm_needed([i for x in free for i in x.reads])
            for x in free: assert len(x.reads) == x.nreads, (x.name, len(x.reads), x.nreads, s.sc.g)
            if s.em.wait(lg, vm): n += 1
            s.em.raw(Ins("s_barrier", 'barrier')); n += 1
            for x in free: s.al.release(x)
            return n
        s.sc.post(idx, fn)
    def stamp(s, idx):
        if not s.o.get('stamps'): return
        k = s.stamps; s.stamps += 1
        def fn():
            s.em.raw(Ins(f"s_memtime s[{50+2*k}:{51+2*k}]", 'salu'))
            return 1
        s.sc.post(idx, fn)

    def prologue(s):
        e = s.em.emit
        sa = lambda t, w=(), r=(): e(salu(t, w, r))
        va = lambda t, w, r: e(valu(t, w, r))
        sa("s_cmp_ge_u32 s2, 256"); e(Ins("s_cbranch_scc1 L_end", 'salu'))
        if s.o.get('stamps'):
            e(Ins("s_memtime s[94:95]", 'salu')); e(Ins("s_memrealtime s[90:91]", 'salu'))
        e(Ins("s_load_dwordx16 s[64:79], s[0:1], 0", 'salu'))
        e(Ins("s_load_dwordx8 s[80:87], s[0:1], 64", 'salu'))
        e(Ins("s_load_dwordx2 s[88:89], s[0:1], 96", 'salu'))
        va("v_lshrrev_b32 v21, 6, v0", [V(21)], [V(0)])
        sa("s_and_b32 s40, s2, 7"); sa("s_lshr_b32 s41, s2, 3"); sa("s_lshr_b32 s42, s40, 2"); sa("s_and_b32 s43, s40, 3")
        va(f"v_readfirstlane_b32 s{sWave}, v21", [S(sWave)], [V(21)])
        sa("s_lshr_b32 s44, s41, 1"); sa("s_and_b32 s45, s41, 1")
        sa("s_lshl_b32 s46, s43, 3"); sa("s_lshl_b32 s47, s45, 2"); sa("s_add_u32 s46, s46, s47")
        sa(f"s_lshr_b32 s{sP}, s{sWave}, 1", [S(sP)], [S(sWave)]); sa(f"s_and_b32 s{sI}, s{sWave}, 1")
        sa(f"s_mov_b32 s{sRedo}, 0")
        va("v_and_b32 v0, 63, v0", [V(0)], [V(0)])
        va("v_lshrrev_b32 v21, 5, v0", [V(21)], [V(0)])
        va("v_lshlrev_b32 v21, 10, v21", [V(21)], [V(21)])
        va("v_bfe_u32 v22, v0, 2, 3", [V(22)], [V(0)])
        va("v_lshl_add_u32 v21, v22, 7, v21", [V(21)], [V(22), V(21)])
        va("v_and_b32 v23, 3, v0", [V(23)], [V(0)])
        va("v_lshl_add_u32 v21, v23, 3, v21", [V(21)], [V(23), V(21)])
        sa(f"s_lshl_b32 s48, s{sP}, 13")
        va("v_add_u32 v21, s48, v21", [V(21)], [V(21)])
        va("v_lshrrev_b32 v22, 1, v22", [V(22)], [V(22)])
        for ee in range(4):
            va(f"v_xor_b32 v23, {ee}, v22", [V(23)], [V(22)])
            va(f"v_lshl_add_u32 v{vT[ee]}, v23, 5, v21", [V(vT[ee])], [V(23), V(21)])
        va("v_bfe_u32 v21, v0, 3, 1", [V(21)], [V(0)])
        va("v_lshlrev_b32 v21, 10, v21", [V(21)], [V(21)])
        va("v_and_b32 v22, 7, v0", [V(22)], [V(0)])
        va("v_lshl_add_u32 v21, v22, 7, v21", [V(21)], [V(22), V(21)])
        va("v_bfe_u32 v22, v0, 4, 1", [V(22)], [V(0)])
        va("v_lshl_add_u32 v21, v22, 3, v21", [V(21)], [V(22), V(21)])
        va("v_bfe_u32 v22, v0, 1, 3", [V(22)], [V(0)])
        va("v_lshrrev_b32 v23, 5, v0", [V(23)], [V(0)])
        va("v_xor_b32 v22, v23, v22", [V(22)], [V(23), V(22)])
        for j in range(4):
            va(f"v_xor_b32 v23, {2*j}, v22", [V(23)], [V(22)])
            va(f"v_lshl_add_u32 v23, v23, 4, v21", [V(23)], [V(23), V(21)])
            va(f"v_add_u32 v{vD[j]}, s48, v23", [V(vD[j])], [V(23)])
        va("v_lshrrev_b32 v21, 4, v0", [V(21)], [V(0)])
        va("v_lshlrev_b32 v21, 10, v21", [V(21)], [V(21)])
        va("v_bfe_u32 v22, v0, 2, 2", [V(22)], [V(0)])
        va("v_lshl_add_u32 v21, v22, 7, v21", [V(21)], [V(22), V(21)])
        va("v_and_b32 v23, 3, v0", [V(23)], [V(0)])
        va("v_lshl_add_u32 v21, v23, 3, v21", [V(21)], [V(23), V(21)])
        sa(f"s_add_u32 s49, s48, {UBASE}")
        va("v_add_u32 v21, s49, v21", [V(21)], [V(21)])
        va("v_bfe_u32 v22, v0, 3, 2", [V(22)], [V(0)])
        for ee in range(4):
            va(f"v_xor_b32 v23, {ee}, v22", [V(23)], [V(22)])
            va(f"v_lshl_add_u32 v{vU[ee]}, v23, 5, v21", [V(vU[ee])], [V(23), V(21)])
        va("v_lshrrev_b32 v21, 3, v0", [V(21)], [V(0)])
        va("v_and_b32 v22, 7, v0", [V(22)], [V(0)])
        va("v_lshrrev_b32 v23, 4, v0", [V(23)], [V(0)])
        sa(f"s_lshl_b32 s50, s{sI}, 2")
        va(f"v_add_u32 v{vLinW}, s50, v23", [V(vLinW)], [V(23)])
        va(f"v_xor_b32 v{vLinW}, v22, v{vLinW}", [V(vLinW)], [V(22), V(vLinW)])
        va(f"v_lshlrev_b32 v{vLinW}, 4, v{vLinW}", [V(vLinW)], [V(vLinW)])
        va(f"v_lshlrev_b32 v23, 1, v23", [V(23)], [V(23)])
        va(f"v_xor_b32 v23, v22, v23", [V(23)], [V(22), V(23)])
        va(f"v_lshlrev_b32 v23, 4, v23", [V(23)], [V(23)])
        sa(f"s_lshl_b32 s50, s{sI}, 3")
        va(f"v_add_u32 v22, s50, v21", [V(22)], [V(21)])
        va(f"v_lshl_add_u32 v{vOffK}, v22, 8, v{vLinW}", [V(vOffK)], [V(22), V(vLinW)])
        va(f"v_lshl_add_u32 v{vOffV}, v22, 8, v23", [V(vOffV)], [V(22), V(23)])
        va(f"v_lshl_add_u32 v{vOffWo}, v22, 10, v23", [V(vOffWo)], [V(22), V(23)])
        va(f"v_bfe_u32 v23, v0, 4, 1", [V(23)], [V(0)])
        sa(f"s_lshl_b32 s50, s{sI}, 1")
        va(f"v_add_u32 v23, s50, v23", [V(23)], [V(23)])
        va(f"v_lshlrev_b32 v23, 1, v23", [V(23)], [V(23)])
        va(f"v_and_b32 v21, 7, v0", [V(21)], [V(0)])
        va(f"v_xor_b32 v23, v21, v23", [V(23)], [V(21), V(23)])
        va(f"v_lshlrev_b32 v23, 4, v23", [V(23)], [V(23)])
        va(f"v_lshl_add_u32 v{vOffWq}, v22, 13, v23", [V(vOffWq)], [V(22), V(23)])
        sa(f"s_mul_i32 s50, s{sP}, 80")
        va(f"v_add_u32 v22, s50, v22", [V(22)], [V(22)])
        va(f"v_lshl_add_u32 v{vOffX}, v22, 10, v{vLinW}", [V(vOffX)], [V(22), V(vLinW)])
        va("v_and_b32 v21, 15, v0", [V(21)], [V(0)])
        va("v_lshlrev_b32 v21, 7, v21", [V(21)], [V(21)])
        sa(f"s_mul_i32 s49, s{sI}, 10240"); sa(f"s_add_u32 s49, s49, {XBASE}")
        va("v_add_u32 v21, s49, v21", [V(21)], [V(21)])
        va("v_bfe_u32 v22, v0, 1, 3", [V(22)], [V(0)])
        va("v_lshrrev_b32 v23, 4, v0", [V(23)], [V(0)])
        va("v_xor_b32 v22, v23, v22", [V(22)], [V(23), V(22)])
        va(f"v_lshl_add_u32 v{vX[0]}, v22, 4, v21", [V(vX[0])], [V(22), V(21)])
        va("v_xor_b32 v22, 4, v22", [V(22)], [V(22)])
        va(f"v_lshl_add_u32 v{vX[1]}, v22, 4, v21", [V(vX[1])], [V(22), V(21)])
        va(f"v_lshlrev_b32 v{vSt}, 4, v0", [V(vSt)], [V(0)])
        sa(f"s_lshl_b32 s50, s{sI}, 10"); sa(f"s_add_u32 s{sW}, s48, s50", [S(sW)])
        sa(f"s_mul_i32 s51, s{sP}, 10240"); sa(f"s_add_u32 s{sXw}, s51, s50", [S(sXw)])
        sa(f"s_lshl_b32 s{sOwn}, s{sP}, 18"); sa(f"s_xor_b32 s{sOth}, s{sOwn}, 0x40000")
        sa(f"s_mov_b32 s{sC.lo}, 0x{f32(CSCALE):x}"); sa(f"s_mov_b32 s{sC.lo+1}, 0x{f32(CSCALE):x}")
        e(Ins("s_waitcnt lgkmcnt(0)", 'wait'))
        sa("s_cmp_eq_u32 s42, 0")
        sa("s_cselect_b64 s[12:13], s[64:65], s[74:75]"); sa("s_cselect_b64 s[4:5], s[66:67], s[76:77]")
        sa("s_cselect_b64 s[8:9], s[68:69], s[78:79]"); sa("s_cselect_b64 s[16:17], s[70:71], s[80:81]")
        sa("s_cselect_b64 s[20:21], s[72:73], s[82:83]")
        def add64(lo, off):
            sa(f"s_add_u32 s{lo}, s{lo}, {off}"); sa(f"s_addc_u32 s{lo+1}, s{lo+1}, 0")
        sa("s_mul_i32 s50, s44, 163840"); add64(12, "s50"); sa("s_mov_b32 s14, 163840"); sa("s_mov_b32 s15, 0x20000")
        sa(f"s_lshl_b32 s51, s{sP}, 1"); sa(f"s_add_u32 s51, s46, s51")
        sa("s_lshl_b32 s50, s51, 8"); add64(16, "s50"); sa("s_sub_u32 s18, 0x400000, s50"); sa("s_mov_b32 s19, 0x20000")
        sa("s_lshl_b32 s50, s44, 5"); sa("s_add_u32 s50, s50, s51"); sa("s_lshl_b32 s50, s50, 17")
        add64(4, "s50"); sa("s_mov_b32 s6, 0x40000"); sa("s_mov_b32 s7, 0x20000")
        add64(8, "s50"); sa("s_mov_b32 s10, 0x40000"); sa("s_mov_b32 s11, 0x20000")
        sa("s_lshl_b32 s50, s46, 17"); sa(f"s_lshl_b32 s51, s{sP}, 9"); sa("s_add_u32 s50, s50, s51")
        add64(20, "s50"); sa("s_sub_u32 s22, 0x80000, s51"); sa("s_mov_b32 s23, 0x20000")
        sa("s_lshl_b32 s50, s42, 4"); sa("s_add_u32 s50, s50, s44"); sa("s_lshl_b32 s50, s50, 3")
        sa("s_lshl_b32 s51, s43, 1"); sa("s_add_u32 s50, s50, s51"); sa("s_add_u32 s50, s50, s45")
        sa("s_mul_i32 s50, s50, 163840"); sa(f"s_mul_i32 s51, s{sWave}, 40960"); sa("s_add_u32 s50, s50, s51")
        sa("s_mov_b32 s24, s88"); sa("s_mov_b32 s25, s89"); add64(24, "s50"); sa("s_mov_b32 s26, 40960"); sa("s_mov_b32 s27, 0x20000")
        if s.o.get('ikr'):
            sa("s_lshl_b32 s50, s42, 4"); sa("s_add_u32 s50, s50, s44")
            sa("s_lshl_b32 s51, s43, 1"); sa("s_add_u32 s51, s51, s45")
            sa("s_mul_i32 s52, s50, 1310720"); sa("s_add_u32 s76, s88, s52"); sa("s_addc_u32 s77, s89, 0"); sa("s_mov_b32 s78, 1310720"); sa("s_mov_b32 s79, 0x20000")
            sa("s_lshl_b32 s52, s50, 8"); sa("s_add_u32 s52, s52, 0x3000000"); sa("s_add_u32 s80, s88, s52"); sa("s_addc_u32 s81, s89, 0"); sa("s_mov_b32 s82, 256"); sa("s_mov_b32 s83, 0x20000")
            sa("s_lshl_b32 s52, s50, 2"); sa("s_add_u32 s86, s86, s52"); sa("s_addc_u32 s87, s87, 0")
            sa("s_lshr_b32 s52, s51, 1"); sa("s_mul_i32 s74, s52, 40960"); sa(f"s_mul_i32 s53, s{sWave}, 10"); sa("s_and_b32 s54, s51, 1"); sa("s_add_u32 s53, s53, s54"); sa("s_lshl_b32 s53, s53, 10"); sa("s_add_u32 s74, s74, s53")
            sa("s_and_b32 s53, s52, 1"); sa("s_mul_i32 s53, s53, 80"); sa("s_mul_i32 s75, s44, 160"); sa("s_add_u32 s75, s75, s53"); sa("s_lshl_b32 s75, s75, 11")
            sa("s_lshl_b32 s53, s42, 10"); sa("s_add_u32 s75, s75, s53"); sa("s_lshr_b32 s53, s52, 1"); sa("s_lshl_b32 s53, s53, 9"); sa("s_add_u32 s75, s75, s53")
            sa(f"s_lshl_b32 s53, s{sWave}, 7"); sa("s_add_u32 s75, s75, s53"); sa("s_lshl_b32 s53, s54, 6"); sa("s_add_u32 s75, s75, s53")
        for sg in (sLq, sLx): sa(f"s_mov_b32 s{sg}, 0")
        rm = s.o.get('rot', 5)
        if rm == 0: sa(f"s_mov_b32 s{sRot}, 0")
        elif rm == 5:
            sa(f"s_mul_i32 s{sRot}, s2, 5"); sa(f"s_add_u32 s{sRot}, s{sRot}, s41"); sa(f"s_mul_i32 s50, s{sP}, 7"); sa(f"s_add_u32 s{sRot}, s{sRot}, s50")
        elif rm == 1:
            sa(f"s_lshl_b32 s{sRot}, s{sP}, 3"); sa(f"s_add_u32 s{sRot}, s{sRot}, s44")
        elif rm == 2:
            sa(f"s_lshl_b32 s{sRot}, s40, 1"); sa(f"s_add_u32 s{sRot}, s{sRot}, s41"); sa(f"s_mul_i32 s50, s{sP}, 7"); sa(f"s_add_u32 s{sRot}, s{sRot}, s50")
        elif rm == 3:
            sa(f"s_mul_i32 s{sRot}, s44, 3"); sa(f"s_lshl_b32 s50, s{sP}, 1"); sa("s_add_u32 s50, s50, s46"); sa("s_lshr_b32 s50, s50, 1"); sa("s_mul_i32 s50, s50, 5"); sa(f"s_add_u32 s{sRot}, s{sRot}, s50")
        elif rm == 4:
            sa(f"s_lshl_b32 s50, s2, 1"); sa(f"s_add_u32 s50, s50, s{sP}"); sa(f"s_mul_i32 s50, s50, 0x9e3779b1"); sa(f"s_lshr_b32 s{sRot}, s50, 28")
        sa(f"s_and_b32 s{sRot}, s{sRot}, 15"); sa(f"s_lshl_b32 s{sRot}, s{sRot}, 13"); sa(f"s_mov_b32 s{sKV}, s{sRot}")
        sa("s_lshl_b32 s50, s44, 5"); sa(f"s_lshl_b32 s51, s{sI}, 4"); sa("s_add_u32 s50, s50, s51")
        va("v_lshrrev_b32 v21, 2, v0", [V(21)], [V(0)])
        va("v_add_u32 v21, s50, v21", [V(21)], [V(21)])
        if s.o.get('wt') == 1:
            va("v_and_b32 v22, 3, v0", [V(22)], [V(0)])
            va("v_lshlrev_b32 v22, 7, v22", [V(22)], [V(22)])
            va("v_lshl_add_u32 v23, v21, 10, v22", [V(23)], [V(21), V(22)])
        else:
            va("v_and_b32 v22, 1, v0", [V(22)], [V(0)])
            va("v_lshlrev_b32 v22, 6, v22", [V(22)], [V(22)])
            va("v_lshl_add_u32 v23, v21, 10, v22", [V(23)], [V(21), V(22)])
        va("v_and_b32 v22, 3, v0", [V(22)], [V(0)])
        va("v_lshlrev_b32 v22, 6, v22", [V(22)], [V(22)])
        va("v_lshl_add_u32 v21, v21, 13, v22", [V(21)], [V(21), V(22)])
        if s.o.get('ikr'):
            va("v_mov_b32 v78, 0", [V(78)], [])
            e(Ins("buffer_load_dword v0, v78, s[80:83], 0 offen sc1", 'dma', rd=['v78']))

    def valu_block(s, L, every=4):
        first = s.sc.n()
        for j, ins in enumerate(L):
            s.sc.add(ins, cap=(2 if (j % every) == every - 1 else 0))
        return first, s.sc.n() - 1

    def setup(s):
        o = s.o
        s.Wq = [[s.xf_Wq(r, k) for k in range(17)] for r in range(2)]
        s.X = [[s.xf_X(r, c) for c in range(8)] for r in range(2)]
        s.K = [s.xf_K(n) for n in range(33)]; s.Vv = [s.xf_V(n) for n in range(33)]
        for x in s.Wq[0] + s.Wq[1] + s.K + s.Vv: x.nreads = 16
        for x in s.X[0] + s.X[1]: x.nreads = 10
        for x in (s.Wq[0][16], s.Wq[1][16], s.K[32], s.Vv[32]): x.nreads = 0
        for n in (8, 12, 16, 24, 28, 32): s.K[n].dynhi = True; s.Vv[n].dynhi = True
        s.sp_st = o.get('sp_stage', 3); s.sp_kv = o.get('sp_kv', 6)
        s.pre_free = []

    def start(s):
        o = s.o; sc = s.sc
        g0 = sc.add(None, cap=0); s.g0 = g0
        s.stamp(g0)
        init = [valu(f"v_mov_b32 v44, 0x3f803f80", [V(44)], []), valu(f"v_mov_b32 v{vZero}, 0", [V(vZero)], [])]
        init += [valu(f"v_accvgpr_write_b32 a{aONE+j}, v44", [A(aONE + j)], [V(44)]) for j in range(4)]
        init += [valu(f"v_mov_b32 v{NEGM+j}, 0", [V(NEGM + j)], []) for j in range(20)]
        exs = 20480 if s.var != 'X' else 10240; exb = 0 if s.var != 'X' else 32768
        init += [salu(f"s_mul_i32 s46, s{sWave}, {exs}", [S(46)]), salu(f"s_add_u32 s46, s46, {exb}", [S(46)]),
                 valu(f"v_add_u32 v{vLinW}, s46, v{vSt}", [V(vLinW)], [V(vSt)]),
                 salu(f"s_xor_b32 s47, s{sWave}, 2", [S(47)]), salu(f"s_mul_i32 s47, s47, {exs}", [S(47)]), salu(f"s_add_u32 s47, s47, {exb}", [S(47)]),
                 valu(f"v_add_u32 v{vLinR}, s47, v{vSt}", [V(vLinR)], [V(vSt)])]
        if o.get('kvt'):
            init += [salu(f"s_cmp_eq_u32 s{sI}, 0"), salu("s_cselect_b64 s[100:101], s[4:5], s[8:9]" if not o.get('kvtm') else "s_mov_b64 s[100:101], s[4:5]"), salu("s_cselect_b32 s46, 8192, 0", [S(46)]),
                     valu(f"v_lshlrev_b32 v78, 3, v{vSt}", [V(78)], [V(vSt)]), valu(f"v_add_u32 v78, s46, v78", [V(78)], [V(78)]),
                     salu("s_mov_b32 s44, s100"), salu("s_mov_b32 s45, s101"), salu("s_mov_b32 s46, 0x40000"), salu("s_mov_b32 s47, 0x20000"), salu("s_mov_b32 s97, 0")]
        for x in (s.X[0][0], s.Wq[0][0], s.Wq[0][1], s.X[0][1], s.Wq[0][2], s.Wq[0][3]): s.add_xfer('stage', x, earliest=g0, deadline=g0, prio=0)
        gt = sc.add(None, cap=0)
        if 'q' in str(o.get('t0', '')):
            sc.item('tch', simple(Ins(f"buffer_load_dword v22, v21, {sWq}, 0 offen {o.get('t0qf', '')}", 'dma', rd=['v21']), earliest=gt, deadline=gt))
        if o.get('ct'):
            pf = s.pf
            init += [salu("s_getpc_b64 s[100:101]"), Ins(f"L_{pf}pc:", 'label'),
                     salu("s_lshr_b32 s46, s2, 3", [S(46)]), salu("s_lshl_b32 s46, s46, 2", [S(46)]), salu(f"s_add_u32 s46, s46, s{sWave}", [S(46)]), salu("s_lshl_b32 s46, s46, 9", [S(46)]),
                     valu(f"v_and_b32 v80, 48, v{vSt}", [V(80)], [V(vSt)]), valu("v_lshlrev_b32 v80, 3, v80", [V(80)], [V(80)]), valu("v_add_u32 v80, s46, v80", [V(80)], [V(80)]),
                     valu(f"v_min_u32 v80, L_{pf}end-L_{pf}pc, v80", [V(80)], [V(80)]), valu("v_mov_b32 v81, s101", [V(81)], []),
                     valu("v_add_co_u32 v80, vcc, s100, v80", [V(80), 'vcc'], [V(80)]), valu("v_addc_co_u32 v81, vcc, 0, v81, vcc", [V(81), 'vcc'], [V(81), 'vcc']),
                     Ins("global_load_dword v22, v[80:81], off", 'dma', rd=['v80', 'v81'])]
        a_, b_ = s.valu_block(init)
        s.presync = b_; s.first_dl = None

    def phase_Q(s, r, dst, nxt, k0order=None):
        o = s.o; sc = s.sc; Wq = s.Wq; X = s.X; K = s.K; Vv = s.Vv; sp_st = s.sp_st
        wqf = lambda k, t: A((aKF if k % 2 == 0 else aVF) + 4 * t, 4)
        xf = lambda k, qb: A(aQ + (k % 2) * 20 + 4 * qb, 4)
        pre = s.presync
        q0 = sc.n()
        s.sync_at(pre, [Wq[r][0], X[r][0]], s.pre_free); s.pre_free = []
        for t in range(8): s.rd_Wq('rdT', wqf(0, t), Wq[r][0], t, pre, q0 - 1, name=f"wq{r}.0.{t}")
        for qb in range(5): s.rd_X('rdD', xf(0, qb), X[r][0], 0, qb, pre, q0 - 1, name=f"x{r}.0.{qb}")
        base = {}; s.qpos0 = {}
        for k in range(16):
            base[k] = sc.n()
            for qb in (k0order if (k == 0 and k0order) else range(5)):
                for t in range(8):
                    acc = V(OACC + qb * 32 + t * 4, 4)
                    i = sc.add(mfma(acc, wqf(k, t), xf(k, qb), acc if k else 0))
                    if k == 0: s.qpos0[acc.lo] = i
        qend = sc.n() - 1
        s.qbase = base
        if o.get('ikr') and r == 0:
            def announce():
                em = s.em
                em.raw(salu(f"s_cmp_lg_u32 s{sWave}, 0")); em.raw(Ins(f"s_cbranch_scc1 L_{s.pf}ann", 'salu'))
                for t in ("s_mov_b32 s44, s86", "s_mov_b32 s45, s87", "s_mov_b32 s46, 4", "s_mov_b32 s47, 0x20000", "s_mov_b64 exec, 1"): em.raw(salu(t))
                em.raw(valu("v_mov_b32 v22, 1", [V(22)], []))
                em.raw(Ins("buffer_atomic_add v22, v78, s[44:47], 0 offen", 'salu'))
                em.raw(salu("s_mov_b64 exec, -1"))
                em.raw(Ins(f"L_{s.pf}ann:", 'label')); em.raw(Ins("s_nop 4", 'nop', states=5))
                return 3
            sc.post(pre, announce)
        for k in range(16):
            bs = base[k]
            if k in (1, 5, 9, 13):
                inc = {sLq: 4 * 32 * 8192, sLx: 256} if k < 13 else {}
                if o.get('kvt') and nxt == 'A' and k < 13:
                    m = o['kvt']
                    mul = 2 if o.get('kvtm') else 1
                    inc[97] = 8192 * m * mul
                    for jj in range(m):
                        e0 = bs + o.get('kvt_at', 20) + jj * (160 // m)
                        off = (s.nextA * 16 + o.get('kvts', 1) + ((k // 4) * m + jj) * mul) * 8192
                        s.touch_item('tch', S(44, 4), 78, 97, off, o.get('kvtf', 'nt'), e0, e0 + 10, "kvt")
                        if o.get('kvth'): s.touch_item('tch', S(44, 4), 78, 97, off + 64, o.get('kvtf', 'nt'), e0 + 2, e0 + 14, "kvt")
                s.mark(bs - 1, f"Q{r}", inc)
            if k < 15:
                need = [Wq[r][k + 1]] + ([X[r][(k + 1) // 2]] if (k + 1) % 2 == 0 else [])
                free = [Wq[r][k]] + ([X[r][k // 2]] if k % 2 == 1 else [])
                if k == 13: need.append(Wq[r][16]); free.append(Wq[r][16])
                s.sync_at(bs, need, free)
                for t in range(8): s.rd_Wq('rdT', wqf(k + 1, t), Wq[r][k + 1], t, bs, bs + 32, name=f"wq{r}.{k+1}.{t}")
                for qb in range(5): s.rd_X('rdD', xf(k + 1, qb), X[r][(k + 1) // 2], k + 1, qb, bs, bs + 32, name=f"x{r}.{k+1}.{qb}")
            else:
                s.sync_at(bs, [], [Wq[r][15], X[r][7]])
            if k % 2 == 1 and (k + 3) // 2 < 8: s.add_xfer('stage', X[r][(k + 3) // 2], earliest=bs, deadline=bs + 30, prio=0, spacing=sp_st)
            if k + 4 <= 16: s.add_xfer('stage', Wq[r][k + 4], earliest=bs, deadline=bs + 38, prio=0, spacing=sp_st)
        if o.get('qst') and r == o['qst'] - 1:
            s.stamp(base[0]); s.stamp(base[1] - 2); s.stamp(base[13])
        s.stamp(qend)
        if r == 0:
            e0, d0 = (s.g0, base[1] - 2) if not o.get('kv0at') else (base[13], base[14])
            for x in (K[0], Vv[0], K[1]): s.add_xfer('kv', x, earliest=e0, deadline=d0, prio=4, spacing=o.get('sp_kv0', 3))
        ep = []
        for qb in range(5):
            for u in range(4):
                src = OACC + qb * 32 + u * 8
                for j in range(4):
                    ep.append(valu(f"v_pk_mul_f32 v[{src+2*j}:{src+2*j+1}], v[{src+2*j}:{src+2*j+1}], {sC}", [V(src + 2*j, 2)], [V(src + 2*j, 2)]))
                for j in range(4):
                    ep.append(valu(f"v_cvt_pk_bf16_f32 v{src+j}, v{src+2*j}, v{src+2*j+1}", [V(src + j)], [V(src + 2*j, 2)]))
                for j in range(4):
                    ep.append(valu(f"v_accvgpr_write_b32 a{dst+qb*16+u*4+j}, v{src+j}", [A(dst + qb*16 + u*4 + j)], [V(src + j)]))
        if nxt == 'A':
            n0 = s.nextA * 16
            for (x, k) in ((K[n0 + 2], 13), (Vv[n0 + 1], 13), (Vv[n0 + 2], 14), (K[n0 + 3], 15), (Vv[n0 + 3], 15)):
                s.add_xfer('kv', x, earliest=base[k], deadline=qend + 60, prio=4, spacing=sp_st)
        else:
            s.setbase(base[13], sLq, 0); s.setbase(base[13], sLx, 0)
            if o.get('wt') == 2: s.touch_item('tch', sWq, 21, None, 256, o.get('wtf', ''), base[0], base[0] + 20, "wq1t")
            for (x, k) in ((X[1][0], 13), (Wq[1][0], 13), (Wq[1][1], 13), (Wq[1][2], 14), (X[1][1], 15), (Wq[1][3], 15)):
                s.add_xfer('stage', x, earliest=base[k], deadline=min(base[k] + 60, qend + 30), prio=0, spacing=sp_st)
        ea, eb = s.valu_block(ep)
        if nxt == 'A':
            s.setbase(ea, sLq, 0); s.setbase(ea, sLx, 0)
        s.presync = ea + (100 if nxt == 'A' else 140)

    def phase_A(s, r, qs, nxt, stash):
        o = s.o; sc = s.sc; K = s.K; Vv = s.Vv; sp_kv = s.sp_kv; sp_st = s.sp_st
        n0 = 16 * r; pf = s.pf
        aent = sc.add(None, cap=0)
        def entry():
            assert s.m0own is None
            if r == 1:
                for lo in (4, 8):
                    s.em.raw(salu(f"s_add_u32 s{lo}, s{lo}, 0x20000")); s.em.raw(salu(f"s_addc_u32 s{lo+1}, s{lo+1}, 0")); s.em.raw(salu(f"s_mov_b32 s{lo+2}, 0x20000"))
                s.kvpair = 1
            s.soff_cur = None
            s.em.raw(Ins(f"L_{pf}Aent{r}:", 'label'))
            s.fb[r] = dict(bval=dict(s.bval), aT=[a.base for a in s.aT], aD=[a.base for a in s.aD], qs=qs,
                           dmas=[i for x in K[n0:n0 + 4] + Vv[n0:n0 + 4] for i in x.ins],
                           reads=list(K[n0].reads) + list(Vv[n0].reads))
            assert len(s.fb[r]['reads']) == 32 and all(i.tag[0].base == i.tag[1] for i in s.fb[r]['reads'])
            return 0
        sc.post(aent, entry)
        kf = lambda kt, u: A(aKF + (u * 2 + kt) * 4, 4)
        vf = lambda dt: A(aVF + dt * 4, 4)
        Sb = lambda tau, kt: V(SBUF + (tau % NSB) * 8 + kt * 4, 4)
        Pb = lambda tau: V(PBUF + (tau % NSB) * 4, 4)
        asy = s.presync
        s.sync_at(asy, [K[n0], Vv[n0]], s.pre_free); s.pre_free = []
        for u in range(4):
            for kt in range(2): s.rd_K('rdD', kf(kt, u), K[n0], kt, u, asy, aent - 1, name=f"k{n0}")
        for dt in range(8): s.rd_V('rdT', vf(dt), Vv[n0], dt, asy, aent - 1, name=f"v{n0}")
        qk_pos = {}; pv_pos = {}; slot0 = {}
        for tau in range(82):
            slot0[tau] = sc.n()
            if tau < 80:
                st, qb = divmod(tau, 5)
                for u in range(4):
                    for kt in range(2):
                        d = Sb(tau, kt)
                        c = d if u else V(NEGM + qb * 4, 4)
                        qk_pos[(tau, kt, u)] = sc.add(mfma(d, kf(kt, u), A(qs + qb * 16 + u * 4, 4), c))
            if tau >= 2:
                t2 = tau - 2; st, qb = divmod(t2, 5)
                for dt in range(8):
                    acc = V(OACC + qb * 32 + dt * 4, 4)
                    pv_pos[(t2, dt)] = sc.add(mfma(acc, vf(dt), Pb(t2), acc if st else 0))
                l = A(aL + qb * 4, 4)
                pv_pos[(t2, 8)] = sc.add(mfma(l, A(aONE, 4), Pb(t2), l if st else 0))
        aend = sc.n() - 1
        if o.get('ast') and r == 0:
            s.stamp(slot0[0]); s.stamp(slot0[4]); s.stamp(slot0[8] - 2); s.stamp(slot0[68])
        s.stamp(aend)
        for tau in (8, 28, 48, 68): s.mark(slot0[tau] - 1, f"A{r}", {sKV: 32768, 'hi3': 1} if tau < 68 else {})
        s.setbase(aent, sT, 0)
        for tau in range(80):
            e0 = qk_pos[(tau, 1, 3)] + 2
            dl = pv_pos[(tau, 0)] - 2
            for kt in range(2):
                for j in range(4):
                    rr = Sb(tau, kt).lo + j
                    sc.item('sm', simple(trans(f"v_exp_f32 v{rr}, v{rr}", [V(rr)], [V(rr)]), earliest=e0, deadline=dl - 4, prio=2, name=f"exp{tau}"))
                for j in range(2):
                    rr = Sb(tau, kt).lo + 2 * j
                    pd = Pb(tau).lo + 2 * kt + j
                    sc.item('sm', simple(valu(f"v_cvt_pk_bf16_f32 v{pd}, v{rr}, v{rr+1}", [V(pd)], [V(rr, 2)]), earliest=e0, deadline=dl, prio=2, name=f"cvt{tau}"))
        sy = {}
        for st in range(15):
            t4 = 5 * st + 4
            sy[st + 1] = slot0[t4] - 1
            s.sync_at(sy[st + 1], [K[n0 + st + 1], Vv[n0 + st + 1]], [K[n0 + st], Vv[n0 + st]])
            for u in range(4):
                for kt in range(2):
                    s.rd_K('rdD', kf(kt, u), K[n0 + st + 1], kt, u, qk_pos[(t4, kt, u)], qk_pos[(t4 + 1, kt, u)] - 7, name=f"k{n0+st+1}")
            for dt in range(8):
                s.rd_V('rdT', vf(dt), Vv[n0 + st + 1], dt, pv_pos[(t4, dt)], pv_pos[(t4 + 1, dt)] - 7, name=f"v{n0+st+1}")
            if st + 4 <= 16:
                s.add_xfer('kv', K[n0 + st + 4], earliest=sy[st + 1], deadline=sy[st + 1] + 70, prio=4, spacing=sp_kv)
                s.add_xfer('kv', Vv[n0 + st + 4], earliest=sy[st + 1], deadline=sy[st + 1] + 75, prio=4, spacing=sp_kv)
        ep = []
        RC = 64 if nxt == 'H' else SBUF
        T0 = 240 if nxt == 'H' else SBUF + 12
        flag_off = 131072 if nxt in ('Q', 'A') else 32768
        for qb in range(5):
            ep.append(valu(f"v_accvgpr_read_b32 v{RC+2*qb}, a{aL+4*qb}", [V(RC + 2*qb)], [A(aL + 4*qb)]))
        for qb in range(5):
            ep.append(valu(f"v_subrev_u32 v{T0+qb}, 0x{L_LO:x}, v{RC+2*qb}", [V(T0 + qb)], [V(RC + 2*qb)]))
        ep.append(valu(f"v_max3_u32 v{T0}, v{T0}, v{T0+1}, v{T0+2}", [V(T0)], [V(T0, 3)]))
        ep.append(valu(f"v_max3_u32 v{T0}, v{T0}, v{T0+3}, v{T0+4}", [V(T0)], [V(T0), V(T0 + 3, 2)]))
        ep.append(valu(f"v_cmp_lt_u32 vcc, 0x{L_HI - L_LO:x}, v{T0}", ['vcc'], [V(T0)]))
        for qb in range(5):
            ep.append(trans(f"v_rcp_f32 v{RC+2*qb}, v{RC+2*qb}", [V(RC + 2*qb)], [V(RC + 2*qb)]))
        ep.append(salu("s_cmp_lg_u64 vcc, 0", [], ['vcc']))
        ep.append(salu("s_cselect_b32 s40, 1, 0", [S(40)]))
        ep.append(valu(f"v_mov_b32 v{T0+1}, s40", [V(T0 + 1)], []))
        ep.append(salu(f"s_lshl_b32 s40, s{sWave}, 2", [S(40)]))
        ep.append(valu(f"v_add_u32 v{T0+2}, 0x{flag_off:x}, v{vZero}", [V(T0 + 2)], []))
        ep.append(valu(f"v_add_u32 v{T0+3}, s40, v{T0+2}", [V(T0 + 3)], [V(T0 + 2)]))
        fw = Ins(f"ds_write_b32 v{T0+3}, v{T0+1}", 'ds_w', rd=[f"v{T0+3}", f"v{T0+1}"])
        ep.append(fw)
        body = []; late = []
        for qb in range(5):
            for u in range(4):
                src = OACC + qb * 32 + u * 8
                dst = OACC + qb * 16 + u * 4
                for j in range(4):
                    body.append(valu(f"v_pk_mul_f32 v[{src+2*j}:{src+2*j+1}], v[{src+2*j}:{src+2*j+1}], v[{RC+2*qb}:{RC+2*qb+1}] op_sel_hi:[1,0]",
                                   [V(src + 2*j, 2)], [V(src + 2*j, 2), V(RC + 2*qb)]))
                for j in range(4):
                    body.append(valu(f"v_cvt_pk_bf16_f32 v{dst+j}, v{src+2*j}, v{src+2*j+1}", [V(dst + j)], [V(src + 2*j, 2)]))
                if stash is not None:
                    for j in range(4):
                        late.append(valu(f"v_accvgpr_write_b32 a{stash+qb*16+u*4+j}, v{dst+j}", [A(stash + qb*16 + u*4 + j)], [V(dst + j)]))
        ep += body[:16]
        i_bar1 = len(ep) - 1
        ep.append(Ins(f"ds_read_b128 v[{T0+4}:{T0+7}], v{T0+2}", 'ds_r', rd=[f"v{T0+2}"], wr=R('v', T0 + 4, 4)))
        ep += body[16:44]
        ep.append(valu(f"v_or3_b32 v{T0+4}, v{T0+4}, v{T0+5}, v{T0+6}", [V(T0 + 4)], [V(T0 + 4, 3)]))
        ep.append(valu(f"v_or_b32 v{T0+4}, v{T0+4}, v{T0+7}", [V(T0 + 4)], [V(T0 + 4), V(T0 + 7)]))
        ep += body[44:46]
        ep.append(valu(f"v_readfirstlane_b32 s40, v{T0+4}", [S(40)], [V(T0 + 4)]))
        ep += body[46:50]
        ep.append(salu(f"s_or_b32 s40, s40, s{sRedo}", [S(40)], [S(40)]))
        ep.append(Ins(f"s_cbranch_scc1 L_{pf}FB{r}", 'salu'))
        ep.append(Ins(f"L_{pf}Ret{r}:", 'label'))
        i_chk = len(ep) - 1
        ep += body[50:] + late
        ea, eb = s.valu_block(ep)
        for j in range(ea, ea + i_chk + 1): sc.bb[j].cap = 0
        def bar1():
            s.em.wait(s.em.lgkm_needed([fw]), None); s.em.raw(Ins("s_barrier", 'barrier')); return 2
        sc.post(ea + i_bar1, bar1)
        def at_ret():
            assert s.m0own is None
            s.fb[r]['end_aT'] = [a.base for a in s.aT]; s.fb[r]['end_aD'] = [a.base for a in s.aD]
            return 0
        sc.post(ea + i_chk, at_ret)
        ps = s.presync = ea + i_chk
        s.aeb = eb
        s.pre_free = [K[n0 + 15], Vv[n0 + 15]]
        tl = slot0[68]
        wtf = o.get('wtf', '')
        if nxt == 'Q':
            X = s.X; Wq = s.Wq
            if o.get('wt') == 2: s.touch_item('tch', sWq, 21, None, 256, wtf, slot0[68], slot0[69], "wq1t")
            s.add_xfer('stage', X[1][0], earliest=tl, deadline=sy[14], prio=0, spacing=sp_st)
            s.add_xfer('stage', Wq[1][0], earliest=sy[14], deadline=sy[15], prio=0, spacing=sp_st)
            s.add_xfer('kv', K[17], earliest=sy[14], deadline=sy[15], prio=4, spacing=sp_kv)
            s.add_xfer('stage', Wq[1][1], earliest=sy[15], deadline=aend - 30, prio=0, spacing=sp_st)
            s.add_xfer('stage', Wq[1][2], earliest=sy[15], deadline=aend, prio=0, spacing=sp_st)
            s.add_xfer('stage', X[1][1], earliest=ps, deadline=ps + 40, prio=0, spacing=1)
            s.add_xfer('stage', Wq[1][3], earliest=ps, deadline=ps + 80, prio=0, spacing=1)
        elif nxt == 'A':
            s.add_xfer('kv', K[17], earliest=sy[14], deadline=sy[15], prio=4, spacing=sp_kv)
            s.add_xfer('kv', Vv[17], earliest=sy[14], deadline=sy[15], prio=4, spacing=sp_kv)
            s.add_xfer('kv', K[18], earliest=sy[15], deadline=aend, prio=4, spacing=sp_kv)
            s.add_xfer('kv', Vv[18], earliest=sy[15], deadline=aend, prio=4, spacing=sp_kv)
            s.add_xfer('kv', K[19], earliest=ps, deadline=eb - 40, prio=4, spacing=10)
            s.add_xfer('kv', Vv[19], earliest=ps, deadline=eb - 2, prio=4, spacing=10)
        else:
            Wo = s.Wo
            if o.get('wt') == 2 and not (nxt == 'H' and r == 1): s.touch_item('tch', sWo, 23, None, 0, wtf, slot0[68], slot0[69], "wot0")
            s.add_xfer('stage', Wo[0], earliest=tl, deadline=sy[15], prio=0, spacing=sp_st)
            s.add_xfer('stage', Wo[1], earliest=tl, deadline=sy[15], prio=0, spacing=sp_st)
            s.add_xfer('stage', Wo[2], earliest=ps, deadline=ps + 40, prio=0, spacing=1)
            s.add_xfer('stage', Wo[3], earliest=ps, deadline=ps + 80, prio=0, spacing=1)
            s.a_tl = tl; s.a_end = aend

    def bar_after(s, idx, items, extra=None):
        def fn():
            for it in items: assert it.ins is not None, (it.name, "not issued before barrier")
            n = 0
            if s.em.wait(s.em.lgkm_needed([it.ins for it in items]), None): n += 1
            s.em.raw(Ins("s_barrier", 'barrier'))
            if extra: extra()
            return n + 1
        s.sc.post(idx, fn)

    def phase_P(s):
        o = s.o; sc = s.sc; Wo = s.Wo; K = s.K; Vv = s.Vv; sp_st = s.sp_st
        EXA = Xfer('ex', 'EX', [], fixed=(0, 81920))
        p_pre = s.presync
        p0 = sc.n()
        wof = lambda j, nt: V((64 if j % 2 == 0 else 240) + 4 * nt, 4)
        def bfrag(ks, qb):
            grp, u = divmod(ks, 4)
            if grp == 0: return V(OACC + qb * 16 + u * 4, 4)
            if grp == 1: return A(aST + qb * 16 + u * 4, 4)
            idx = (grp - 2) * 20 + qb * 4 + u
            return A(idx * 4, 4) if idx < 36 else A(aL + (idx - 36) * 4, 4)
        pacc = lambda nt, qb: V(160 + (qb * 4 + nt) * 4, 4)
        pk = lambda qb, up: V(24 + (qb * 2 + up) * 4, 4)
        s.sync_at(p_pre, [Wo[0], K[32], Vv[32]], s.pre_free + [K[32], Vv[32]])
        def take_ex():
            s.al.take_range(0, 81920, EXA); EXA.addr = 0; return 0
        sc.post(p_pre, take_ex)
        s.setbase(p_pre, sLo, 0); s.setbase(p_pre, 40, 0)
        def rd_wo(j, e0, dl):
            x = Wo[j // 2]
            for nt in range(4):
                for rd in (0, 1):
                    s.ds_item('rdT', "ds_read_b64_tr_b16", wof(j, nt).sub(2 * rd, 2), s.aT[nt], x, (j & 1) * 4096 + rd * 2048, WBASE, e0, dl, name=f"wo{j}")
        rd_wo(0, p_pre, p0 - 1)
        ppos = {}; kst = {}
        for j in range(65):
            ch, ks = divmod(j, 16)
            kst[j] = sc.n()
            if j == 64: break
            for qb in range(5):
                for nt in range(4):
                    acc = pacc(nt, qb)
                    ppos[(j, nt, qb)] = sc.add(mfma(acc, wof(j, nt), bfrag(ks, qb), acc if ks else 0))
        pend = sc.n() - 1
        PM = o.get('pmark', 13)
        if o.get('pst'):
            s.stamp(kst[0]); s.stamp(kst[4]); s.stamp(kst[PM] - 2); s.stamp(kst[PM + 48])
        for c in range(4): s.mark(kst[PM + 16 * c] - 1, "P", {sOwn: 128, sOth: 128, sLo: 10240, 40: 128} if c < 3 else {})
        for j in range(63):
            if j % 2 == 1:
                m = (j + 1) // 2
                s.sync_at(kst[j], [Wo[m]], [Wo[m - 1]])
                if m + 3 < 36 and j < PM + 48: s.add_xfer('stage', Wo[m + 3], earliest=kst[j], deadline=kst[j] + 30, prio=0, spacing=sp_st)
            rd_wo(j + 1, kst[j], kst[j] + 12)
        if o.get('wt') == 2:
            s.touch_item('tch', sWo, 23, None, 128, o.get('wtf', ''), kst[1], kst[2], "wot1")
            for c in range(3):
                s.touch_item('tch', sWo, 23, 40, 128 * (c + 2), o.get('wtf', ''), kst[PM + 16 * c] + 60, kst[PM + 16 * c] + 80, "wot")
        def exw(rnd, e0, dl):
            L = []
            for qb in range(5):
                for u in range(4):
                    src = bfrag(rnd * 4 + u, qb)
                    ins = Ins(f"ds_write_b128 v{vLinW}, {src} offset:{(qb*4+u)*1024}", 'ds_w', rd=[f"v{vLinW}"] + src.regs())
                    L.append(sc.item('ex', simple(ins, earliest=e0, deadline=dl, prio=3, name=f"exw{rnd}")))
            return L
        def exr(rnd, e0, dl):
            L = []
            for u in range(4):
                for qb in range(5):
                    dst = bfrag(8 + rnd * 4 + u, qb)
                    ins = Ins(f"ds_read_b128 {dst}, v{vLinR} offset:{(qb*4+u)*1024}", 'ds_r', rd=[f"v{vLinR}"], wr=dst.regs())
                    L.append(sc.item('ex', simple(ins, earliest=e0, deadline=dl, prio=3, name=f"exr{rnd}")))
            return L
        w0 = exw(0, p0, kst[3] - 2); s.bar_after(kst[3] + 4, w0)
        r0 = exr(0, kst[3] + 4, kst[5] - 2); s.bar_after(kst[5] + 4, r0)
        w1 = exw(1, kst[5] + 4, kst[9] - 2); s.bar_after(kst[9] + 4, w1)
        r1 = exr(1, kst[9] + 4, kst[11])
        def all_ex_done():
            s.em.wait(s.em.lgkm_needed([it.ins for it in r1]), None); return 1
        sc.post(kst[12] - 2, all_ex_done)
        tail = []
        for ch in range(4):
            j = ch * 16 + 15
            for qb in range(5):
                for up in range(2):
                    for h in range(2):
                        nt = 2 * up + h
                        a = pacc(nt, qb); d = pk(qb, up)
                        for jj in range(2):
                            ins = valu(f"v_cvt_pk_bf16_f32 v{d.lo+2*h+jj}, v{a.lo+2*jj}, v{a.lo+2*jj+1}", [V(d.lo + 2*h + jj)], [V(a.lo + 2*jj, 2)])
                            if ch < 3: sc.item('cv', simple(ins, earliest=ppos[(j, nt, qb)] + 2, deadline=ppos[(j + 1, nt, qb)] - 1, prio=1, name=f"pcvt{ch}"))
                            else: tail.append(ins)
                    off = ((ch * 5 + qb) * 2 + up) * 1024
                    mkso = lambda off=off: salu(f"s_add_u32 s37, s{sLo}, 0x{(off - s.bval[sLo]) & 0xffffffff:x}", [S(37)], [S(sLo)])
                    stx = Ins(f"buffer_store_dwordx4 {pk(qb, up)}, v{vSt}, {sWs}, s37 offen {o.get('stflags','')}", 'vst', rd=pk(qb, up).regs() + [f"v{vSt}", 's37'] + sWs.regs())
                    if ch < 3:
                        e0 = kst[j + 1] + 20 + (qb * 2 + up) * o.get('sp_store', 16)
                        sc.item('st', Item(lambda mkso=mkso: ('salu', mkso(), True), earliest=e0, deadline=e0 + 10, prio=6, name="sto"))
                        sc.item('st', simple(stx, earliest=e0, deadline=e0 + 12, prio=6, name="st"))
                    else:
                        tail += [mkso, stx]
        s.stamp(pend)
        s.tail = tail

    def phase_H(s, r):
        o = s.o; sc = s.sc; Wo = s.Wo; K = s.K; Vv = s.Vv; sp_st = s.sp_st
        EXA = Xfer('ex', 'EX', [], fixed=(32768, 40960))
        ps = s.presync
        accs = [160, 80]
        pacc = lambda ch, nt, qb: V(accs[ch & 1] + (qb * 4 + nt) * 4, 4)
        pk = lambda qb, up: V(24 + (qb * 2 + up) * 4, 4)
        ldb = [64, 68, 72, 76, 240, 244, 248, 252]
        wof = lambda j, nt: A(aVF + (j % 2) * 16 + 4 * nt, 4)
        own_v = lambda u, qb: V(OACC + qb * 16 + u * 4, 4)
        own_a = lambda u, qb: A(aQ + qb * 16 + u * 4, 4)
        def bfrag(ch, ks, qb):
            if ks < 4: return own_v(ks, qb) if ch == 0 else own_a(ks, qb)
            return A(aST + qb * 16 + (ks - 4) * 4, 4)
        def ld_items(dst, unit, e0, dl):
            so = salu(f"s_mov_b32 s41, 0x{unit*1024:x}", [S(41)])
            ld = Ins(f"buffer_load_dwordx4 {dst}, v{vSt}, {sWs}, s41 offen", 'vld', rd=[f"v{vSt}", 's41'] + sWs.regs(), wr=dst.regs())
            sc.item('tch', simple(so, earliest=e0, deadline=dl, prio=5, name="cio"))
            return sc.item('tch', simple(ld, earliest=e0, deadline=dl + 2, prio=5, name="cil"))
        def unpack(src, ch, qb, up):
            L = []
            for h in range(2):
                a = pacc(ch, 2 * up + h, qb)
                for jj in range(2):
                    sr = src.lo + 2 * h + jj
                    L.append(valu(f"v_lshlrev_b32 v{a.lo+2*jj}, 16, v{sr}", [V(a.lo + 2*jj)], [V(sr)]))
                    L.append(valu(f"v_and_b32 v{a.lo+2*jj+1}, 0xffff0000, v{sr}", [V(a.lo + 2*jj + 1)], [V(sr)]))
            return L
        if r == 1:
            for qb in range(5):
                for up in range(2): ld_items(pk(qb, up), qb * 2 + up, ps, ps + 30 + 3 * (qb * 2 + up))
            s.valu_block([x for qb in range(5) for up in range(2) for x in unpack(pk(qb, up), 0, qb, up)])
        p0 = sc.n()
        fr = s.pre_free + ([K[32], Vv[32]] if r == 1 else [])
        s.sync_at(ps, [Wo[0]] + ([K[32], Vv[32]] if r == 1 else []), fr); s.pre_free = []
        def take_ex():
            s.al.take_range(32768, 40960, EXA); EXA.addr = 32768; return 0
        sc.post(ps, take_ex)
        def rd_wo(j, e0, dl):
            x = Wo[j // 2]
            for nt in range(4):
                for rd in (0, 1):
                    s.ds_item('rdT', "ds_read_b64_tr_b16", wof(j, nt).sub(2 * rd, 2), s.aT[nt], x, (j & 1) * 4096 + rd * 2048, WBASE, e0, dl, name=f"wo{j}")
        rd_wo(0, ps, p0 - 1)
        ppos = {}; kst = {}
        for j in range(33):
            ch, ks = divmod(j, 8)
            kst[j] = sc.n()
            if j == 32: break
            for qb in range(5):
                for nt in range(4):
                    acc = pacc(ch, nt, qb)
                    ppos[(j, nt, qb)] = sc.add(mfma(acc, wof(j, nt), bfrag(ch, ks, qb), acc if (ks or r == 1) else 0))
        pend = sc.n() - 1
        for j in range(31):
            if j % 2 == 1:
                m = (j + 1) // 2
                s.sync_at(kst[j], [Wo[m]], [Wo[m - 1]])
                if m + 3 < 16: s.add_xfer('stage', Wo[m + 3], earliest=kst[j], deadline=kst[j] + 30, prio=0, spacing=sp_st)
            rd_wo(j + 1, kst[j], kst[j] + 12)
        if o.get('wt') == 2 and r == 0:
            for c in range(1, 4): s.touch_item('tch', sWo, 23, None, 128 * c, o.get('wtf', ''), kst[8 * (c - 1)] if c > 1 else ps, kst[8 * (c - 1)] + 20, "wot")
        def exw(rnd, e0, dl):
            return [sc.item('ex', simple(Ins(f"ds_write_b128 v{vLinW}, {own_v(2*rnd+uu, qb)} offset:{(qb*2+uu)*1024}", 'ds_w', rd=[f"v{vLinW}"] + own_v(2*rnd+uu, qb).regs()),
                                         earliest=e0, deadline=dl, prio=3, name=f"exw{rnd}")) for qb in range(5) for uu in range(2)]
        def exr(rnd, e0, dl):
            L = []
            for uu in range(2):
                for qb in range(5):
                    dst = bfrag(0, 4 + 2 * rnd + uu, qb)
                    L.append(sc.item('ex', simple(Ins(f"ds_read_b128 {dst}, v{vLinR} offset:{(qb*2+uu)*1024}", 'ds_r', rd=[f"v{vLinR}"], wr=dst.regs()), earliest=e0, deadline=dl, prio=3, name=f"exr{rnd}")))
            for uu in range(2):
                for qb in range(5):
                    dst = own_a(2 * rnd + uu, qb)
                    L.append(sc.item('ex', simple(Ins(f"ds_read_b128 {dst}, v{vLinW} offset:{(qb*2+uu)*1024}", 'ds_r', rd=[f"v{vLinW}"], wr=dst.regs()), earliest=e0, deadline=dl, prio=3, name=f"exo{rnd}")))
            return L
        w0 = exw(0, p0, kst[1] - 2); s.bar_after(kst[1] + 3, w0)
        r0 = exr(0, kst[1] + 3, kst[2] + 6); s.bar_after(kst[2] + 14, r0)
        w1 = exw(1, kst[2] + 14, kst[3] + 14); s.bar_after(kst[4] + 2, w1)
        r1 = exr(1, kst[4] + 2, kst[5] + 6)
        exdone = kst[6] + 4
        s.bar_after(exdone, r1, extra=lambda: s.al.release(EXA))
        tail = []; s.late_cvt = []; prev_unp = {}
        for ch in range(4):
            j = ch * 8 + 7
            qbs = list(range(5)) if (ch < 3 or r == 1) else [4, 3, 2, 1, 0]
            for n_, qb in enumerate(qbs):
                for up in ((0, 1) if (ch < 3 or r == 1) else (1, 0)):
                    cv = []
                    for h in range(2):
                        nt = 2 * up + h
                        a = pacc(ch, nt, qb); d = pk(qb, up)
                        for jj in range(2):
                            cv.append((valu(f"v_cvt_pk_bf16_f32 v{d.lo+2*h+jj}, v{a.lo+2*jj}, v{a.lo+2*jj+1}", [V(d.lo + 2*h + jj)], [V(a.lo + 2*jj, 2)]), ppos[(j, nt, qb)], a.lo))
                    off = ((ch * 5 + qb) * 2 + up) * 1024
                    so = salu(f"s_mov_b32 s37, 0x{off:x}", [S(37)])
                    stx = Ins(f"buffer_store_dwordx4 {pk(qb, up)}, v{vSt}, {sWs}, s37 offen {o.get('stflags','')}", 'vst', rd=pk(qb, up).regs() + [f"v{vSt}", 's37'] + sWs.regs())
                    if ch < 3:
                        e0 = kst[j + 1] + 4 + (n_ * 2 + up) * o.get('sp_storeh', 10)
                        for (ins, pos, alo) in cv: sc.item('cv', simple(ins, earliest=pos + 2, deadline=e0 - 1, prio=4, name=f"pcvt{ch}"))
                        sc.item('st', simple(so, earliest=e0, deadline=e0 + 6, prio=6, name="sto"))
                        sc.item('st', simple(stx, earliest=e0, deadline=e0 + 8, prio=6, name="st")).after = [c[0] for c in cv]
                    elif r == 1:
                        tail += [c[0] for c in cv] + [so, stx]
                    else:
                        s.late_cvt.append((cv, so, stx))
            if r == 1 and ch < 3:
                nx = ch + 1
                free_at = kst[4] + 1 if nx == 1 else kst[8 * (nx - 1)] + 4 + 9 * o.get('sp_storeh', 10)
                l0 = kst[8 * ch] + (2 if ch else 0)
                for n_ in range(10):
                    qb, up = divmod(n_, 2)
                    buf = V(ldb[n_ % 8], 4)
                    e_ld = l0 + 6 * n_ if n_ < 8 else max(free_at, l0 + 60) + 10 + 4 * n_
                    li = ld_items(buf, (nx * 5 + qb) * 2 + up, e_ld, e_ld + 6)
                    li.after = prev_unp.get(buf.lo, [])
                    e_un = max(free_at, l0 + 60) + 4 * n_ + (0 if n_ < 8 else 44)
                    U = unpack(buf, nx, qb, up); prev_unp[buf.lo] = U
                    for ins in U:
                        it = sc.item('un', simple(ins, earliest=e_un, deadline=(e_un + 8 if n_ < 2 else ppos[(8 * nx, 2 * up, qb)] - 2), prio=5, name=f"unp{nx}"))
                        it.after = [li.peek()[1]]
        s.stamp(pend)
        if r == 0:
            X = s.X; Wq = s.Wq
            if o.get('wt') == 2: s.touch_item('tch', sWq, 21, None, 256, o.get('wtf', ''), kst[17], kst[18], "wq1t")
            s.add_xfer('kv', K[17], earliest=exdone, deadline=kst[14], prio=4, spacing=20)
            s.add_xfer('stage', Wq[1][0], earliest=kst[24], deadline=kst[25] + 10, prio=0, spacing=sp_st)
            s.add_xfer('stage', Wq[1][1], earliest=kst[25], deadline=kst[26] + 10, prio=0, spacing=sp_st)
            s.add_xfer('stage', X[1][0], earliest=kst[27], deadline=kst[28] + 4, prio=0, spacing=sp_st)
            s.add_xfer('stage', Wq[1][2], earliest=kst[28], deadline=kst[29], prio=0, spacing=sp_st)
            s.add_xfer('stage', Wq[1][3], earliest=kst[29], deadline=kst[30] + 10, prio=0, spacing=sp_st)
            s.presync = kst[31]; s.pre_free = [Wo[15]]
            s.add_xfer('stage', X[1][1], earliest=kst[31], deadline=pend, prio=0, spacing=sp_st)
        else:
            s.tail = tail

    def after_H0(s):
        sc = s.sc; b0 = s.qbase[0]
        last = b0
        for n_, (cv, so, stx) in enumerate(s.late_cvt):
            dl = min(s.qpos0[alo] for (_, _, alo) in cv) - 1
            for (ins, pos, alo) in cv: sc.item('cv', simple(ins, earliest=pos + 2, deadline=s.qpos0[alo] - 1, prio=1, name="pcvtL"))
            e0 = min(b0 + 3 * n_, s.qbase[1] - 8)
            sc.item('st', simple(so, earliest=e0, deadline=s.qbase[1] - 4, prio=6, name="sto", ))
            it = sc.item('st', simple(stx, earliest=max(e0, max(s.qpos0[alo] for (_, _, alo) in cv) - 1 if False else e0), deadline=s.qbase[1] - 3, prio=6, name="st"))
            it.after = [c[0] for c in cv]
        for j in range(20):
            sc.item('cv', simple(valu(f"v_mov_b32 v{NEGM+j}, 0", [V(NEGM + j)], []), earliest=s.qbase[13], deadline=s.qbase[15], prio=8, name="negm0"))

    def build(s):
        s.setup(); s.start()
        mkWo = lambda L: [setattr(x, 'nreads', 16) or x for x in L]
        if s.var == 'Z':
            s.nextA = 0; s.phase_Q(0, aQ, 'A'); s.phase_A(0, aQ, 'Q', aST)
            s.nextA = 1; s.phase_Q(1, aQ, 'A')
            s.Wo = mkWo([s.xf_Wo(m // 8, m % 8) for m in range(36)])
            s.phase_A(1, aQ, 'P', None); s.phase_P(); s.stamp(s.sc.n() - 1)
        elif s.var == 'Y':
            s.phase_Q(0, aST, 'Q'); s.nextA = 0; s.phase_Q(1, aQ, 'A')
            s.phase_A(0, aST, 'A', aST)
            s.Wo = mkWo([s.xf_Wo(m // 8, m % 8) for m in range(36)])
            s.phase_A(1, aQ, 'P', None); s.phase_P(); s.stamp(s.sc.n() - 1)
        else:
            s.nextA = 0; s.phase_Q(0, aQ, 'A')
            s.Wo = mkWo([s.xf_WoH(0, m // 4, m % 4) for m in range(16)])
            s.phase_A(0, aQ, 'H', None); s.phase_H(0)
            s.nextA = 1; s.phase_Q(1, aQ, 'A', k0order=[4, 3, 2, 1, 0]); s.after_H0()
            s.Wo = mkWo([s.xf_WoH(1, m // 4, m % 4) for m in range(16)])
            s.phase_A(1, aQ, 'H', None); s.phase_H(1)
        s.sc.run()
        for ins in s.tail: s.em.emit(ins() if callable(ins) else ins)
        if s.o.get('ikr'): s.reduce_tail()
        s.finish()

    def reduce_tail(s):
        em = s.em; e = em.emit; pf = s.pf
        sa = lambda t, w=(), rd=(): e(salu(t, w, rd))
        va = lambda t, w, rd: e(valu(t, w, rd))
        lab = lambda t: em.raw(Ins(t + ":", 'label'))
        va("v_mov_b32 v21, 0", [V(21)], [])
        va(f"v_bfe_u32 v22, v{vSt}, 4, 4", [V(22)], [V(vSt)]); va("v_lshlrev_b32 v22, 11, v22", [V(22)], [V(22)])
        va(f"v_lshrrev_b32 v23, 8, v{vSt}", [V(23)], [V(vSt)]); va("v_lshl_add_u32 v22, v23, 4, v22", [V(22)], [V(23), V(22)])
        sa("s_mov_b32 s4, s84"); sa("s_mov_b32 s5, s85"); sa("s_mov_b32 s6, 5242880"); sa("s_mov_b32 s7, 0x20000")
        em.wait(None, 0); em.raw(Ins("s_barrier", 'barrier'))
        if s.o.get('stamps'): k = s.stamps; s.stamps += 1; em.raw(Ins(f"s_memtime s[{50+2*k}:{51+2*k}]", 'salu'))
        sa(f"s_cmp_lg_u32 s{sWave}, 0"); em.raw(Ins(f"s_cbranch_scc1 L_{pf}rgo", 'salu'))
        for t in ("s_mov_b32 s44, s86", "s_mov_b32 s45, s87", "s_mov_b32 s46, 4", "s_mov_b32 s47, 0x20000", "s_mov_b32 s40, 0x4000"): sa(t)
        va("v_readfirstlane_b32 s41, v0", [S(41)], [V(0)])
        lab(f"L_{pf}rh")
        em.raw(Ins("buffer_load_dword v24, v21, s[44:47], 0 offen sc1", 'salu')); em.raw(Ins("s_waitcnt vmcnt(0)", 'wait'))
        em.raw(valu("v_readfirstlane_b32 s37, v24", [S(37)], [V(24)])); em.raw(Ins("s_nop 3", 'nop', states=4))
        em.raw(salu("s_sub_u32 s40, s40, 1")); em.raw(Ins(f"s_cbranch_scc1 L_{pf}rsig", 'salu'))
        em.raw(salu("s_cmp_lt_u32 s37, 8")); em.raw(Ins(f"s_cbranch_scc1 L_{pf}rh", 'salu'))
        lab(f"L_{pf}rsig")
        em.raw(salu("s_mov_b64 exec, 1")); em.raw(valu("v_mov_b32 v24, 1", [V(24)], []))
        em.raw(Ins("buffer_atomic_add v24, v21, s[80:83], 0 offen", 'salu')); em.raw(salu("s_mov_b64 exec, -1"))
        em.raw(salu("s_mov_b32 s40, 0x8000"))
        lab(f"L_{pf}rp")
        em.raw(Ins("buffer_load_dword v25, v21, s[80:83], 0 offen sc1", 'salu')); em.raw(Ins("s_waitcnt vmcnt(0)", 'wait'))
        em.raw(valu("v_readfirstlane_b32 s37, v25", [S(37)], [V(25)])); em.raw(Ins("s_nop 3", 'nop', states=4))
        em.raw(salu("s_sub_u32 s40, s40, 1")); em.raw(Ins(f"s_cbranch_scc1 L_{pf}rgo", 'salu'))
        em.raw(salu("s_sub_u32 s37, s37, s41")); em.raw(salu("s_cmp_lt_u32 s37, 8")); em.raw(Ins(f"s_cbranch_scc1 L_{pf}rp", 'salu'))
        lab(f"L_{pf}rgo")
        em.raw(Ins("s_barrier", 'barrier'))
        if s.o.get('stamps'): k = s.stamps; s.stamps += 1; em.raw(Ins(f"s_memtime s[{50+2*k}:{51+2*k}]", 'salu'))
        sa("s_mov_b32 s46, 0xffff0000")
        for t in range(5):
            for sl in range(8):
                d = V(80 + (t * 8 + sl) * 4, 4)
                sa(f"s_add_u32 s37, s74, 0x{t * 2048 + sl * 163840:x}", [S(37)])
                e(Ins(f"buffer_load_dwordx4 {d}, v{vSt}, s[76:79], s37 offen sc1", 'vld', rd=[f"v{vSt}", 's37'], wr=d.regs()))
        for t in range(5):
            ac = 24 + (t & 1) * 16
            for sl in range(8):
                for j in range(4):
                    src = 80 + (t * 8 + sl) * 4 + j
                    if sl == 0:
                        va(f"v_lshlrev_b32 v{ac+2*j}, 16, v{src}", [V(ac + 2*j)], [V(src)]); va(f"v_and_b32 v{ac+2*j+1}, s46, v{src}", [V(ac + 2*j + 1)], [V(src)])
                    else:
                        va(f"v_lshlrev_b32 v60, 16, v{src}", [V(60)], [V(src)]); va(f"v_and_b32 v61, s46, v{src}", [V(61)], [V(src)])
                        va(f"v_pk_add_f32 v[{ac+2*j}:{ac+2*j+1}], v[{ac+2*j}:{ac+2*j+1}], v[60:61]", [V(ac + 2*j, 2)], [V(ac + 2*j, 2), V(60, 2)])
            o4 = ac + 8
            for j in range(4): va(f"v_cvt_pk_bf16_f32 v{o4+j}, v{ac+2*j}, v{ac+2*j+1}", [V(o4 + j)], [V(ac + 2*j, 2)])
            for op in ("v_permlane32_swap_b32", "v_permlane16_swap_b32"):
                va(f"{op} v{o4}, v{o4+2}", [V(o4), V(o4 + 2)], [V(o4), V(o4 + 2)]); va(f"{op} v{o4+1}, v{o4+3}", [V(o4 + 1), V(o4 + 3)], [V(o4 + 1), V(o4 + 3)])
            sa(f"s_add_u32 s37, s75, 0x{t * 32768:x}", [S(37)])
            e(Ins(f"buffer_store_dwordx4 v[{o4}:{o4+3}], v22, s[4:7], s37 offen", 'vst', rd=R('v', o4, 4) + ['v22', 's37']))

    def make_pins(s):
        pins = {}
        groups = {}
        for (gname, idx) in s.marks: groups.setdefault(gname, []).append(idx)
        for gname, m in groups.items():
            n = len(m) - 1; L = m[1] - m[0]
            assert all(m[j + 1] - m[j] == L for j in range(n))
            for k, items in s.sc.streams.items():
                T = [i for i, it in enumerate(items) if m[n - 1] <= it.gap < m[n]]
                c = len(T)
                if c == 0:
                    inside = [i for i, it in enumerate(items) if m[0] <= it.gap < m[n]]
                    for i in inside: pins[(k, i)] = (None, m[0] - 1)
                    continue
                for j in range(n):
                    for i in T:
                        pins[(k, i - (n - 1 - j) * c)] = (items[i].gap - (n - 1 - j) * L, items[i].gap - (n - 1 - j) * L)
                first = T[0] - (n - 1) * c
                for i in range(first - 1, -1, -1):
                    if items[i].gap < m[0] - 60: break
                    if (k, i) not in pins: pins[(k, i)] = (None, m[0] - 1)
                if T[-1] + 1 < len(items) and (k, T[-1] + 1) not in pins: pins[(k, T[-1] + 1)] = (m[n], None)
        return pins

    def roll(s):
        out = s.em.out
        groups = {}
        for i, ins in enumerate(out):
            if ins.kind == 'comment' and ins.tag and ins.tag[0] == 'mark': groups.setdefault(ins.tag[1], []).append(i)
        def split(seg):
            body = []; waits = {}
            for x in seg:
                if x.kind == 'wait':
                    w = waits.setdefault(len(body), {})
                    for nm, v in re.findall(r"(\w+)\((\d+)\)", x.text): w[nm] = min(w.get(nm, 99), int(v))
                else: body.append(x)
            return body, waits
        edits = []
        for gname, idx in groups.items():
            segs = [split(out[idx[j]:idx[j + 1]]) for j in range(len(idx) - 1)]
            txt = [[x.text for x in b] for b, w in segs]
            best = (0, 1); j = 0
            while j < len(segs):
                k = j + 1
                while k < len(segs) and txt[k] == txt[j]: k += 1
                if k - j > best[1]: best = (j, k - j)
                j = k
            sys.stderr.write(f"roll {gname}: {len(segs)} periods, lens {[len(x) for x in txt]}, identical run start {best[0]} x{best[1]}\n")
            if best[1] < len(segs) and s.o.get('rolldiff'):
                import difflib
                for j in range(len(segs) - 1):
                    d = [l for l in difflib.unified_diff(txt[j], txt[j + 1], lineterm='', n=0)]
                    if d: sys.stderr.write(f"  diff {j}->{j+1} ({len(d)} lines):\n" + "\n".join(d[:30]) + "\n")
            if best[1] >= 2:
                body = segs[best[0]][0]; mw = {}
                last = segs[best[0] + best[1] - 1][1]
                for j in range(best[0], best[0] + best[1]):
                    for p, w in segs[j][1].items():
                        for nm, v in w.items(): mw.setdefault(p, {})[nm] = min(mw.get(p, {}).get(nm, 99), v)
                for p, w in sorted(mw.items()):
                    if w != last.get(p): sys.stderr.write(f"   merged wait at {p}: {w} (steady {last.get(p)})\n")
                new = []
                for p in range(len(body) + 1):
                    if p in mw: new.append(Ins("s_waitcnt " + " ".join(f"{nm}({v})" for nm, v in sorted(mw[p].items(), reverse=True)), 'wait'))
                    if p < len(body): new.append(body[p])
                edits.append((idx[best[0]], idx[best[0] + best[1]], new, best[1], gname))
        for (a, c, new, n, gname) in sorted(edits, key=lambda e: -e[0]):
            pre = [salu(f"s_mov_b32 s{sCnt}, {n}"), Ins(f"L_{s.pf}{gname}:", 'label')]
            post = [salu(f"s_sub_u32 s{sCnt}, s{sCnt}, 1"), salu(f"s_cmp_lg_u32 s{sCnt}, 0"), Ins(f"s_cbranch_scc1 L_{s.pf}{gname}", 'salu')]
            s.em.out = s.em.out[:a] + pre + new + post + s.em.out[c:]

    def finish(s):
        e = s.em
        if s.o.get('stamps'):
            k = s.stamps
            e.raw(Ins(f"s_waitcnt vmcnt(0)", 'wait'))
            e.raw(Ins(f"s_memtime s[{50+2*k}:{51+2*k}]", 'salu'))
            e.raw(Ins(f"s_memrealtime s[92:93]", 'salu'))
            e.raw(Ins("s_waitcnt lgkmcnt(0)", 'wait'))
            e.raw(salu(f"s_lshl_b32 s40, s2, 2")); e.raw(salu(f"s_add_u32 s40, s40, s{sWave}")); e.raw(salu("s_lshl_b32 s40, s40, 6"))
            e.raw(salu("s_add_u32 s24, s88, 0x4000000")); e.raw(salu("s_addc_u32 s25, s89, 0")); e.raw(salu("s_mov_b32 s26, 0x100000"))
            e.raw(salu("s_mov_b64 exec, 1"))
            for j in range(k + 1):
                e.raw(valu(f"v_mov_b32 v21, s{50+2*j}", [V(21)], [])); e.raw(valu(f"v_mov_b32 v22, {4*j}", [V(22)], []))
                e.raw(Ins(f"buffer_store_dword v21, v22, s[24:27], s40 offen", 'vst'))
                e.raw(Ins("s_nop 1", 'nop'))
            for j, sr in ((13, 94), (14, 90), (15, 92)):
                e.raw(valu(f"v_mov_b32 v21, s{sr}", [V(21)], [])); e.raw(valu(f"v_mov_b32 v22, {4*j}", [V(22)], []))
                e.raw(Ins(f"buffer_store_dword v21, v22, s[24:27], s40 offen", 'vst'))
                e.raw(Ins("s_nop 1", 'nop'))
        e.raw(Ins("s_endpgm", 'salu'))
        e.raw(Ins(f"L_{s.pf}end:", 'label'))
        for r in sorted(s.fb): s.fallback(r)

    def fallback(s, r):
        fb = s.fb[r]; pf = s.pf
        em = Emitter(); e = em.emit
        sa = lambda t, w=(), rd=(): e(salu(t, w, rd))
        va = lambda t, w, rd: e(valu(t, w, rd))
        e(Ins(f"L_{pf}FB{r}:", 'label'))
        sa(f"s_cmp_eq_u32 s{sRedo}, 0"); e(Ins(f"s_cbranch_scc1 L_{pf}FBgo{r}", 'salu'))
        for j in range(20): va(f"v_mov_b32 v{NEGM+j}, 0", [V(NEGM + j)], [])
        sa(f"s_mov_b32 s{sRedo}, 0"); e(Ins(f"s_branch L_{pf}Ret{r}", 'salu'))
        e(Ins(f"L_{pf}FBgo{r}:", 'label'))
        e(Ins("s_waitcnt vmcnt(0) lgkmcnt(0)", 'wait')); e(Ins("s_barrier", 'barrier'))
        KF, ST, MX, AD = 80, 96, 116, 124
        va(f"v_bfe_u32 v{AD}, v{vSt}, 4, 4", [V(AD)], [V(vSt)])
        va(f"v_lshlrev_b32 v{AD}, 8, v{AD}", [V(AD)], [V(AD)])
        va(f"v_lshrrev_b32 v{AD+1}, 8, v{vSt}", [V(AD + 1)], [V(vSt)])
        va(f"v_lshl_add_u32 v{AD}, v{AD+1}, 3, v{AD}", [V(AD)], [V(AD + 1), V(AD)])
        for qb in range(5): va(f"v_mov_b32 v{MX+qb}, 0xff800000", [V(MX + qb)], [])
        sa(f"s_mov_b32 s40, 0", [S(40)]); sa(f"s_mov_b32 s{sCnt}, 32")
        e(Ins(f"L_{pf}FBloop{r}:", 'label'))
        for u in range(4):
            for pc in range(2):
                d = V(KF + 4 * u + 2 * pc, 2)
                e(Ins(f"buffer_load_dwordx2 {d}, v{AD}, {sK}, s40 offen offset:{64*u+32*pc}", 'vld', rd=[f"v{AD}", 's40'], wr=d.regs()))
        for qb in range(5):
            for u in range(4):
                d = V(ST + 4 * qb, 4)
                e(mfma(d, V(KF + 4 * u, 4), A(fb['qs'] + qb * 16 + u * 4, 4), d if u else 0))
        for qb in range(5):
            va(f"v_max3_f32 v{MX+qb}, v{MX+qb}, v{ST+4*qb}, v{ST+4*qb+1}", [V(MX + qb)], [V(MX + qb), V(ST + 4*qb, 2)])
            va(f"v_max3_f32 v{MX+qb}, v{MX+qb}, v{ST+4*qb+2}, v{ST+4*qb+3}", [V(MX + qb)], [V(MX + qb), V(ST + 4*qb + 2, 2)])
        sa("s_add_u32 s40, s40, 4096", [S(40)]); sa(f"s_sub_u32 s{sCnt}, s{sCnt}, 1"); sa(f"s_cmp_lg_u32 s{sCnt}, 0")
        e(Ins("s_nop 7", 'nop', states=8))
        e(Ins(f"s_cbranch_scc1 L_{pf}FBloop{r}", 'salu'))
        for xm in (16, 32):
            va(f"v_lshrrev_b32 v{AD}, 2, v{vSt}", [V(AD)], [V(vSt)])
            va(f"v_xor_b32 v{AD}, {4*xm}, v{AD}", [V(AD)], [V(AD)])
            for qb in range(5):
                e(Ins(f"ds_bpermute_b32 v{ST+qb}, v{AD}, v{MX+qb}", 'ds_r', rd=[f"v{AD}", f"v{MX+qb}"], wr=[f"v{ST+qb}"]))
            for qb in range(5):
                va(f"v_max_f32 v{MX+qb}, v{MX+qb}, v{ST+qb}", [V(MX + qb)], [V(MX + qb), V(ST + qb)])
        for qb in range(5):
            for j in range(4): va(f"v_sub_f32 v{NEGM+4*qb+j}, 0, v{MX+qb}", [V(NEGM + 4*qb + j)], [V(MX + qb)])
        sa(f"s_add_u32 s{sKV}, s{sRot}, 0x{fb['bval'].get(sKV, 0):x}", [S(sKV)])
        for regs, b0, b1 in ((vT, fb['aT'], fb['end_aT']), (vD, fb['aD'], fb['end_aD'])):
            for v, x0, x1 in zip(regs, b0, b1):
                if x0 != x1: va(f"v_add_u32 v{v}, 0x{(x0 - x1) & 0xffffffff:x}, v{v}", [V(v)], [V(v)])
        for i in fb['dmas']:
            (x, srd, voff, sbase, sconst, imm, ldsoff, m0b, flags) = i.tag
            sa(f"s_add_u32 m0, s{m0b}, 0x{x.fixed[0] + ldsoff - imm:x}", ['m0'])
            sa(f"s_add_u32 s{sOff}, s{sRot}, 0x{sconst & 0x1ffff:x}", [S(sOff)]); sa(f"s_and_b32 s{sOff}, s{sOff}, 0x1ffff", [S(sOff)])
            e(Ins(i.text, 'dma', rd=i.rd))
        e(Ins("s_waitcnt vmcnt(0)", 'wait')); e(Ins("s_barrier", 'barrier'))
        for i in fb['reads']: em.raw(Ins(i.text, 'ds_r'))
        e(Ins("s_waitcnt lgkmcnt(0)", 'wait'))
        sa(f"s_mov_b32 s{sRedo}, 1")
        e(Ins(f"s_branch L_{pf}Aent{r}", 'salu'))
        s.em.out += em.out

def reduce_kernel(rf=''):
    L = []; a = L.append
    a("s_cmp_ge_u32 s2, 640"); a("s_cbranch_scc1 LR_end")
    a("s_load_dwordx2 s[4:5], s[0:1], 80"); a("s_load_dwordx2 s[8:9], s[0:1], 96")
    a("v_lshrrev_b32 v1, 6, v0"); a("s_nop 0"); a("v_readfirstlane_b32 s12, v1"); a("v_and_b32 v0, 63, v0")
    a("s_lshl_b32 s13, s2, 2"); a("s_nop 2"); a("s_add_u32 s13, s13, s12")
    a(f"s_mul_hi_u32 s14, s13, {(2**32 + 79)//80}")
    a("s_mul_i32 s15, s14, 80"); a("s_sub_u32 s15, s13, s15")
    a(f"s_mul_hi_u32 s16, s15, {(2**32 + 19)//20}")
    a("s_mul_i32 s17, s16, 20"); a("s_sub_u32 s17, s15, s17")
    a(f"s_mul_hi_u32 s18, s17, {(2**32 + 4)//5}")
    a("s_mul_i32 s19, s18, 5"); a("s_sub_u32 s19, s17, s19")
    a("s_mul_i32 s20, s14, 1310720"); a("s_mul_i32 s21, s16, 40960"); a("s_add_u32 s20, s20, s21")
    a("s_lshl_b32 s21, s17, 11"); a("s_add_u32 s20, s20, s21")
    a("v_lshlrev_b32 v1, 4, v0")
    a("s_waitcnt lgkmcnt(0)")
    a("s_mov_b32 s10, 41943040"); a("s_mov_b32 s11, 0x20000")
    a("s_mov_b32 s6, 5242880"); a("s_mov_b32 s7, 0x20000")
    for sl in range(8):
        for up in range(2):
            d = 16 + (sl * 2 + up) * 4
            a(f"buffer_load_dwordx4 v[{d}:{d+3}], v1, s[8:11], s20 offen offset:{up*1024} {rf}")
        if sl < 7: a("s_add_u32 s20, s20, 163840")
    a("s_and_b32 s22, s14, 15"); a("s_lshr_b32 s23, s14, 4")
    a("s_mul_i32 s22, s22, 160"); a("s_and_b32 s24, s16, 1"); a("s_mul_i32 s24, s24, 80"); a("s_add_u32 s22, s22, s24")
    a("s_lshl_b32 s24, s19, 4"); a("s_add_u32 s22, s22, s24"); a("s_lshl_b32 s22, s22, 11")
    a("s_lshl_b32 s23, s23, 10"); a("s_lshr_b32 s24, s16, 1"); a("s_lshl_b32 s24, s24, 9"); a("s_add_u32 s23, s23, s24")
    a("s_lshl_b32 s24, s18, 7"); a("s_add_u32 s23, s23, s24"); a("s_add_u32 s22, s22, s23")
    a("v_and_b32 v2, 15, v0"); a("v_lshlrev_b32 v2, 11, v2"); a("v_lshrrev_b32 v3, 4, v0"); a("v_lshl_add_u32 v2, v3, 3, v2")
    a("s_mov_b32 s25, 0xffff0000")
    for sl in range(8):
        a(f"s_waitcnt vmcnt({14 - 2*sl})")
        for j in range(8):
            src = 16 + sl * 8 + j
            if sl == 0:
                a(f"v_lshlrev_b32 v{80+2*j}, 16, v{src}"); a(f"v_and_b32 v{81+2*j}, s25, v{src}")
            else:
                a(f"v_lshlrev_b32 v4, 16, v{src}"); a(f"v_and_b32 v5, s25, v{src}")
                a(f"v_add_f32 v{80+2*j}, v{80+2*j}, v4"); a(f"v_add_f32 v{81+2*j}, v{81+2*j}, v5")
    for j in range(8):
        a(f"v_cvt_pk_bf16_f32 v{8+j}, v{80+2*j}, v{81+2*j}")
    for t in range(4):
        a(f"buffer_store_dwordx2 v[{8+2*t}:{9+2*t}], v2, s[4:7], s22 offen offset:{32*t}")
    a("LR_end:"); a("s_endpgm")
    return "\n".join(L)

HEADER = open('cdna_kernels/' + NAME + '.s.ref').read().split("; Override launch")[0]

def kd(name, nv, acc):
    return f""".amdhsa_kernel {name}
  .amdhsa_next_free_vgpr {nv}
  .amdhsa_next_free_sgpr 102
  .amdhsa_accum_offset {acc}
  .amdhsa_group_segment_fixed_size 0
  .amdhsa_kernarg_size 104
  .amdhsa_user_sgpr_count 2
  .amdhsa_user_sgpr_kernarg_segment_ptr 1
  .amdhsa_system_sgpr_workgroup_id_x 1
.end_amdhsa_kernel
"""

def make(opts):
    vs = opts.get('var', 'XY')
    gens = []
    for v in dict.fromkeys(vs):
        g = Gen(opts, v); g.build()
        if opts.get('roll', 1):
            pins = g.make_pins()
            g = Gen(opts, v); g.sc.pins = pins
            g.build(); g.roll()
        if opts.get('drop'):
            dr = opts['drop'].split(',')
            first = next(j for j, i in enumerate(g.em.out) if i.kind == 'dma' and 'lds' in i.text)
            last = max(j for j, i in enumerate(g.em.out) if i.kind == 'mfma' and 'FB' not in i.text and j < next(t for t, z in enumerate(g.em.out) if z.text == 's_endpgm'))
            g.em.out = [i for j, i in enumerate(g.em.out) if i.kind not in dr or 's[24:27], s40' in i.text or j < first or (j > last and i.kind == 'valu')]
        n = {}
        for i in g.em.out: n[i.kind] = n.get(i.kind, 0) + 1
        sys.stderr.write(f"{v}: instr counts {n} overflow units {g.sc.overflow} nops {g.em.nnop} late {g.sc.softlate[:8]}\n")
        gens.append(g)
    pg = Gen(opts, 'Z'); pg.prologue()
    main = pg.em.text() + "\n"
    if len(gens) == 2:
        main += f"s_cmp_eq_u32 s45, 0\ns_cbranch_scc1 L_path0\ns_branch L_path1\nL_end:\ns_endpgm\nL_path0:\n" + gens[0].em.text() + "\nL_path1:\n" + gens[1].em.text()
    else:
        main += "s_branch L_path0\nL_end:\ns_endpgm\nL_path0:\n" + gens[0].em.text()
    g = gens[0]
    kn = NAME + "_kernel"
    launches = f"; @launch kernel={kn} grid=(256,1,1) block=(256,1,1) lds={LDS_BYTES}\n"
    if opts.get('ikr') and opts.get('single', 1): launches = f"; @launch grid=(256,1,1) block=(256,1,1) lds={LDS_BYTES}\n"
    if not opts.get('noreduce') and not opts.get('ikr'):
        launches += f"; @launch kernel=reduce_kernel grid=(640,1,1) block=(256,1,1) lds=0\n"
    t = HEADER + launches + '.amdgcn_target "amdgcn-amd-amdhsa--gfx950"\n.text\n'
    t += f".globl {kn}\n.p2align 8\n.type {kn},@function\n{kn}:\n" + main + "\n"
    if not opts.get('ikr'): t += ".globl reduce_kernel\n.p2align 8\n.type reduce_kernel,@function\nreduce_kernel:\n" + reduce_kernel(opts.get('rflags', '')) + "\n"
    t += '.section .rodata,"a"\n.p2align 6\n' + kd(kn, 512, 256)
    if not opts.get('ikr'): t += ".p2align 6\n" + kd("reduce_kernel", 96, 96)
    return t, g

if __name__ == "__main__":
    opts = {}
    out = sys.argv[1]
    for kv in sys.argv[2:]:
        k, v = kv.split("=", 1)
        opts[k] = int(v) if v.lstrip('-').isdigit() else v
    t, g = make(opts)
    open(out, "w").write(t)
```

```python
import sys, struct, re
from core import *

NAME = "concat_heads__mha_block_cached__mha_block_cached__near_ridge"
LDS_BYTES = 163840
BLK = 16384
RPK = [0, 2, 4, 6]; RPV = [1, 3, 5, 7]
WQB = [3, 4, 5, 6]; WOB = [8, 9, 6, 7]
WBASE = 98304; UBASE = 49152
XAREA = [143360, 122880]; XBASE = 122880

sK, sV, sX, sWq, sWo, sWs = S(4,4), S(8,4), S(12,4), S(16,4), S(20,4), S(24,4)
sW, sXw, sOff, sOwn, sOth = 28, 29, 30, 31, 32
sWave, sP, sI, sRedo = 33, 34, 35, 36
sC = S(38, 2)
vT = [1,2,3,4]; vD = [5,6,7,8]; vU = [9,10,11,12]
vOffK, vOffV, vOffX, vOffWq, vOffWo = 13, 14, 15, 16, 17
vLinW, vLinR, vSt = 18, 19, 20
vX = [76, 77]; vDummy = 78; vZero = 79
L_LO = (127 - 40) << 23; L_HI = (127 + 40) << 23
NEGM, SBUF, PBUF, OACC = 24, 44, 240, 80
NSB = 4
sKV, sLq, sLx, sLo, sCnt = 42, 43, 48, 49, 96
sRot, sT, sHi3 = 98, 99, 97
sQr, sXr, sHiQ = 72, 73, 97
aQ, aKF, aVF, aST, aL, aONE = 0, 80, 112, 144, 224, 244

def f32(x): return struct.unpack('<I', struct.pack('<f', x))[0]
CSCALE = 1.4426950408889634 * (128 ** -0.5)

class Alloc:
    def __init__(s):
        s.gr = [None] * 40
        s.order = []
    def free_blocks(s):
        return [b for b in range(10) if all(s.gr[4*b+j] is None for j in range(4))]
    def take_block(s, b, who):
        for j in range(4):
            assert s.gr[4*b+j] is None
            s.gr[4*b+j] = who
    def range_free(s, lo, n): return all(s.gr[j] is None for j in range(lo // 4096, (lo + n) // 4096))
    def take_range(s, lo, n, who):
        for j in range(lo // 4096, (lo + n) // 4096):
            assert s.gr[j] is None
            s.gr[j] = who
    def release(s, who):
        for j in range(40):
            if s.gr[j] is who: s.gr[j] = None
    def held(s, cls): return len({id(x) for x in s.gr if isinstance(x, Xfer) and x.cls == cls})

class Xfer:
    def __init__(s, cls, name, pieces, allowed=None, fixed=None):
        s.cls = cls; s.name = name; s.pieces = pieces
        s.allowed = allowed; s.fixed = fixed
        s.addr = None; s.ins = []; s.reads = []; s.issued = 0

class Gen:
    def __init__(s, opts, var):
        s.o = opts; s.var = var; s.pf = var
        s.em = Emitter()
        s.sc = Sched(s.em)
        s.al = Alloc()
        s.sc.ldspace = opts.get('ldspace', 2)
        s.aT = [AddrReg(v) for v in vT]
        s.aD = [AddrReg(v) for v in vD]
        s.aU = [AddrReg(v, base=UBASE) for v in vU]
        s.aX = [AddrReg(v, base=XBASE) for v in vX]
        s.bval = {}
        s.marks = []
        s.fb = {}
        s.kvpair = 0
        s.m0own = None
        s.soff_cur = None
        s.last_dma_gap = {}
        s.gate = {}
        s.stamps = 0
    def try_alloc(s, x, dry):
        if x.addr is not None: return True
        if x.cls in s.gate and not s.gate[x.cls](x): return False
        if x.fixed is not None:
            lo, n = x.fixed
            if not s.al.range_free(lo, n): return False
            if not dry: s.al.take_range(lo, n, x); x.addr = lo
            return True
        fb = [b for b in s.al.free_blocks() if x.allowed is None or b in x.allowed(x)]
        if not fb: return False
        if not dry:
            s.al.take_block(fb[0], x); x.addr = fb[0] * BLK
        return True
    def add_xfer(s, stream, x, earliest=-1, deadline=10**9, spacing=0, prio=5):
        for pi, (srd, voff, sbase, sconst, imm, ldsoff, m0b, flags) in enumerate(x.pieces):
            def mk(pi=pi, srd=srd, voff=voff, sbase=sbase, sconst=sconst, imm=imm, ldsoff=ldsoff, m0b=m0b, flags=flags):
                st = {}
                def peek_m0():
                    if s.m0own is not None: return None
                    if s.sc.g - s.last_dma_gap.get(stream, -999) < (spacing if not (s.o.get('pair') and x.cls == 'kv') else (2 * spacing - 2 if pi % 2 == 0 else 1)) - 1: return None
                    if not s.try_alloc(x, True): return None
                    a = x.addr
                    if a is None:
                        if x.fixed is not None: a = x.fixed[0]
                        else: a = [b for b in s.al.free_blocks() if x.allowed is None or b in x.allowed(x)][0] * BLK
                    val = (a + ldsoff - imm - s.bval.get(m0b, 0)) & 0xffffffff
                    return ('salu', salu(f"s_add_u32 m0, s{m0b}, 0x{val:x}", ['m0'], [S(m0b)]), True)
                def commit_m0(ins, c):
                    s.try_alloc(x, False); s.m0own = stream
                    for it in st['next']:
                        if not it.pinned: it.deadline = min(it.deadline, s.sc.g + (5 if rot else 3))
                msk = getattr(x, 'mask', None)
                rot = msk is not None
                def peek_so():
                    key = (sbase, sconst)
                    if s.soff_cur == key: st['skip'] = True; return ('skip', None, True)
                    st['skip'] = False
                    if sbase is None: i = salu(f"s_mov_b32 s{sOff}, 0x{sconst:x}", [S(sOff)])
                    elif rot: i = salu(f"s_add_u32 s{sOff}, s{sbase}, 0x{((sconst & msk) - s.bval.get(sbase, 0)) & msk:x}", [S(sOff)], [S(sbase)])
                    else: i = salu(f"s_add_u32 s{sOff}, s{sbase}, 0x{(sconst - s.bval.get(sbase, 0)) & 0xffffffff:x}", [S(sOff)], [S(sbase)])
                    return ('salu', i, True)
                def commit_so(ins, c): s.soff_cur = (sbase, sconst)
                def peek_so2():
                    if st['skip']: return ('skip', None, True)
                    return ('salu', salu(f"s_and_b32 s{sOff}, s{sOff}, 0x{msk:x}", [S(sOff)], [S(sOff)]), True)
                def peek_so3():
                    if st['skip']: return ('skip', None, True)
                    if getattr(x, 'dynhi', None): return ('salu', salu(f"s_add_u32 s{sOff}, s{sOff}, s{x.dynhi}", [S(sOff)], [S(sOff), S(x.dynhi)]), True)
                    d = (sconst & ~msk) - ((s.kvpair << 17) if x.cls == 'kv' else 0)
                    if d == 0: return ('skip', None, True)
                    return ('salu', salu(f"s_add_u32 s{sOff}, s{sOff}, 0x{d:x}", [S(sOff)], [S(sOff)]), True)
                def peek_dma():
                    t = f"buffer_load_dwordx4 v{voff}, {srd}, s{sOff} offen" + (f" offset:{imm}" if imm else "") + (f" {flags}" if flags else "") + " lds"
                    return ('dma', Ins(t, 'dma', rd=[f"v{voff}", f"s{sOff}", 'm0'] + srd.regs()), True)
                def commit_dma(ins, c):
                    ins.tag = (x, srd, voff, sbase, sconst, imm, ldsoff, m0b, flags)
                    s.m0own = None; x.ins.append(ins); x.issued += 1; s.last_dma_gap[stream] = s.sc.g
                s.sc.item(stream, Item(peek_m0, earliest, deadline, prio, f"{x.name}.m0.{pi}", commit_m0))
                st['next'] = [s.sc.item(stream, Item(peek_so, earliest, deadline, prio, f"{x.name}.so.{pi}", commit_so))]
                if rot:
                    st['next'].append(s.sc.item(stream, Item(peek_so2, earliest, deadline, prio, f"{x.name}.so2.{pi}")))
                    st['next'].append(s.sc.item(stream, Item(peek_so3, earliest, deadline, prio, f"{x.name}.so3.{pi}")))
                if x.cls == 'kv' and s.o.get('kvwin') and getattr(x, 'win', False):
                    wn = s.o['kvwin']
                    st['next'].append(s.sc.item(stream, Item(lambda: ('salu', Ins(f"s_waitcnt vmcnt({wn}) ", 'salu'), True), earliest, deadline, prio, f"{x.name}.win.{pi}")))
                st['next'].append(s.sc.item(stream, Item(peek_dma, earliest, deadline, prio, f"{x.name}.dma.{pi}", commit_dma)))
            mk()
    def blk_pieces(s, srd, voff, sbase, c0, rowstep16, cbstep, flags="", sW=sW):
        P = []
        for hi in (0, 1):
            for cb in (0, 1):
                if cbstep < 4096: P.append((srd, voff, sbase, c0 + hi * rowstep16, cb * cbstep, cb * 4096 + hi * 2048, sW, flags))
                else: P.append((srd, voff, sbase, c0 + hi * rowstep16 + cb * cbstep, 0, cb * 4096 + hi * 2048, sW, flags))
        return P
    def xf_K(s, n, m0b=sW): return Xfer('kv', f"K{n}", s.blk_pieces(sK, vOffK, sKV, n * 8192, 4096, 128, s.o.get('kvflags', 'nt'), m0b), fixed=(RPK[n % 4] * BLK, BLK))
    def xf_V(s, n, m0b=sW): return Xfer('kv', f"V{n}", s.blk_pieces(sV, vOffV, sKV, n * 8192, 4096, 128, s.o.get('kvflags', 'nt'), m0b), fixed=(RPV[n % 4] * BLK, BLK))
    def xf_Wq(s, r, k): return Xfer('wq', f"Wq{r}.{k}", s.blk_pieces(sWq, vOffWq, sLq, k * 32 * 8192 + r * 256, 16 * 8192, 128, s.o.get('wqflags', '')), fixed=(WQB[k % 4] * BLK, BLK))
    def xf_X(s, r, c):
        if s.o.get('krot'): P = [(sX, vOffX, sLx, m * 16384 + c * 128, 0, m * 2048, sXw, s.o.get('xflags', '')) for m in range(5)]
        else: P = [(sX, vOffX, sLx, m * 16384 + (c >> 1) * 256, (c & 1) * 128, m * 2048, sXw, s.o.get('xflags', '')) for m in range(5)]
        return Xfer('x', f"X{r}.{c}", P, fixed=(XAREA[c & 1], 20480))
    def xf_Wo(s, ch, m):
        grp = m // 2; sb = sOwn if grp < 2 else sOth
        hrow = 128 if grp in (0, 2) else 0
        k0 = hrow + (m & 1) * 64
        return Xfer('wo', f"Wo{ch}.{m}", s.blk_pieces(sWo, vOffWo, sb, k0 * 1024 + ch * 128, 16 * 1024, 32 * 1024, s.o.get('woflags', '')), fixed=(WOB[m % 4] * BLK, BLK))
    def xf_WoH(s, r, ch, m):
        sb = sOwn if m < 2 else sOth
        k0 = 128 * r + (m & 1) * 64
        return Xfer('wo', f"WoH{r}.{ch}.{m}", s.blk_pieces(sWo, vOffWo, sb, k0 * 1024 + ch * 128, 16 * 1024, 32 * 1024, s.o.get('woflags', '')), fixed=(WOB[m % 4] * BLK, BLK))
    def mark(s, idx, group, incs):
        def fn():
            if group: s.em.raw(Ins(f"; MARK {group}", 'comment', tag=('mark', group))); s.marks.append((group, idx))
            n = 0
            for sg, d in incs.items():
                if sg == 'hiq':
                    s.em.raw(salu(f"s_add_u32 s{sT}, s{sT}, 0x180000", [S(sT)], [S(sT)])); s.em.raw(salu(f"s_and_b32 s{sHiQ}, s{sT}, 0x400000", [S(sHiQ)], [S(sT)])); n += 2
                elif sg == 'hi3':
                    s.em.raw(salu(f"s_add_u32 s{sT}, s{sT}, 0xc000", [S(sT)], [S(sT)])); s.em.raw(salu(f"s_and_b32 s{sHi3}, s{sT}, 0x20000", [S(sHi3)], [S(sT)])); n += 2
                elif sg == 'vx': s.em.emit(valu(f"v_add_u32 v{vOffX}, 0x{d & 0xffffffff:x}, v{vOffX}", [V(vOffX)], [V(vOffX)])); n += 1
                else: s.em.raw(salu(f"s_add_u32 s{sg}, s{sg}, 0x{d & 0xffffffff:x}", [S(sg)], [S(sg)])); n += 1
                s.bval[sg] = s.bval.get(sg, 0) + d
            s.soff_cur = None
            return n
        s.sc.post(idx, fn)
        if group: s.sc.markidx.append(idx)
    def setbase(s, idx, sg, val=0):
        def fn():
            src = {sLq: sQr, sLx: sXr}.get(sg) if s.o.get('krot') else None
            s.em.raw(salu(f"s_mov_b32 s{sg}, s{src}" if src else f"s_mov_b32 s{sg}, 0x{val:x}", [S(sg)])); s.bval[sg] = val; s.soff_cur = None; return 1
        s.sc.post(idx, fn)
    def touch_item(s, stream, srd, voff, sbase, sconst, flags, earliest, deadline, name):
        mk = lambda: salu(f"s_mov_b32 s41, 0x{sconst:x}", [S(41)]) if sbase is None else salu(f"s_add_u32 s41, s{sbase}, 0x{(sconst - s.bval.get(sbase, 0)) & 0xffffffff:x}", [S(41)], [S(sbase)])
        ld = Ins(f"buffer_load_dword v22, v{voff}, {srd}, s41 offen {flags}", 'dma', rd=[f"v{voff}", 's41'] + srd.regs())
        s.sc.item(stream, Item(lambda: ('salu', mk(), True), earliest=earliest, deadline=deadline, prio=7, name=name))
        s.sc.item(stream, simple(ld, earliest=earliest, deadline=deadline + 2, prio=7, name=name))
    def ds_item(s, stream, op, dst, ar, x, off, wb, earliest, deadline, prio=1, name=""):
        tgt = lambda: (x.fixed[0] + off, wb)
        def peek():
            t = tgt()
            assert x.addr is not None, (x.name, "read before alloc")
            if not ar.reach(t): return ('valu', ar.rebase_ins(t), False)
            assert 0 <= t[0] - ar.base <= 65535
            return ('ds_r', Ins(f"{op} {dst}, v{ar.v} offset:{t[0] - ar.base}", 'ds_r', rd=[f"v{ar.v}"], wr=dst.regs()), True)
        def commit(ins, consume):
            if consume: x.reads.append(ins); ins.tag = (ar, ar.base)
            else: ar.rebased(tgt())
        return s.sc.item(stream, Item(peek, earliest, deadline, prio, name, commit, areg=(ar, tgt)))
    def rd_V(s, stream, frag, x, t, e0, dl, name=""):
        wb = (x.fixed[0] // 65536) * 65536
        for rd in (0, 1):
            s.ds_item(stream, "ds_read_b64_tr_b16", frag.sub(2 * rd, 2), s.aT[t & 3], x, (t >> 2) * 4096 + rd * 2048, wb, e0, dl, name=name)
    def rd_Wq(s, stream, frag, x, t, e0, dl, name=""):
        for rd in (0, 1):
            s.ds_item(stream, "ds_read_b64_tr_b16", frag.sub(2 * rd, 2), s.aU[t & 3], x, (t >> 2) * 4096 + rd * 512, UBASE, e0, dl, name=name)
    def rd_K(s, stream, frag, x, kt, u, e0, dl, name=""):
        wb = (x.fixed[0] // 65536) * 65536
        for pc in (0, 1):
            s.ds_item(stream, "ds_read_b64", frag.sub(2 * pc, 2), s.aD[2 * (u & 1) + pc], x, (u >> 1) * 4096 + kt * 2048, wb, e0, dl, name=name)
    def rd_X(s, stream, frag, x, k, qb, e0, dl, name=""):
        s.ds_item(stream, "ds_read_b128", frag, s.aX[k & 1], x, qb * 2048, XBASE, e0, dl, name=name)
    def sync_at(s, idx, need, free):
        def fn():
            n = 0
            for x in need: assert x.issued == len(x.pieces), (x.name, "not issued by sync", s.sc.g)
            vm = s.em.vm_needed([i for x in need for i in x.ins])
            lg = s.em.lgkm_needed([i for x in free for i in x.reads])
            for x in free: assert len(x.reads) == x.nreads, (x.name, len(x.reads), x.nreads, s.sc.g)
            if s.em.wait(lg, vm): n += 1
            s.em.raw(Ins("s_barrier", 'barrier')); n += 1
            for x in free: s.al.release(x)
            return n
        s.sc.post(idx, fn)
    def stamp(s, idx):
        if not s.o.get('stamps'): return
        k = s.stamps; s.stamps += 1
        def fn():
            s.em.raw(Ins(f"s_memtime s[{50+2*k}:{51+2*k}]", 'salu'))
            return 1
        s.sc.post(idx, fn)

    def prologue(s):
        e = s.em.emit
        sa = lambda t, w=(), r=(): e(salu(t, w, r))
        va = lambda t, w, r: e(valu(t, w, r))
        sa("s_cmp_ge_u32 s2, 256"); e(Ins("s_cbranch_scc1 L_end", 'salu'))
        if s.o.get('stamps'):
            e(Ins("s_memtime s[94:95]", 'salu')); e(Ins("s_memrealtime s[90:91]", 'salu'))
        e(Ins("s_load_dwordx16 s[64:79], s[0:1], 0", 'salu'))
        e(Ins("s_load_dwordx8 s[80:87], s[0:1], 64", 'salu'))
        e(Ins("s_load_dwordx2 s[88:89], s[0:1], 96", 'salu'))
        va("v_lshrrev_b32 v21, 6, v0", [V(21)], [V(0)])
        sa("s_and_b32 s40, s2, 7"); sa("s_lshr_b32 s41, s2, 3"); sa("s_lshr_b32 s42, s40, 2"); sa("s_and_b32 s43, s40, 3")
        va(f"v_readfirstlane_b32 s{sWave}, v21", [S(sWave)], [V(21)])
        sa("s_lshr_b32 s44, s41, 1"); sa("s_and_b32 s45, s41, 1")
        sa("s_lshl_b32 s46, s43, 3"); sa("s_lshl_b32 s47, s45, 2"); sa("s_add_u32 s46, s46, s47")
        sa(f"s_lshr_b32 s{sP}, s{sWave}, 1", [S(sP)], [S(sWave)]); sa(f"s_and_b32 s{sI}, s{sWave}, 1")
        sa(f"s_mov_b32 s{sRedo}, 0")
        va("v_and_b32 v0, 63, v0", [V(0)], [V(0)])
        va("v_lshrrev_b32 v21, 5, v0", [V(21)], [V(0)])
        va("v_lshlrev_b32 v21, 10, v21", [V(21)], [V(21)])
        va("v_bfe_u32 v22, v0, 2, 3", [V(22)], [V(0)])
        va("v_lshl_add_u32 v21, v22, 7, v21", [V(21)], [V(22), V(21)])
        va("v_and_b32 v23, 3, v0", [V(23)], [V(0)])
        va("v_lshl_add_u32 v21, v23, 3, v21", [V(21)], [V(23), V(21)])
        sa(f"s_lshl_b32 s48, s{sP}, 13")
        va("v_add_u32 v21, s48, v21", [V(21)], [V(21)])
        va("v_lshrrev_b32 v22, 1, v22", [V(22)], [V(22)])
        for ee in range(4):
            va(f"v_xor_b32 v23, {ee}, v22", [V(23)], [V(22)])
            va(f"v_lshl_add_u32 v{vT[ee]}, v23, 5, v21", [V(vT[ee])], [V(23), V(21)])
        va("v_bfe_u32 v21, v0, 3, 1", [V(21)], [V(0)])
        va("v_lshlrev_b32 v21, 10, v21", [V(21)], [V(21)])
        va("v_and_b32 v22, 7, v0", [V(22)], [V(0)])
        va("v_lshl_add_u32 v21, v22, 7, v21", [V(21)], [V(22), V(21)])
        va("v_bfe_u32 v22, v0, 4, 1", [V(22)], [V(0)])
        va("v_lshl_add_u32 v21, v22, 3, v21", [V(21)], [V(22), V(21)])
        va("v_bfe_u32 v22, v0, 1, 3", [V(22)], [V(0)])
        va("v_lshrrev_b32 v23, 5, v0", [V(23)], [V(0)])
        va("v_xor_b32 v22, v23, v22", [V(22)], [V(23), V(22)])
        for j in range(4):
            va(f"v_xor_b32 v23, {2*j}, v22", [V(23)], [V(22)])
            va(f"v_lshl_add_u32 v23, v23, 4, v21", [V(23)], [V(23), V(21)])
            va(f"v_add_u32 v{vD[j]}, s48, v23", [V(vD[j])], [V(23)])
        va("v_lshrrev_b32 v21, 4, v0", [V(21)], [V(0)])
        va("v_lshlrev_b32 v21, 10, v21", [V(21)], [V(21)])
        va("v_bfe_u32 v22, v0, 2, 2", [V(22)], [V(0)])
        va("v_lshl_add_u32 v21, v22, 7, v21", [V(21)], [V(22), V(21)])
        va("v_and_b32 v23, 3, v0", [V(23)], [V(0)])
        va("v_lshl_add_u32 v21, v23, 3, v21", [V(21)], [V(23), V(21)])
        sa(f"s_add_u32 s49, s48, {UBASE}")
        va("v_add_u32 v21, s49, v21", [V(21)], [V(21)])
        va("v_bfe_u32 v22, v0, 3, 2", [V(22)], [V(0)])
        for ee in range(4):
            va(f"v_xor_b32 v23, {ee}, v22", [V(23)], [V(22)])
            va(f"v_lshl_add_u32 v{vU[ee]}, v23, 5, v21", [V(vU[ee])], [V(23), V(21)])
        va("v_lshrrev_b32 v21, 3, v0", [V(21)], [V(0)])
        va("v_and_b32 v22, 7, v0", [V(22)], [V(0)])
        va("v_lshrrev_b32 v23, 4, v0", [V(23)], [V(0)])
        sa(f"s_lshl_b32 s50, s{sI}, 2")
        va(f"v_add_u32 v{vLinW}, s50, v23", [V(vLinW)], [V(23)])
        va(f"v_xor_b32 v{vLinW}, v22, v{vLinW}", [V(vLinW)], [V(22), V(vLinW)])
        va(f"v_lshlrev_b32 v{vLinW}, 4, v{vLinW}", [V(vLinW)], [V(vLinW)])
        va(f"v_lshlrev_b32 v23, 1, v23", [V(23)], [V(23)])
        va(f"v_xor_b32 v23, v22, v23", [V(23)], [V(22), V(23)])
        va(f"v_lshlrev_b32 v23, 4, v23", [V(23)], [V(23)])
        sa(f"s_lshl_b32 s50, s{sI}, 3")
        va(f"v_add_u32 v22, s50, v21", [V(22)], [V(21)])
        va(f"v_lshl_add_u32 v{vOffK}, v22, 8, v{vLinW}", [V(vOffK)], [V(22), V(vLinW)])
        va(f"v_lshl_add_u32 v{vOffV}, v22, 8, v23", [V(vOffV)], [V(22), V(23)])
        va(f"v_lshl_add_u32 v{vOffWo}, v22, 10, v23", [V(vOffWo)], [V(22), V(23)])
        va(f"v_bfe_u32 v23, v0, 4, 1", [V(23)], [V(0)])
        sa(f"s_lshl_b32 s50, s{sI}, 1")
        va(f"v_add_u32 v23, s50, v23", [V(23)], [V(23)])
        va(f"v_lshlrev_b32 v23, 1, v23", [V(23)], [V(23)])
        va(f"v_and_b32 v21, 7, v0", [V(21)], [V(0)])
        va(f"v_xor_b32 v23, v21, v23", [V(23)], [V(21), V(23)])
        va(f"v_lshlrev_b32 v23, 4, v23", [V(23)], [V(23)])
        va(f"v_lshl_add_u32 v{vOffWq}, v22, 13, v23", [V(vOffWq)], [V(22), V(23)])
        sa(f"s_mul_i32 s50, s{sP}, 80")
        va(f"v_add_u32 v22, s50, v22", [V(22)], [V(22)])
        va(f"v_lshl_add_u32 v{vOffX}, v22, 10, v{vLinW}", [V(vOffX)], [V(22), V(vLinW)])
        va("v_and_b32 v21, 15, v0", [V(21)], [V(0)])
        va("v_lshlrev_b32 v21, 7, v21", [V(21)], [V(21)])
        sa(f"s_mul_i32 s49, s{sI}, 10240"); sa(f"s_add_u32 s49, s49, {XBASE}")
        va("v_add_u32 v21, s49, v21", [V(21)], [V(21)])
        va("v_bfe_u32 v22, v0, 1, 3", [V(22)], [V(0)])
        va("v_lshrrev_b32 v23, 4, v0", [V(23)], [V(0)])
        va("v_xor_b32 v22, v23, v22", [V(22)], [V(23), V(22)])
        va(f"v_lshl_add_u32 v{vX[0]}, v22, 4, v21", [V(vX[0])], [V(22), V(21)])
        va("v_xor_b32 v22, 4, v22", [V(22)], [V(22)])
        va(f"v_lshl_add_u32 v{vX[1]}, v22, 4, v21", [V(vX[1])], [V(22), V(21)])
        va(f"v_lshlrev_b32 v{vSt}, 4, v0", [V(vSt)], [V(0)])
        sa(f"s_lshl_b32 s50, s{sI}, 10"); sa(f"s_add_u32 s{sW}, s48, s50", [S(sW)])
        sa(f"s_mul_i32 s51, s{sP}, 10240"); sa(f"s_add_u32 s{sXw}, s51, s50", [S(sXw)])
        sa(f"s_lshl_b32 s{sOwn}, s{sP}, 18"); sa(f"s_xor_b32 s{sOth}, s{sOwn}, 0x40000")
        sa(f"s_mov_b32 s{sC.lo}, 0x{f32(CSCALE):x}"); sa(f"s_mov_b32 s{sC.lo+1}, 0x{f32(CSCALE):x}")
        e(Ins("s_waitcnt lgkmcnt(0)", 'wait'))
        sa("s_cmp_eq_u32 s42, 0")
        sa("s_cselect_b64 s[12:13], s[64:65], s[74:75]"); sa("s_cselect_b64 s[4:5], s[66:67], s[76:77]")
        sa("s_cselect_b64 s[8:9], s[68:69], s[78:79]"); sa("s_cselect_b64 s[16:17], s[70:71], s[80:81]")
        sa("s_cselect_b64 s[20:21], s[72:73], s[82:83]")
        def add64(lo, off):
            sa(f"s_add_u32 s{lo}, s{lo}, {off}"); sa(f"s_addc_u32 s{lo+1}, s{lo+1}, 0")
        sa("s_mul_i32 s50, s44, 163840"); add64(12, "s50"); sa("s_mov_b32 s14, 163840"); sa("s_mov_b32 s15, 0x20000")
        sa(f"s_lshl_b32 s51, s{sP}, 1"); sa(f"s_add_u32 s51, s46, s51")
        sa("s_lshl_b32 s50, s51, 8"); add64(16, "s50"); sa("s_sub_u32 s18, 0x400000, s50"); sa("s_mov_b32 s19, 0x20000")
        sa("s_lshl_b32 s50, s44, 5"); sa("s_add_u32 s50, s50, s51"); sa("s_lshl_b32 s50, s50, 17")
        add64(4, "s50"); sa("s_mov_b32 s6, 0x40000"); sa("s_mov_b32 s7, 0x20000")
        add64(8, "s50"); sa("s_mov_b32 s10, 0x40000"); sa("s_mov_b32 s11, 0x20000")
        sa("s_lshl_b32 s50, s46, 17"); sa(f"s_lshl_b32 s51, s{sP}, 9"); sa("s_add_u32 s50, s50, s51")
        add64(20, "s50"); sa("s_sub_u32 s22, 0x80000, s51"); sa("s_mov_b32 s23, 0x20000")
        sa("s_lshl_b32 s50, s42, 4"); sa("s_add_u32 s50, s50, s44"); sa("s_lshl_b32 s50, s50, 3")
        sa("s_lshl_b32 s51, s43, 1"); sa("s_add_u32 s50, s50, s51"); sa("s_add_u32 s50, s50, s45")
        sa("s_mul_i32 s50, s50, 163840"); sa(f"s_mul_i32 s51, s{sWave}, 40960"); sa("s_add_u32 s50, s50, s51")
        sa("s_mov_b32 s24, s88"); sa("s_mov_b32 s25, s89"); add64(24, "s50"); sa("s_mov_b32 s26, 40960"); sa("s_mov_b32 s27, 0x20000")
        if s.o.get('ikr'):
            sa("s_lshl_b32 s50, s42, 4"); sa("s_add_u32 s50, s50, s44")
            sa("s_lshl_b32 s51, s43, 1"); sa("s_add_u32 s51, s51, s45")
            sa("s_mul_i32 s52, s50, 1310720"); sa("s_add_u32 s76, s88, s52"); sa("s_addc_u32 s77, s89, 0"); sa("s_mov_b32 s78, 1310720"); sa("s_mov_b32 s79, 0x20000")
            sa("s_lshl_b32 s52, s50, 8"); sa("s_add_u32 s52, s52, 0x3000000"); sa("s_add_u32 s80, s88, s52"); sa("s_addc_u32 s81, s89, 0"); sa("s_mov_b32 s82, 256"); sa("s_mov_b32 s83, 0x20000")
            sa("s_lshl_b32 s52, s50, 2"); sa("s_add_u32 s86, s86, s52"); sa("s_addc_u32 s87, s87, 0")
            sa("s_lshr_b32 s52, s51, 1"); sa("s_mul_i32 s74, s52, 40960"); sa(f"s_mul_i32 s53, s{sWave}, 10"); sa("s_and_b32 s54, s51, 1"); sa("s_add_u32 s53, s53, s54"); sa("s_lshl_b32 s53, s53, 10"); sa("s_add_u32 s74, s74, s53")
            sa("s_and_b32 s53, s52, 1"); sa("s_mul_i32 s53, s53, 80"); sa("s_mul_i32 s75, s44, 160"); sa("s_add_u32 s75, s75, s53"); sa("s_lshl_b32 s75, s75, 11")
            sa("s_lshl_b32 s53, s42, 10"); sa("s_add_u32 s75, s75, s53"); sa("s_lshr_b32 s53, s52, 1"); sa("s_lshl_b32 s53, s53, 9"); sa("s_add_u32 s75, s75, s53")
            sa(f"s_lshl_b32 s53, s{sWave}, 7"); sa("s_add_u32 s75, s75, s53"); sa("s_lshl_b32 s53, s54, 6"); sa("s_add_u32 s75, s75, s53")
        sa("s_mov_b32 s55, s43"); sa("s_mov_b32 s56, s42")
        if s.o.get('krot'):
            sa("s_lshl_b32 s50, s45, 2"); sa("s_add_u32 s50, s50, s44"); sa("s_and_b32 s50, s50, 7")
            sa(f"s_lshl_b32 s{sQr}, s50, 19"); sa(f"s_lshl_b32 s{sXr}, s50, 7"); sa(f"s_mov_b32 s{sLq}, s{sQr}"); sa(f"s_mov_b32 s{sLx}, s{sXr}")
        else:
            for sg in (sLq, sLx): sa(f"s_mov_b32 s{sg}, 0")
        rm = s.o.get('rot', 5)
        if rm == 0: sa(f"s_mov_b32 s{sRot}, 0")
        elif rm == 5:
            sa(f"s_mul_i32 s{sRot}, s2, 5"); sa(f"s_add_u32 s{sRot}, s{sRot}, s41"); sa(f"s_mul_i32 s50, s{sP}, 7"); sa(f"s_add_u32 s{sRot}, s{sRot}, s50")
        elif rm == 1:
            sa(f"s_lshl_b32 s{sRot}, s{sP}, 3"); sa(f"s_add_u32 s{sRot}, s{sRot}, s44")
        elif rm == 2:
            sa(f"s_lshl_b32 s{sRot}, s40, 1"); sa(f"s_add_u32 s{sRot}, s{sRot}, s41"); sa(f"s_mul_i32 s50, s{sP}, 7"); sa(f"s_add_u32 s{sRot}, s{sRot}, s50")
        elif rm == 3:
            sa(f"s_mul_i32 s{sRot}, s44, 3"); sa(f"s_lshl_b32 s50, s{sP}, 1"); sa("s_add_u32 s50, s50, s46"); sa("s_lshr_b32 s50, s50, 1"); sa("s_mul_i32 s50, s50, 5"); sa(f"s_add_u32 s{sRot}, s{sRot}, s50")
        elif isinstance(rm, str):
            a_, c_, d_, e_, f_ = map(int, rm.split(','))
            sa(f"s_mul_i32 s{sRot}, s44, {a_}")
            for reg, m in (('s55', c_), ('s45', d_), (f's{sP}', e_), ('s56', f_)):
                sa(f"s_mul_i32 s50, {reg}, {m}"); sa(f"s_add_u32 s{sRot}, s{sRot}, s50")
        elif rm == 4:
            sa(f"s_lshl_b32 s50, s2, 1"); sa(f"s_add_u32 s50, s50, s{sP}"); sa(f"s_mul_i32 s50, s50, 0x9e3779b1"); sa(f"s_lshr_b32 s{sRot}, s50, 28")
        sa(f"s_and_b32 s{sRot}, s{sRot}, 15"); sa(f"s_lshl_b32 s{sRot}, s{sRot}, 13"); sa(f"s_mov_b32 s{sKV}, s{sRot}")
        sa("s_lshl_b32 s50, s44, 5"); sa(f"s_lshl_b32 s51, s{sI}, 4"); sa("s_add_u32 s50, s50, s51")
        va("v_lshrrev_b32 v21, 2, v0", [V(21)], [V(0)])
        va("v_add_u32 v21, s50, v21", [V(21)], [V(21)])
        if s.o.get('wt') == 1:
            va("v_and_b32 v22, 3, v0", [V(22)], [V(0)])
            va("v_lshlrev_b32 v22, 7, v22", [V(22)], [V(22)])
            va("v_lshl_add_u32 v23, v21, 10, v22", [V(23)], [V(21), V(22)])
        else:
            va("v_and_b32 v22, 1, v0", [V(22)], [V(0)])
            va("v_lshlrev_b32 v22, 6, v22", [V(22)], [V(22)])
            va("v_lshl_add_u32 v23, v21, 10, v22", [V(23)], [V(21), V(22)])
        va("v_and_b32 v22, 3, v0", [V(22)], [V(0)])
        va("v_lshlrev_b32 v22, 6, v22", [V(22)], [V(22)])
        va("v_lshl_add_u32 v21, v21, 13, v22", [V(21)], [V(21), V(22)])
        if s.o.get('ikr'):
            va("v_mov_b32 v78, 0", [V(78)], [])
            e(Ins("buffer_load_dword v0, v78, s[80:83], 0 offen sc1", 'dma', rd=['v78']))
            e(Ins("buffer_load_dword a252, v78, s[80:83], 0 offen offset:128 sc1", 'dma', rd=['v78']))

    def valu_block(s, L, every=4):
        first = s.sc.n()
        for j, ins in enumerate(L):
            s.sc.add(ins, cap=(2 if (j % every) == every - 1 else 0))
        return first, s.sc.n() - 1

    def setup(s):
        o = s.o
        s.Wq = [[s.xf_Wq(r, k) for k in range(17)] for r in range(2)]
        s.X = [[s.xf_X(r, c) for c in range(8)] for r in range(2)]
        s.K = [s.xf_K(n) for n in range(33)]; s.Vv = [s.xf_V(n) for n in range(33)]
        for x in s.Wq[0] + s.Wq[1] + s.K + s.Vv: x.nreads = 16
        for x in s.X[0] + s.X[1]: x.nreads = 10
        for x in (s.Wq[0][16], s.Wq[1][16], s.K[32], s.Vv[32]): x.nreads = 0
        for n in (8, 12, 16, 24, 28, 32): s.K[n].dynhi = sHi3; s.Vv[n].dynhi = sHi3
        for x in s.K + s.Vv: x.mask = 0x1ffff
        for n in range(33):
            if n % 16 >= 4 or n in (16, 32): s.K[n].win = True; s.Vv[n].win = True
        if o.get('krot'):
            for r in range(2):
                for x in s.Wq[r]: x.mask = 0x3fffff
                for x in s.X[r]: x.mask = 0x3ff
                for k in (8, 12, 16): s.Wq[r][k].dynhi = sHiQ
        s.sp_st = o.get('sp_stage', 3); s.sp_kv = o.get('sp_kv', 6)
        s.pre_free = []

    def start(s):
        o = s.o; sc = s.sc
        g0 = sc.add(None, cap=0); s.g0 = g0
        s.stamp(g0)
        init = [valu(f"v_mov_b32 v44, 0x3f803f80", [V(44)], []), valu(f"v_mov_b32 v{vZero}, 0", [V(vZero)], [])]
        init += [valu(f"v_accvgpr_write_b32 a{aONE+j}, v44", [A(aONE + j)], [V(44)]) for j in range(4)]
        init += [valu(f"v_mov_b32 v{NEGM+j}, 0", [V(NEGM + j)], []) for j in range(20)]
        exs = 20480 if s.var != 'X' else 10240; exb = 0 if s.var != 'X' else 32768
        init += [salu(f"s_mul_i32 s46, s{sWave}, {exs}", [S(46)]), salu(f"s_add_u32 s46, s46, {exb}", [S(46)]),
                 valu(f"v_add_u32 v{vLinW}, s46, v{vSt}", [V(vLinW)], [V(vSt)]),
                 salu(f"s_xor_b32 s47, s{sWave}, 2", [S(47)]), salu(f"s_mul_i32 s47, s47, {exs}", [S(47)]), salu(f"s_add_u32 s47, s47, {exb}", [S(47)]),
                 valu(f"v_add_u32 v{vLinR}, s47, v{vSt}", [V(vLinR)], [V(vSt)])]
        if o.get('kvt'):
            init += [salu(f"s_cmp_eq_u32 s{sI}, 0"), salu("s_cselect_b64 s[100:101], s[4:5], s[8:9]" if not o.get('kvtm') else "s_mov_b64 s[100:101], s[4:5]"), salu("s_cselect_b32 s46, 8192, 0", [S(46)]),
                     valu(f"v_lshlrev_b32 v78, 3, v{vSt}", [V(78)], [V(vSt)]), valu(f"v_add_u32 v78, s46, v78", [V(78)], [V(78)]),
                     salu("s_mov_b32 s44, s100"), salu("s_mov_b32 s45, s101"), salu("s_mov_b32 s46, 0x40000"), salu("s_mov_b32 s47, 0x20000"), salu("s_mov_b32 s97, 0")]
        for x in (s.X[0][0], s.Wq[0][0], s.Wq[0][1], s.X[0][1], s.Wq[0][2], s.Wq[0][3]): s.add_xfer('stage', x, earliest=g0, deadline=g0, prio=0)
        gt = sc.add(None, cap=0)
        if 'q' in str(o.get('t0', '')):
            sc.item('tch', simple(Ins(f"buffer_load_dword v22, v21, {sWq}, 0 offen {o.get('t0qf', '')}", 'dma', rd=['v21']), earliest=gt, deadline=gt))
        if o.get('ct'):
            pf = s.pf
            init += [salu("s_getpc_b64 s[100:101]"), Ins(f"L_{pf}pc:", 'label'),
                     salu("s_lshr_b32 s46, s2, 3", [S(46)]), salu("s_lshl_b32 s46, s46, 2", [S(46)]), salu(f"s_add_u32 s46, s46, s{sWave}", [S(46)]), salu("s_lshl_b32 s46, s46, 9", [S(46)]),
                     valu(f"v_and_b32 v80, 48, v{vSt}", [V(80)], [V(vSt)]), valu("v_lshlrev_b32 v80, 3, v80", [V(80)], [V(80)]), valu("v_add_u32 v80, s46, v80", [V(80)], [V(80)]),
                     valu(f"v_min_u32 v80, L_{pf}end-L_{pf}pc, v80", [V(80)], [V(80)]), valu("v_mov_b32 v81, s101", [V(81)], []),
                     valu("v_add_co_u32 v80, vcc, s100, v80", [V(80), 'vcc'], [V(80)]), valu("v_addc_co_u32 v81, vcc, 0, v81, vcc", [V(81), 'vcc'], [V(81), 'vcc']),
                     Ins("global_load_dword v22, v[80:81], off", 'dma', rd=['v80', 'v81'])]
        a_, b_ = s.valu_block(init)
        s.presync = b_; s.first_dl = None

    def phase_Q(s, r, dst, nxt, k0order=None):
        o = s.o; sc = s.sc; Wq = s.Wq; X = s.X; K = s.K; Vv = s.Vv; sp_st = s.sp_st
        wqf = lambda k, t: A((aKF if k % 2 == 0 else aVF) + 4 * t, 4)
        xf = lambda k, qb: A(aQ + (k % 2) * 20 + 4 * qb, 4)
        pre = s.presync
        q0 = sc.n()
        s.sync_at(pre, [Wq[r][0], X[r][0]], s.pre_free); s.pre_free = []
        for t in range(8): s.rd_Wq('rdT', wqf(0, t), Wq[r][0], t, pre, q0 - 1, name=f"wq{r}.0.{t}")
        for qb in range(5): s.rd_X('rdD', xf(0, qb), X[r][0], 0, qb, pre, q0 - 1, name=f"x{r}.0.{qb}")
        base = {}; s.qpos0 = {}
        for k in range(16):
            base[k] = sc.n()
            for qb in (k0order if (k == 0 and k0order) else range(5)):
                for t in range(8):
                    acc = V(OACC + qb * 32 + t * 4, 4)
                    i = sc.add(mfma(acc, wqf(k, t), xf(k, qb), acc if k else 0))
                    if k == 0: s.qpos0[acc.lo] = i
        qend = sc.n() - 1
        s.qbase = base
        if o.get('krot'): s.setbase(base[0], sT, 0)
        if o.get('ikr') and r == 0:
            def announce():
                em = s.em
                em.raw(salu(f"s_cmp_lg_u32 s{sWave}, 0")); em.raw(Ins(f"s_cbranch_scc1 L_{s.pf}ann", 'salu'))
                for t in ("s_mov_b32 s44, s86", "s_mov_b32 s45, s87", "s_mov_b32 s46, 4", "s_mov_b32 s47, 0x20000", "s_mov_b64 exec, 1"): em.raw(salu(t))
                em.raw(valu("v_mov_b32 v45, 1", [V(45)], []))
                em.raw(Ins("buffer_atomic_add v45, v78, s[44:47], 0 offen", 'salu'))
                em.raw(salu("s_mov_b64 exec, -1"))
                em.raw(Ins(f"L_{s.pf}ann:", 'label')); em.raw(Ins("s_nop 4", 'nop', states=5))
                return 3
            sc.post(pre, announce)
        for k in range(16):
            bs = base[k]
            if k in (1, 5, 9, 13):
                inc = {sLq: 4 * 32 * 8192, sLx: 256} if k < 13 else {}
                if o.get('krot') and k < 13: inc['hiq'] = 1
                if o.get('kvt') and nxt == 'A' and k < 13:
                    m = o['kvt']
                    mul = 2 if o.get('kvtm') else 1
                    inc[97] = 8192 * m * mul
                    for jj in range(m):
                        e0 = bs + o.get('kvt_at', 20) + jj * (160 // m)
                        off = (s.nextA * 16 + o.get('kvts', 1) + ((k // 4) * m + jj) * mul) * 8192
                        s.touch_item('tch', S(44, 4), 78, 97, off, o.get('kvtf', 'nt'), e0, e0 + 10, "kvt")
                        if o.get('kvth'): s.touch_item('tch', S(44, 4), 78, 97, off + 64, o.get('kvtf', 'nt'), e0 + 2, e0 + 14, "kvt")
                s.mark(bs - 1, f"Q{r}", inc)
            if k < 15:
                need = [Wq[r][k + 1]] + ([X[r][(k + 1) // 2]] if (k + 1) % 2 == 0 else [])
                free = [Wq[r][k]] + ([X[r][k // 2]] if k % 2 == 1 else [])
                if k == 13: need.append(Wq[r][16]); free.append(Wq[r][16])
                s.sync_at(bs, need, free)
                for t in range(8): s.rd_Wq('rdT', wqf(k + 1, t), Wq[r][k + 1], t, bs, bs + 32, name=f"wq{r}.{k+1}.{t}")
                for qb in range(5): s.rd_X('rdD', xf(k + 1, qb), X[r][(k + 1) // 2], k + 1, qb, bs, bs + 32, name=f"x{r}.{k+1}.{qb}")
            else:
                s.sync_at(bs, [], [Wq[r][15], X[r][7]])
            if k % 2 == 1 and (k + 3) // 2 < 8: s.add_xfer('stage', X[r][(k + 3) // 2], earliest=bs, deadline=bs + 30, prio=0, spacing=sp_st)
            if k + 4 <= 16: s.add_xfer('stage', Wq[r][k + 4], earliest=bs, deadline=bs + 38, prio=0, spacing=sp_st)
        if o.get('qst') and r == o['qst'] - 1:
            s.stamp(base[0]); s.stamp(base[1] - 2); s.stamp(base[13])
        s.stamp(qend)
        if r == 0:
            e0, d0 = (s.g0, base[1] - 2) if not o.get('kv0at') else (base[13], base[14])
            for x in (K[0], Vv[0], K[1]): s.add_xfer('kv', x, earliest=e0, deadline=d0, prio=4, spacing=o.get('sp_kv0', 3))
        ep = []
        for qb in range(5):
            for u in range(4):
                src = OACC + qb * 32 + u * 8
                for j in range(4):
                    ep.append(valu(f"v_pk_mul_f32 v[{src+2*j}:{src+2*j+1}], v[{src+2*j}:{src+2*j+1}], {sC}", [V(src + 2*j, 2)], [V(src + 2*j, 2)]))
                for j in range(4):
                    ep.append(valu(f"v_cvt_pk_bf16_f32 v{src+j}, v{src+2*j}, v{src+2*j+1}", [V(src + j)], [V(src + 2*j, 2)]))
                for j in range(4):
                    ep.append(valu(f"v_accvgpr_write_b32 a{dst+qb*16+u*4+j}, v{src+j}", [A(dst + qb*16 + u*4 + j)], [V(src + j)]))
        if nxt == 'A':
            n0 = s.nextA * 16
            for (x, k) in ((K[n0 + 2], 13), (Vv[n0 + 1], 13), (Vv[n0 + 2], 14), (K[n0 + 3], 15), (Vv[n0 + 3], 15)):
                s.add_xfer('kv', x, earliest=base[k], deadline=qend + 60, prio=4, spacing=sp_st)
        else:
            s.setbase(base[13], sLq, 0); s.setbase(base[13], sLx, 0)
            if o.get('wt') == 2: s.touch_item('tch', sWq, 21, None, 256, o.get('wtf', ''), base[0], base[0] + 20, "wq1t")
            for (x, k) in ((X[1][0], 13), (Wq[1][0], 13), (Wq[1][1], 13), (Wq[1][2], 14), (X[1][1], 15), (Wq[1][3], 15)):
                s.add_xfer('stage', x, earliest=base[k], deadline=min(base[k] + 60, qend + 30), prio=0, spacing=sp_st)
        ea, eb = s.valu_block(ep)
        if nxt == 'A':
            s.setbase(ea, sLq, 0); s.setbase(ea, sLx, 0)
        s.presync = ea + (100 if nxt == 'A' else 140)

    def phase_A(s, r, qs, nxt, stash):
        o = s.o; sc = s.sc; K = s.K; Vv = s.Vv; sp_kv = s.sp_kv; sp_st = s.sp_st
        n0 = 16 * r; pf = s.pf
        aent = sc.add(None, cap=0)
        def entry():
            assert s.m0own is None
            if r == 1:
                for lo in (4, 8):
                    s.em.raw(salu(f"s_add_u32 s{lo}, s{lo}, 0x20000")); s.em.raw(salu(f"s_addc_u32 s{lo+1}, s{lo+1}, 0")); s.em.raw(salu(f"s_mov_b32 s{lo+2}, 0x20000"))
                s.kvpair = 1
            s.soff_cur = None
            s.em.raw(Ins(f"L_{pf}Aent{r}:", 'label'))
            s.fb[r] = dict(bval=dict(s.bval), aT=[a.base for a in s.aT], aD=[a.base for a in s.aD], qs=qs,
                           dmas=[i for x in K[n0:n0 + 4] + Vv[n0:n0 + 4] for i in x.ins],
                           reads=list(K[n0].reads) + list(Vv[n0].reads))
            assert len(s.fb[r]['reads']) == 32 and all(i.tag[0].base == i.tag[1] for i in s.fb[r]['reads'])
            return 0
        sc.post(aent, entry)
        kf = lambda kt, u: A(aKF + (u * 2 + kt) * 4, 4)
        vf = lambda dt: A(aVF + dt * 4, 4)
        Sb = lambda tau, kt: V(SBUF + (tau % NSB) * 8 + kt * 4, 4)
        Pb = lambda tau: V(PBUF + (tau % NSB) * 4, 4)
        asy = s.presync
        s.sync_at(asy, [K[n0], Vv[n0]], s.pre_free); s.pre_free = []
        for u in range(4):
            for kt in range(2): s.rd_K('rdD', kf(kt, u), K[n0], kt, u, asy, aent - 1, name=f"k{n0}")
        for dt in range(8): s.rd_V('rdT', vf(dt), Vv[n0], dt, asy, aent - 1, name=f"v{n0}")
        qk_pos = {}; pv_pos = {}; slot0 = {}
        for tau in range(82):
            slot0[tau] = sc.n()
            if tau < 80:
                st, qb = divmod(tau, 5)
                for u in range(4):
                    for kt in range(2):
                        d = Sb(tau, kt)
                        c = d if u else V(NEGM + qb * 4, 4)
                        qk_pos[(tau, kt, u)] = sc.add(mfma(d, kf(kt, u), A(qs + qb * 16 + u * 4, 4), c))
            if tau >= 2:
                t2 = tau - 2; st, qb = divmod(t2, 5)
                for dt in range(8):
                    acc = V(OACC + qb * 32 + dt * 4, 4)
                    pv_pos[(t2, dt)] = sc.add(mfma(acc, vf(dt), Pb(t2), acc if st else 0))
                l = A(aL + qb * 4, 4)
                pv_pos[(t2, 8)] = sc.add(mfma(l, A(aONE, 4), Pb(t2), l if st else 0))
        aend = sc.n() - 1
        if o.get('ast') == 2 and r == 0:
            for t_ in (0, 10, 20, 30, 40, 50, 60): s.stamp(slot0[t_])
        if o.get('ast') == 1 and r == 0:
            s.stamp(slot0[0]); s.stamp(slot0[4]); s.stamp(slot0[8] - 2); s.stamp(slot0[68])
        s.stamp(aend)
        for tau in (8, 28, 48, 68): s.mark(slot0[tau] - 1, f"A{r}", {sKV: 32768, 'hi3': 1} if tau < 68 else {})
        s.setbase(aent, sT, 0)
        for tau in range(80):
            e0 = qk_pos[(tau, 1, 3)] + 2
            dl = pv_pos[(tau, 0)] - 2
            for kt in range(2):
                for j in range(4):
                    rr = Sb(tau, kt).lo + j
                    sc.item('sm', simple(trans(f"v_exp_f32 v{rr}, v{rr}", [V(rr)], [V(rr)]), earliest=e0, deadline=dl - 4, prio=2, name=f"exp{tau}"))
                for j in range(2):
                    rr = Sb(tau, kt).lo + 2 * j
                    pd = Pb(tau).lo + 2 * kt + j
                    sc.item('sm', simple(valu(f"v_cvt_pk_bf16_f32 v{pd}, v{rr}, v{rr+1}", [V(pd)], [V(rr, 2)]), earliest=e0, deadline=dl, prio=2, name=f"cvt{tau}"))
        sy = {}
        for st in range(15):
            t4 = 5 * st + 4
            sy[st + 1] = slot0[t4] - 1
            s.sync_at(sy[st + 1], [K[n0 + st + 1], Vv[n0 + st + 1]], [K[n0 + st], Vv[n0 + st]])
            for u in range(4):
                for kt in range(2):
                    s.rd_K('rdD', kf(kt, u), K[n0 + st + 1], kt, u, qk_pos[(t4, kt, u)], qk_pos[(t4 + 1, kt, u)] - 7, name=f"k{n0+st+1}")
            for dt in range(8):
                s.rd_V('rdT', vf(dt), Vv[n0 + st + 1], dt, pv_pos[(t4, dt)], pv_pos[(t4 + 1, dt)] - 7, name=f"v{n0+st+1}")
            if st + 4 <= 16:
                s.add_xfer('kv', K[n0 + st + 4], earliest=sy[st + 1], deadline=sy[st + 1] + 70, prio=4, spacing=sp_kv)
                s.add_xfer('kv', Vv[n0 + st + 4], earliest=sy[st + 1], deadline=sy[st + 1] + 75, prio=4, spacing=sp_kv)
        ep = []
        RC = 64 if nxt == 'H' else SBUF
        T0 = 240 if nxt == 'H' else SBUF + 12
        flag_off = 131072 if nxt in ('Q', 'A') else 32768
        for qb in range(5):
            ep.append(valu(f"v_accvgpr_read_b32 v{RC+2*qb}, a{aL+4*qb}", [V(RC + 2*qb)], [A(aL + 4*qb)]))
        for qb in range(5):
            ep.append(valu(f"v_subrev_u32 v{T0+qb}, 0x{L_LO:x}, v{RC+2*qb}", [V(T0 + qb)], [V(RC + 2*qb)]))
        ep.append(valu(f"v_max3_u32 v{T0}, v{T0}, v{T0+1}, v{T0+2}", [V(T0)], [V(T0, 3)]))
        ep.append(valu(f"v_max3_u32 v{T0}, v{T0}, v{T0+3}, v{T0+4}", [V(T0)], [V(T0), V(T0 + 3, 2)]))
        ep.append(valu(f"v_cmp_lt_u32 vcc, 0x{L_HI - L_LO:x}, v{T0}", ['vcc'], [V(T0)]))
        for qb in range(5):
            ep.append(trans(f"v_rcp_f32 v{RC+2*qb}, v{RC+2*qb}", [V(RC + 2*qb)], [V(RC + 2*qb)]))
        ep.append(salu("s_cmp_lg_u64 vcc, 0", [], ['vcc']))
        ep.append(salu("s_cselect_b32 s40, 1, 0", [S(40)]))
        ep.append(valu(f"v_mov_b32 v{T0+1}, s40", [V(T0 + 1)], []))
        ep.append(salu(f"s_lshl_b32 s40, s{sWave}, 2", [S(40)]))
        ep.append(valu(f"v_add_u32 v{T0+2}, 0x{flag_off:x}, v{vZero}", [V(T0 + 2)], []))
        ep.append(valu(f"v_add_u32 v{T0+3}, s40, v{T0+2}", [V(T0 + 3)], [V(T0 + 2)]))
        fw = Ins(f"ds_write_b32 v{T0+3}, v{T0+1}", 'ds_w', rd=[f"v{T0+3}", f"v{T0+1}"])
        ep.append(fw)
        body = []; late = []
        for qb in range(5):
            for u in range(4):
                src = OACC + qb * 32 + u * 8
                dst = OACC + qb * 16 + u * 4
                for j in range(4):
                    body.append(valu(f"v_pk_mul_f32 v[{src+2*j}:{src+2*j+1}], v[{src+2*j}:{src+2*j+1}], v[{RC+2*qb}:{RC+2*qb+1}] op_sel_hi:[1,0]",
                                   [V(src + 2*j, 2)], [V(src + 2*j, 2), V(RC + 2*qb)]))
                for j in range(4):
                    body.append(valu(f"v_cvt_pk_bf16_f32 v{dst+j}, v{src+2*j}, v{src+2*j+1}", [V(dst + j)], [V(src + 2*j, 2)]))
                if stash is not None:
                    for j in range(4):
                        late.append(valu(f"v_accvgpr_write_b32 a{stash+qb*16+u*4+j}, v{dst+j}", [A(stash + qb*16 + u*4 + j)], [V(dst + j)]))
        ep += body[:16]
        i_bar1 = len(ep) - 1
        ep.append(Ins(f"ds_read_b128 v[{T0+4}:{T0+7}], v{T0+2}", 'ds_r', rd=[f"v{T0+2}"], wr=R('v', T0 + 4, 4)))
        ep += body[16:44]
        ep.append(valu(f"v_or3_b32 v{T0+4}, v{T0+4}, v{T0+5}, v{T0+6}", [V(T0 + 4)], [V(T0 + 4, 3)]))
        ep.append(valu(f"v_or_b32 v{T0+4}, v{T0+4}, v{T0+7}", [V(T0 + 4)], [V(T0 + 4), V(T0 + 7)]))
        ep += body[44:46]
        ep.append(valu(f"v_readfirstlane_b32 s40, v{T0+4}", [S(40)], [V(T0 + 4)]))
        ep += body[46:50]
        ep.append(salu(f"s_or_b32 s40, s40, s{sRedo}", [S(40)], [S(40)]))
        ep.append(Ins(f"s_cbranch_scc1 L_{pf}FB{r}", 'salu'))
        ep.append(Ins(f"L_{pf}Ret{r}:", 'label'))
        i_chk = len(ep) - 1
        ep += body[50:] + late
        ea, eb = s.valu_block(ep)
        for j in range(ea, ea + i_chk + 1): sc.bb[j].cap = 0
        def bar1():
            s.em.wait(s.em.lgkm_needed([fw]), None); s.em.raw(Ins("s_barrier", 'barrier')); return 2
        sc.post(ea + i_bar1, bar1)
        def at_ret():
            assert s.m0own is None
            s.fb[r]['end_aT'] = [a.base for a in s.aT]; s.fb[r]['end_aD'] = [a.base for a in s.aD]
            return 0
        sc.post(ea + i_chk, at_ret)
        ps = s.presync = ea + i_chk
        s.aeb = eb
        s.pre_free = [K[n0 + 15], Vv[n0 + 15]]
        tl = slot0[68]
        wtf = o.get('wtf', '')
        if nxt == 'Q':
            X = s.X; Wq = s.Wq
            if o.get('wt') == 2: s.touch_item('tch', sWq, 21, None, 256, wtf, slot0[68], slot0[69], "wq1t")
            s.add_xfer('stage', X[1][0], earliest=tl, deadline=sy[14], prio=0, spacing=sp_st)
            s.add_xfer('stage', Wq[1][0], earliest=sy[14], deadline=sy[15], prio=0, spacing=sp_st)
            s.add_xfer('kv', K[17], earliest=sy[14], deadline=sy[15], prio=4, spacing=sp_kv)
            s.add_xfer('stage', Wq[1][1], earliest=sy[15], deadline=aend - 30, prio=0, spacing=sp_st)
            s.add_xfer('stage', Wq[1][2], earliest=sy[15], deadline=aend, prio=0, spacing=sp_st)
            s.add_xfer('stage', X[1][1], earliest=ps, deadline=ps + 40, prio=0, spacing=1)
            s.add_xfer('stage', Wq[1][3], earliest=ps, deadline=ps + 80, prio=0, spacing=1)
        elif nxt == 'A':
            s.add_xfer('kv', K[17], earliest=sy[14], deadline=sy[15], prio=4, spacing=sp_kv)
            s.add_xfer('kv', Vv[17], earliest=sy[14], deadline=sy[15], prio=4, spacing=sp_kv)
            s.add_xfer('kv', K[18], earliest=sy[15], deadline=aend, prio=4, spacing=sp_kv)
            s.add_xfer('kv', Vv[18], earliest=sy[15], deadline=aend, prio=4, spacing=sp_kv)
            s.add_xfer('kv', K[19], earliest=ps, deadline=eb - 40, prio=4, spacing=10)
            s.add_xfer('kv', Vv[19], earliest=ps, deadline=eb - 2, prio=4, spacing=10)
        else:
            Wo = s.Wo
            if o.get('wt') == 2 and not (nxt == 'H' and r == 1): s.touch_item('tch', sWo, 23, None, 0, wtf, slot0[68], slot0[69], "wot0")
            s.add_xfer('stage', Wo[0], earliest=tl, deadline=sy[15], prio=0, spacing=sp_st)
            s.add_xfer('stage', Wo[1], earliest=tl, deadline=sy[15], prio=0, spacing=sp_st)
            s.add_xfer('stage', Wo[2], earliest=ps, deadline=ps + 40, prio=0, spacing=1)
            s.add_xfer('stage', Wo[3], earliest=ps, deadline=ps + 80, prio=0, spacing=1)
            s.a_tl = tl; s.a_end = aend

    def bar_after(s, idx, items, extra=None):
        def fn():
            for it in items: assert it.ins is not None, (it.name, "not issued before barrier")
            n = 0
            if s.em.wait(s.em.lgkm_needed([it.ins for it in items]), None): n += 1
            s.em.raw(Ins("s_barrier", 'barrier'))
            if extra: extra()
            return n + 1
        s.sc.post(idx, fn)

    def phase_P(s):
        o = s.o; sc = s.sc; Wo = s.Wo; K = s.K; Vv = s.Vv; sp_st = s.sp_st
        EXA = Xfer('ex', 'EX', [], fixed=(0, 81920))
        p_pre = s.presync
        p0 = sc.n()
        wof = lambda j, nt: V((64 if j % 2 == 0 else 240) + 4 * nt, 4)
        def bfrag(ks, qb):
            grp, u = divmod(ks, 4)
            if grp == 0: return V(OACC + qb * 16 + u * 4, 4)
            if grp == 1: return A(aST + qb * 16 + u * 4, 4)
            idx = (grp - 2) * 20 + qb * 4 + u
            return A(idx * 4, 4) if idx < 36 else A(aL + (idx - 36) * 4, 4)
        pacc = lambda nt, qb: V(160 + (qb * 4 + nt) * 4, 4)
        pk = lambda qb, up: V(24 + (qb * 2 + up) * 4, 4)
        s.sync_at(p_pre, [Wo[0], K[32], Vv[32]], s.pre_free + [K[32], Vv[32]])
        def take_ex():
            s.al.take_range(0, 81920, EXA); EXA.addr = 0; return 0
        sc.post(p_pre, take_ex)
        s.setbase(p_pre, sLo, 0); s.setbase(p_pre, 40, 0)
        def rd_wo(j, e0, dl):
            x = Wo[j // 2]
            for nt in range(4):
                for rd in (0, 1):
                    s.ds_item('rdT', "ds_read_b64_tr_b16", wof(j, nt).sub(2 * rd, 2), s.aT[nt], x, (j & 1) * 4096 + rd * 2048, WBASE, e0, dl, name=f"wo{j}")
        rd_wo(0, p_pre, p0 - 1)
        ppos = {}; kst = {}
        for j in range(65):
            ch, ks = divmod(j, 16)
            kst[j] = sc.n()
            if j == 64: break
            for qb in range(5):
                for nt in range(4):
                    acc = pacc(nt, qb)
                    ppos[(j, nt, qb)] = sc.add(mfma(acc, wof(j, nt), bfrag(ks, qb), acc if ks else 0))
        pend = sc.n() - 1
        PM = o.get('pmark', 12)
        if o.get('pst'):
            s.stamp(kst[0]); s.stamp(kst[4]); s.stamp(kst[PM] - 2); s.stamp(kst[PM + 48])
        for c in range(4): s.mark(kst[PM + 16 * c] - 1, "P", {sOwn: 128, sOth: 128, sLo: 10240, 40: 128} if c < 3 else {})
        for j in range(63):
            if j % 2 == 1:
                m = (j + 1) // 2
                s.sync_at(kst[j], [Wo[m]], [Wo[m - 1]])
                if m + 3 < 36 and j < PM + 48: s.add_xfer('stage', Wo[m + 3], earliest=kst[j], deadline=kst[j] + 30, prio=0, spacing=sp_st)
            rd_wo(j + 1, kst[j], kst[j] + 12)
        if o.get('wt') == 2:
            s.touch_item('tch', sWo, 23, None, 128, o.get('wtf', ''), kst[1], kst[2], "wot1")
            for c in range(3):
                s.touch_item('tch', sWo, 23, 40, 128 * (c + 2), o.get('wtf', ''), kst[PM + 16 * c] + 60, kst[PM + 16 * c] + 80, "wot")
        def exw(rnd, e0, dl):
            L = []
            for qb in range(5):
                for u in range(4):
                    src = bfrag(rnd * 4 + u, qb)
                    ins = Ins(f"ds_write_b128 v{vLinW}, {src} offset:{(qb*4+u)*1024}", 'ds_w', rd=[f"v{vLinW}"] + src.regs())
                    L.append(sc.item('ex', simple(ins, earliest=e0, deadline=dl, prio=3, name=f"exw{rnd}")))
            return L
        def exr(rnd, e0, dl):
            L = []
            for u in range(4):
                for qb in range(5):
                    dst = bfrag(8 + rnd * 4 + u, qb)
                    ins = Ins(f"ds_read_b128 {dst}, v{vLinR} offset:{(qb*4+u)*1024}", 'ds_r', rd=[f"v{vLinR}"], wr=dst.regs())
                    L.append(sc.item('ex', simple(ins, earliest=e0, deadline=dl, prio=3, name=f"exr{rnd}")))
            return L
        w0 = exw(0, p0, kst[3] - 2); s.bar_after(kst[3] + 4, w0)
        r0 = exr(0, kst[3] + 4, kst[5] - 2); s.bar_after(kst[5] + 4, r0)
        w1 = exw(1, kst[5] + 4, kst[9] - 2); s.bar_after(kst[9] + 4, w1)
        r1 = exr(1, kst[9] + 4, kst[11] - 4)
        def all_ex_done():
            s.em.wait(s.em.lgkm_needed([it.ins for it in r1]), None); return 1
        sc.post(kst[12] - 3, all_ex_done)
        tail = []
        for ch in range(4):
            j = ch * 16 + 15
            for qb in range(5):
                for up in range(2):
                    for h in range(2):
                        nt = 2 * up + h
                        a = pacc(nt, qb); d = pk(qb, up)
                        for jj in range(2):
                            ins = valu(f"v_cvt_pk_bf16_f32 v{d.lo+2*h+jj}, v{a.lo+2*jj}, v{a.lo+2*jj+1}", [V(d.lo + 2*h + jj)], [V(a.lo + 2*jj, 2)])
                            if ch < 3: sc.item('cv', simple(ins, earliest=ppos[(j, nt, qb)] + 2, deadline=ppos[(j + 1, nt, qb)] - 1, prio=1, name=f"pcvt{ch}"))
                            else: tail.append(ins)
                    off = ((ch * 5 + qb) * 2 + up) * 1024
                    mkso = lambda off=off: salu(f"s_add_u32 s37, s{sLo}, 0x{(off - s.bval[sLo]) & 0xffffffff:x}", [S(37)], [S(sLo)])
                    stx = Ins(f"buffer_store_dwordx4 {pk(qb, up)}, v{vSt}, {sWs}, s37 offen {o.get('stflags','')}", 'vst', rd=pk(qb, up).regs() + [f"v{vSt}", 's37'] + sWs.regs())
                    if ch < 3:
                        e0 = kst[j + 1] + 20 + (qb * 2 + up) * o.get('sp_store', 13)
                        sc.item('st', Item(lambda mkso=mkso: ('salu', mkso(), True), earliest=e0, deadline=e0 + 10, prio=6, name="sto"))
                        sc.item('st', simple(stx, earliest=e0, deadline=e0 + 12, prio=6, name="st"))
                    else:
                        tail += [mkso, stx]
        if o.get('ikr'):
            def prep():
                for t in ("s_mov_b32 s44, s86", "s_mov_b32 s45, s87", "s_mov_b32 s46, 4", "s_mov_b32 s47, 0x20000"): s.em.raw(salu(t))
                s.em.emit(valu("v_mov_b32 v5, 0", [V(5)], []))
                s.em.emit(Ins("buffer_load_dword v6, v5, s[44:47], 0 offen sc1", 'vld', rd=['v5'], wr=['v6'])); return 3
            sc.post(p0 - 1, prep)
            def sigA():
                s.em.wait(None, s.em.vm_needed([i for i in s.em.vm if i.kind == 'vst'])); s.em.raw(Ins("s_barrier", 'barrier')); return s.signal_A()
            sc.post(kst[PM + 48] + o.get('sigoff', 2), sigA)
            tail.insert(0, Ins("buffer_load_dword v7, v5, s[80:83], 0 offen sc1", 'vld', rd=['v5'], wr=['v7']))
        s.stamp(pend)
        s.tail = tail

    def phase_H(s, r):
        o = s.o; sc = s.sc; Wo = s.Wo; K = s.K; Vv = s.Vv; sp_st = s.sp_st
        EXA = Xfer('ex', 'EX', [], fixed=(32768, 40960))
        ps = s.presync
        accs = [160, 80]
        pacc = lambda ch, nt, qb: V(accs[ch & 1] + (qb * 4 + nt) * 4, 4)
        pk = lambda qb, up: V(24 + (qb * 2 + up) * 4, 4)
        ldb = [64, 68, 72, 76, 240, 244, 248, 252]
        wof = lambda j, nt: A(aVF + (j % 2) * 16 + 4 * nt, 4)
        own_v = lambda u, qb: V(OACC + qb * 16 + u * 4, 4)
        own_a = lambda u, qb: A(aQ + qb * 16 + u * 4, 4)
        def bfrag(ch, ks, qb):
            if ks < 4: return own_v(ks, qb) if ch == 0 else own_a(ks, qb)
            return A(aST + qb * 16 + (ks - 4) * 4, 4)
        def ld_items(dst, unit, e0, dl):
            so = salu(f"s_mov_b32 s41, 0x{unit*1024:x}", [S(41)])
            ld = Ins(f"buffer_load_dwordx4 {dst}, v{vSt}, {sWs}, s41 offen", 'vld', rd=[f"v{vSt}", 's41'] + sWs.regs(), wr=dst.regs())
            sc.item('tch', simple(so, earliest=e0, deadline=dl, prio=5, name="cio"))
            return sc.item('tch', simple(ld, earliest=e0, deadline=dl + 2, prio=5, name="cil"))
        def unpack(src, ch, qb, up):
            L = []
            for h in range(2):
                a = pacc(ch, 2 * up + h, qb)
                for jj in range(2):
                    sr = src.lo + 2 * h + jj
                    L.append(valu(f"v_lshlrev_b32 v{a.lo+2*jj}, 16, v{sr}", [V(a.lo + 2*jj)], [V(sr)]))
                    L.append(valu(f"v_and_b32 v{a.lo+2*jj+1}, 0xffff0000, v{sr}", [V(a.lo + 2*jj + 1)], [V(sr)]))
            return L
        if r == 1:
            for qb in range(5):
                for up in range(2): ld_items(pk(qb, up), qb * 2 + up, ps, ps + 30 + 3 * (qb * 2 + up))
            s.valu_block([x for qb in range(5) for up in range(2) for x in unpack(pk(qb, up), 0, qb, up)])
        p0 = sc.n()
        fr = s.pre_free + ([K[32], Vv[32]] if r == 1 else [])
        s.sync_at(ps, [Wo[0]] + ([K[32], Vv[32]] if r == 1 else []), fr); s.pre_free = []
        def take_ex():
            s.al.take_range(32768, 40960, EXA); EXA.addr = 32768; return 0
        sc.post(ps, take_ex)
        def rd_wo(j, e0, dl):
            x = Wo[j // 2]
            for nt in range(4):
                for rd in (0, 1):
                    s.ds_item('rdT', "ds_read_b64_tr_b16", wof(j, nt).sub(2 * rd, 2), s.aT[nt], x, (j & 1) * 4096 + rd * 2048, WBASE, e0, dl, name=f"wo{j}")
        rd_wo(0, ps, p0 - 1)
        ppos = {}; kst = {}
        for j in range(33):
            ch, ks = divmod(j, 8)
            kst[j] = sc.n()
            if j == 32: break
            for qb in range(5):
                for nt in range(4):
                    acc = pacc(ch, nt, qb)
                    ppos[(j, nt, qb)] = sc.add(mfma(acc, wof(j, nt), bfrag(ch, ks, qb), acc if (ks or r == 1) else 0))
        pend = sc.n() - 1
        for j in range(31):
            if j % 2 == 1:
                m = (j + 1) // 2
                s.sync_at(kst[j], [Wo[m]], [Wo[m - 1]])
                if m + 3 < 16: s.add_xfer('stage', Wo[m + 3], earliest=kst[j], deadline=kst[j] + 30, prio=0, spacing=sp_st)
            rd_wo(j + 1, kst[j], kst[j] + 12)
        if o.get('wt') == 2 and r == 0:
            for c in range(1, 4): s.touch_item('tch', sWo, 23, None, 128 * c, o.get('wtf', ''), kst[8 * (c - 1)] if c > 1 else ps, kst[8 * (c - 1)] + 20, "wot")
        def exw(rnd, e0, dl):
            return [sc.item('ex', simple(Ins(f"ds_write_b128 v{vLinW}, {own_v(2*rnd+uu, qb)} offset:{(qb*2+uu)*1024}", 'ds_w', rd=[f"v{vLinW}"] + own_v(2*rnd+uu, qb).regs()),
                                         earliest=e0, deadline=dl, prio=3, name=f"exw{rnd}")) for qb in range(5) for uu in range(2)]
        def exr(rnd, e0, dl):
            L = []
            for uu in range(2):
                for qb in range(5):
                    dst = bfrag(0, 4 + 2 * rnd + uu, qb)
                    L.append(sc.item('ex', simple(Ins(f"ds_read_b128 {dst}, v{vLinR} offset:{(qb*2+uu)*1024}", 'ds_r', rd=[f"v{vLinR}"], wr=dst.regs()), earliest=e0, deadline=dl, prio=3, name=f"exr{rnd}")))
            for uu in range(2):
                for qb in range(5):
                    dst = own_a(2 * rnd + uu, qb)
                    L.append(sc.item('ex', simple(Ins(f"ds_read_b128 {dst}, v{vLinW} offset:{(qb*2+uu)*1024}", 'ds_r', rd=[f"v{vLinW}"], wr=dst.regs()), earliest=e0, deadline=dl, prio=3, name=f"exo{rnd}")))
            return L
        w0 = exw(0, p0, kst[1] - 2); s.bar_after(kst[1] + 3, w0)
        r0 = exr(0, kst[1] + 3, kst[2] + 6); s.bar_after(kst[2] + 14, r0)
        w1 = exw(1, kst[2] + 14, kst[3] + 14); s.bar_after(kst[4] + 2, w1)
        r1 = exr(1, kst[4] + 2, kst[5] + 6)
        exdone = kst[6] + 4
        s.bar_after(exdone, r1, extra=lambda: s.al.release(EXA))
        tail = []; s.late_cvt = []; prev_unp = {}
        for ch in range(4):
            j = ch * 8 + 7
            qbs = list(range(5)) if (ch < 3 or r == 1) else [4, 3, 2, 1, 0]
            for n_, qb in enumerate(qbs):
                for up in ((0, 1) if (ch < 3 or r == 1) else (1, 0)):
                    cv = []
                    for h in range(2):
                        nt = 2 * up + h
                        a = pacc(ch, nt, qb); d = pk(qb, up)
                        for jj in range(2):
                            cv.append((valu(f"v_cvt_pk_bf16_f32 v{d.lo+2*h+jj}, v{a.lo+2*jj}, v{a.lo+2*jj+1}", [V(d.lo + 2*h + jj)], [V(a.lo + 2*jj, 2)]), ppos[(j, nt, qb)], a.lo))
                    off = ((ch * 5 + qb) * 2 + up) * 1024
                    so = salu(f"s_mov_b32 s37, 0x{off:x}", [S(37)])
                    stx = Ins(f"buffer_store_dwordx4 {pk(qb, up)}, v{vSt}, {sWs}, s37 offen {o.get('stflags','')}", 'vst', rd=pk(qb, up).regs() + [f"v{vSt}", 's37'] + sWs.regs())
                    if ch < 3:
                        e0 = kst[j + 1] + 4 + (n_ * 2 + up) * o.get('sp_storeh', 10)
                        for (ins, pos, alo) in cv: sc.item('cv', simple(ins, earliest=pos + 2, deadline=e0 - 1, prio=4, name=f"pcvt{ch}"))
                        sc.item('st', simple(so, earliest=e0, deadline=e0 + 6, prio=6, name="sto"))
                        sc.item('st', simple(stx, earliest=e0, deadline=e0 + 8, prio=6, name="st")).after = [c[0] for c in cv]
                    elif r == 1:
                        tail += [c[0] for c in cv] + [so, stx]
                    else:
                        s.late_cvt.append((cv, so, stx))
            if r == 1 and ch < 3:
                nx = ch + 1
                free_at = kst[4] + 1 if nx == 1 else kst[8 * (nx - 1)] + 4 + 9 * o.get('sp_storeh', 10)
                l0 = kst[8 * ch] + (2 if ch else 0)
                for n_ in range(10):
                    qb, up = divmod(n_, 2)
                    buf = V(ldb[n_ % 8], 4)
                    e_ld = l0 + 6 * n_ if n_ < 8 else max(free_at, l0 + 60) + 10 + 4 * n_
                    li = ld_items(buf, (nx * 5 + qb) * 2 + up, e_ld, e_ld + 6)
                    li.after = prev_unp.get(buf.lo, [])
                    e_un = max(free_at, l0 + 60) + 4 * n_ + (0 if n_ < 8 else 44)
                    U = unpack(buf, nx, qb, up); prev_unp[buf.lo] = U
                    for ins in U:
                        it = sc.item('un', simple(ins, earliest=e_un, deadline=(e_un + 8 if n_ < 2 else ppos[(8 * nx, 2 * up, qb)] - 2), prio=5, name=f"unp{nx}"))
                        it.after = [li.peek()[1]]
        s.stamp(pend)
        if r == 0:
            X = s.X; Wq = s.Wq
            if o.get('wt') == 2: s.touch_item('tch', sWq, 21, None, 256, o.get('wtf', ''), kst[17], kst[18], "wq1t")
            s.add_xfer('kv', K[17], earliest=exdone, deadline=kst[14], prio=4, spacing=20)
            s.add_xfer('stage', Wq[1][0], earliest=kst[24], deadline=kst[25] + 10, prio=0, spacing=sp_st)
            s.add_xfer('stage', Wq[1][1], earliest=kst[25], deadline=kst[26] + 10, prio=0, spacing=sp_st)
            s.add_xfer('stage', X[1][0], earliest=kst[27], deadline=kst[28] + 4, prio=0, spacing=sp_st)
            s.add_xfer('stage', Wq[1][2], earliest=kst[28], deadline=kst[29], prio=0, spacing=sp_st)
            s.add_xfer('stage', Wq[1][3], earliest=kst[29], deadline=kst[30] + 10, prio=0, spacing=sp_st)
            s.presync = kst[31]; s.pre_free = [Wo[15]]
            s.add_xfer('stage', X[1][1], earliest=kst[31], deadline=pend, prio=0, spacing=sp_st)
        else:
            s.tail = tail

    def after_H0(s):
        sc = s.sc; b0 = s.qbase[0]
        last = b0
        for n_, (cv, so, stx) in enumerate(s.late_cvt):
            dl = min(s.qpos0[alo] for (_, _, alo) in cv) - 1
            for (ins, pos, alo) in cv: sc.item('cv', simple(ins, earliest=pos + 2, deadline=s.qpos0[alo] - 1, prio=1, name="pcvtL"))
            e0 = min(b0 + 3 * n_, s.qbase[1] - 8)
            sc.item('st', simple(so, earliest=e0, deadline=s.qbase[1] - 4, prio=6, name="sto", ))
            it = sc.item('st', simple(stx, earliest=max(e0, max(s.qpos0[alo] for (_, _, alo) in cv) - 1 if False else e0), deadline=s.qbase[1] - 3, prio=6, name="st"))
            it.after = [c[0] for c in cv]
        for j in range(20):
            sc.item('cv', simple(valu(f"v_mov_b32 v{NEGM+j}, 0", [V(NEGM + j)], []), earliest=s.qbase[13], deadline=s.qbase[15], prio=8, name="negm0"))

    def build(s):
        s.setup(); s.start()
        mkWo = lambda L: [setattr(x, 'nreads', 16) or x for x in L]
        if s.var == 'Z':
            s.nextA = 0; s.phase_Q(0, aQ, 'A'); s.phase_A(0, aQ, 'Q', aST)
            s.nextA = 1; s.phase_Q(1, aQ, 'A')
            s.Wo = mkWo([s.xf_Wo(m // 8, m % 8) for m in range(36)])
            s.phase_A(1, aQ, 'P', None); s.phase_P(); s.stamp(s.sc.n() - 1)
        elif s.var == 'Y':
            s.phase_Q(0, aST, 'Q'); s.nextA = 0; s.phase_Q(1, aQ, 'A')
            s.phase_A(0, aST, 'A', aST)
            s.Wo = mkWo([s.xf_Wo(m // 8, m % 8) for m in range(36)])
            s.phase_A(1, aQ, 'P', None); s.phase_P(); s.stamp(s.sc.n() - 1)
        else:
            s.nextA = 0; s.phase_Q(0, aQ, 'A')
            s.Wo = mkWo([s.xf_WoH(0, m // 4, m % 4) for m in range(16)])
            s.phase_A(0, aQ, 'H', None); s.phase_H(0)
            s.nextA = 1; s.phase_Q(1, aQ, 'A', k0order=[4, 3, 2, 1, 0]); s.after_H0()
            s.Wo = mkWo([s.xf_WoH(1, m // 4, m % 4) for m in range(16)])
            s.phase_A(1, aQ, 'H', None); s.phase_H(1)
        s.sc.run()
        for ins in s.tail: s.em.emit(ins() if callable(ins) else ins)
        if s.o.get('ikr'): s.reduce_tail()
        s.finish()

    def spin(s, lab, srd, off, base, need, dst, out):
        em = s.em
        em.raw(salu("s_mov_b32 s40, 0x8000")); em.raw(Ins(lab + ":", 'label'))
        em.raw(Ins(f"buffer_load_dword v{dst}, v5, {srd}, 0 offen offset:{off} sc1", 'salu')); em.raw(Ins("s_waitcnt vmcnt(0)", 'wait'))
        em.raw(valu(f"v_readfirstlane_b32 s37, v{dst}", [S(37)], [V(dst)])); em.raw(Ins("s_nop 3", 'nop', states=4))
        em.raw(salu("s_sub_u32 s40, s40, 1")); em.raw(Ins(f"s_cbranch_scc1 {out}", 'salu'))
        if base: em.raw(salu(f"s_sub_u32 s37, s37, {base}"))
        em.raw(salu(f"s_cmp_lt_u32 s37, {need}")); em.raw(Ins(f"s_cbranch_scc1 {lab}", 'salu'))
        em.raw(Ins(out + ":", 'label'))

    def signal_A(s):
        em = s.em; pf = s.pf
        em.raw(salu(f"s_cmp_lg_u32 s{sWave}, 0")); em.raw(Ins(f"s_cbranch_scc1 L_{pf}sA", 'salu'))
        em.raw(valu("v_readfirstlane_b32 s37, v6", [S(37)], [V(6)])); em.raw(Ins("s_nop 3", 'nop', states=4))
        em.raw(salu("s_cmp_ge_u32 s37, 8")); em.raw(Ins(f"s_cbranch_scc1 L_{pf}sA1o", 'salu'))
        s.spin(f"L_{pf}sA1", "s[44:47]", 0, None, 8, 6, f"L_{pf}sA1o")
        em.raw(salu("s_mov_b64 exec, 1")); em.raw(valu("v_mov_b32 v6, 1", [V(6)], []))
        em.raw(Ins("buffer_atomic_add v6, v5, s[80:83], 0 offen", 'salu')); em.raw(salu("s_mov_b64 exec, -1"))
        em.raw(Ins(f"L_{pf}sA:", 'label')); em.raw(Ins("s_nop 4", 'nop', states=5))
        return 3

    def reduce_tail(s):
        em = s.em; e = em.emit; pf = s.pf
        sa = lambda t, w=(), rd=(): e(salu(t, w, rd))
        va = lambda t, w, rd: e(valu(t, w, rd))
        lab = lambda t: em.raw(Ins(t + ":", 'label'))
        br = lambda t: em.raw(Ins(t, 'salu'))
        def st_():
            if s.o.get('stamps'): k = s.stamps; s.stamps += 1; em.raw(Ins(f"s_memtime s[{50+2*k}:{51+2*k}]", 'salu'))
        def ld(em_, n):
            t, sl = divmod(n, 8)
            d = V(80 + n * 4, 4)
            if s.o.get('rwin') and n >= s.o['rwin'] and em_ is em and n >= NF: em_.raw(Ins(f"s_waitcnt vmcnt({s.o['rwin'] - 1}) ", 'salu'))
            if s.o.get('rrot'): em_.emit(salu(f"s_add_u32 s37, s{8 + sl}, 0x{t * 2048:x}", [S(37)]))
            else: em_.emit(salu(f"s_add_u32 s37, s74, 0x{t * 2048 + sl * 163840:x}", [S(37)]))
            em_.emit(Ins(f"buffer_load_dwordx4 {d}, v{vSt}, s[76:79], s37 offen sc1", 'vld', rd=[f"v{vSt}", 's37'], wr=d.regs()))
        NF = min(10, s.o.get('rwin', 10))
        if s.o.get('rrot'):
            sa("s_lshr_b32 s40, s2, 3"); sa("s_add_u32 s40, s40, s2"); sa(f"s_add_u32 s40, s40, s{sWave}")
            for sl in range(8):
                sa(f"s_add_u32 s37, s40, {sl}"); sa("s_and_b32 s37, s37, 7"); sa("s_mul_i32 s37, s37, 163840"); sa(f"s_add_u32 s{8 + sl}, s74, s37")
        va("v_accvgpr_read_b32 v1, a252", [V(1)], [])
        va("v_readfirstlane_b32 s41, v0", [S(41)], [V(0)]); va("v_readfirstlane_b32 s43, v1", [S(43)], [V(1)])
        va(f"v_bfe_u32 v2, v{vSt}, 4, 4", [V(2)], [V(vSt)]); va("v_lshlrev_b32 v2, 11, v2", [V(2)], [V(2)])
        va(f"v_lshrrev_b32 v3, 8, v{vSt}", [V(3)], [V(vSt)]); va("v_lshl_add_u32 v2, v3, 4, v2", [V(2)], [V(3), V(2)])
        sa("s_mov_b32 s4, s84"); sa("s_mov_b32 s5, s85"); sa("s_mov_b32 s6, 5242880"); sa("s_mov_b32 s7, 0x20000"); sa("s_mov_b32 s46, 0xffff0000")
        va("v_readfirstlane_b32 s37, v7", [S(37)], [V(7)])
        sa(f"s_cmp_eq_u32 s{sWave}, 3"); br(f"s_cbranch_scc1 L_{pf}r3")
        sa("s_sub_u32 s37, s37, s41", [S(37)], [S(37)]); sa("s_cmp_lt_u32 s37, 8"); br(f"s_cbranch_scc1 L_{pf}rslow")
        em2 = Emitter()
        for n in range(NF): ld(em2, n)
        em.out += em2.out
        em.raw(Ins(f"s_waitcnt vmcnt({NF})", 'wait')); em.raw(Ins("s_barrier", 'barrier')); br(f"s_branch L_{pf}rest")
        lab(f"L_{pf}rslow")
        em.raw(Ins("s_waitcnt vmcnt(0)", 'wait')); em.raw(Ins("s_barrier", 'barrier'))
        s.spin(f"L_{pf}rA", "s[80:83]", 0, "s41", 8, 7, f"L_{pf}rAo")
        br(f"s_branch L_{pf}rfirst")
        lab(f"L_{pf}r3")
        em.raw(Ins("s_waitcnt vmcnt(0)", 'wait')); em.raw(Ins("s_barrier", 'barrier'))
        em.raw(salu("s_mov_b64 exec, 1")); em.raw(valu("v_mov_b32 v24, 1", [V(24)], []))
        em.raw(Ins("buffer_atomic_add v24, v5, s[80:83], 0 offen offset:128", 'salu')); em.raw(salu("s_mov_b64 exec, -1"))
        s.spin(f"L_{pf}rB", "s[80:83]", 128, "s43", 8, 25, f"L_{pf}rBo")
        lab(f"L_{pf}rfirst")
        em.vm = []; em.pend = {}
        for n in range(NF): ld(em, n)
        lab(f"L_{pf}rest")
        st_()
        for n in range(NF, 40): ld(em, n)
        for t in range(5):
            ac = 24 + (t & 1) * 16
            for sl in range(8):
                for j in range(4):
                    src = 80 + (t * 8 + sl) * 4 + j
                    if sl == 0:
                        va(f"v_lshlrev_b32 v{ac+2*j}, 16, v{src}", [V(ac + 2*j)], [V(src)]); va(f"v_and_b32 v{ac+2*j+1}, s46, v{src}", [V(ac + 2*j + 1)], [V(src)])
                    else:
                        va(f"v_lshlrev_b32 v60, 16, v{src}", [V(60)], [V(src)]); va(f"v_and_b32 v61, s46, v{src}", [V(61)], [V(src)])
                        va(f"v_pk_add_f32 v[{ac+2*j}:{ac+2*j+1}], v[{ac+2*j}:{ac+2*j+1}], v[60:61]", [V(ac + 2*j, 2)], [V(ac + 2*j, 2), V(60, 2)])
            o4 = ac + 8
            for j in range(4): va(f"v_cvt_pk_bf16_f32 v{o4+j}, v{ac+2*j}, v{ac+2*j+1}", [V(o4 + j)], [V(ac + 2*j, 2)])
            for op in ("v_permlane32_swap_b32", "v_permlane16_swap_b32"):
                va(f"{op} v{o4}, v{o4+2}", [V(o4), V(o4 + 2)], [V(o4), V(o4 + 2)]); va(f"{op} v{o4+1}, v{o4+3}", [V(o4 + 1), V(o4 + 3)], [V(o4 + 1), V(o4 + 3)])
            sa(f"s_add_u32 s37, s75, 0x{t * 32768:x}", [S(37)])
            e(Ins(f"buffer_store_dwordx4 v[{o4}:{o4+3}], v2, s[4:7], s37 offen", 'vst', rd=R('v', o4, 4) + ['v2', 's37']))

    def make_pins(s):
        pins = {}
        groups = {}
        for (gname, idx) in s.marks: groups.setdefault(gname, []).append(idx)
        for gname, m in groups.items():
            n = len(m) - 1; L = m[1] - m[0]
            assert all(m[j + 1] - m[j] == L for j in range(n))
            for k, items in s.sc.streams.items():
                T = [i for i, it in enumerate(items) if m[n - 1] <= it.gap < m[n]]
                c = len(T)
                if c == 0:
                    inside = [i for i, it in enumerate(items) if m[0] <= it.gap < m[n]]
                    for i in inside: pins[(k, i)] = (None, m[0] - 1)
                    continue
                for j in range(n):
                    for i in T:
                        pins[(k, i - (n - 1 - j) * c)] = (items[i].gap - (n - 1 - j) * L, items[i].gap - (n - 1 - j) * L)
                first = T[0] - (n - 1) * c
                for i in range(first - 1, -1, -1):
                    if items[i].gap < m[0] - 60: break
                    if (k, i) not in pins: pins[(k, i)] = (None, m[0] - 1)
                if T[-1] + 1 < len(items) and (k, T[-1] + 1) not in pins: pins[(k, T[-1] + 1)] = (m[n], None)
        return pins

    def roll(s):
        out = s.em.out
        groups = {}
        for i, ins in enumerate(out):
            if ins.kind == 'comment' and ins.tag and ins.tag[0] == 'mark': groups.setdefault(ins.tag[1], []).append(i)
        def split(seg):
            body = []; waits = {}
            for x in seg:
                if x.kind == 'wait':
                    w = waits.setdefault(len(body), {})
                    for nm, v in re.findall(r"(\w+)\((\d+)\)", x.text): w[nm] = min(w.get(nm, 99), int(v))
                else: body.append(x)
            return body, waits
        edits = []
        for gname, idx in groups.items():
            segs = [split(out[idx[j]:idx[j + 1]]) for j in range(len(idx) - 1)]
            txt = [[x.text for x in b] for b, w in segs]
            best = (0, 1); j = 0
            while j < len(segs):
                k = j + 1
                while k < len(segs) and txt[k] == txt[j]: k += 1
                if k - j > best[1]: best = (j, k - j)
                j = k
            sys.stderr.write(f"roll {gname}: {len(segs)} periods, lens {[len(x) for x in txt]}, identical run start {best[0]} x{best[1]}\n")
            if best[1] < len(segs) and s.o.get('rolldiff'):
                import difflib
                for j in range(len(segs) - 1):
                    d = [l for l in difflib.unified_diff(txt[j], txt[j + 1], lineterm='', n=0)]
                    if d: sys.stderr.write(f"  diff {j}->{j+1} ({len(d)} lines):\n" + "\n".join(d[:30]) + "\n")
            if best[1] >= 2:
                body = segs[best[0]][0]; mw = {}
                last = segs[best[0] + best[1] - 1][1]
                for j in range(best[0], best[0] + best[1]):
                    for p, w in segs[j][1].items():
                        for nm, v in w.items(): mw.setdefault(p, {})[nm] = min(mw.get(p, {}).get(nm, 99), v)
                for p, w in sorted(mw.items()):
                    if w != last.get(p): sys.stderr.write(f"   merged wait at {p}: {w} (steady {last.get(p)})\n")
                new = []
                for p in range(len(body) + 1):
                    if p in mw: new.append(Ins("s_waitcnt " + " ".join(f"{nm}({v})" for nm, v in sorted(mw[p].items(), reverse=True)), 'wait'))
                    if p < len(body): new.append(body[p])
                edits.append((idx[best[0]], idx[best[0] + best[1]], new, best[1], gname))
        for (a, c, new, n, gname) in sorted(edits, key=lambda e: -e[0]):
            pre = [salu(f"s_mov_b32 s{sCnt}, {n}"), Ins(f"L_{s.pf}{gname}:", 'label')]
            post = [salu(f"s_sub_u32 s{sCnt}, s{sCnt}, 1"), salu(f"s_cmp_lg_u32 s{sCnt}, 0"), Ins(f"s_cbranch_scc1 L_{s.pf}{gname}", 'salu')]
            s.em.out = s.em.out[:a] + pre + new + post + s.em.out[c:]

    def finish(s):
        e = s.em
        if s.o.get('stamps'):
            k = s.stamps
            e.raw(Ins(f"s_waitcnt vmcnt(0)", 'wait'))
            e.raw(Ins(f"s_memtime s[{50+2*k}:{51+2*k}]", 'salu'))
            e.raw(Ins(f"s_memrealtime s[92:93]", 'salu'))
            e.raw(Ins("s_waitcnt lgkmcnt(0)", 'wait'))
            e.raw(salu(f"s_lshl_b32 s40, s2, 2")); e.raw(salu(f"s_add_u32 s40, s40, s{sWave}")); e.raw(salu("s_lshl_b32 s40, s40, 6"))
            e.raw(salu("s_add_u32 s24, s88, 0x4000000")); e.raw(salu("s_addc_u32 s25, s89, 0")); e.raw(salu("s_mov_b32 s26, 0x100000"))
            e.raw(salu("s_mov_b64 exec, 1"))
            for j in range(k + 1):
                e.raw(valu(f"v_mov_b32 v21, s{50+2*j}", [V(21)], [])); e.raw(valu(f"v_mov_b32 v22, {4*j}", [V(22)], []))
                e.raw(Ins(f"buffer_store_dword v21, v22, s[24:27], s40 offen", 'vst'))
                e.raw(Ins("s_nop 1", 'nop'))
            for j, sr in ((13, 94), (14, 90), (15, 92)):
                e.raw(valu(f"v_mov_b32 v21, s{sr}", [V(21)], [])); e.raw(valu(f"v_mov_b32 v22, {4*j}", [V(22)], []))
                e.raw(Ins(f"buffer_store_dword v21, v22, s[24:27], s40 offen", 'vst'))
                e.raw(Ins("s_nop 1", 'nop'))
        e.raw(Ins("s_endpgm", 'salu'))
        e.raw(Ins(f"L_{s.pf}end:", 'label'))
        for r in sorted(s.fb): s.fallback(r)

    def fallback(s, r):
        fb = s.fb[r]; pf = s.pf
        em = Emitter(); e = em.emit
        sa = lambda t, w=(), rd=(): e(salu(t, w, rd))
        va = lambda t, w, rd: e(valu(t, w, rd))
        e(Ins(f"L_{pf}FB{r}:", 'label'))
        sa(f"s_cmp_eq_u32 s{sRedo}, 0"); e(Ins(f"s_cbranch_scc1 L_{pf}FBgo{r}", 'salu'))
        for j in range(20): va(f"v_mov_b32 v{NEGM+j}, 0", [V(NEGM + j)], [])
        sa(f"s_mov_b32 s{sRedo}, 0"); e(Ins(f"s_branch L_{pf}Ret{r}", 'salu'))
        e(Ins(f"L_{pf}FBgo{r}:", 'label'))
        e(Ins("s_waitcnt vmcnt(0) lgkmcnt(0)", 'wait')); e(Ins("s_barrier", 'barrier'))
        KF, ST, MX, AD = 80, 96, 116, 124
        va(f"v_bfe_u32 v{AD}, v{vSt}, 4, 4", [V(AD)], [V(vSt)])
        va(f"v_lshlrev_b32 v{AD}, 8, v{AD}", [V(AD)], [V(AD)])
        va(f"v_lshrrev_b32 v{AD+1}, 8, v{vSt}", [V(AD + 1)], [V(vSt)])
        va(f"v_lshl_add_u32 v{AD}, v{AD+1}, 3, v{AD}", [V(AD)], [V(AD + 1), V(AD)])
        for qb in range(5): va(f"v_mov_b32 v{MX+qb}, 0xff800000", [V(MX + qb)], [])
        sa(f"s_mov_b32 s40, 0", [S(40)]); sa(f"s_mov_b32 s{sCnt}, 32")
        e(Ins(f"L_{pf}FBloop{r}:", 'label'))
        for u in range(4):
            for pc in range(2):
                d = V(KF + 4 * u + 2 * pc, 2)
                e(Ins(f"buffer_load_dwordx2 {d}, v{AD}, {sK}, s40 offen offset:{64*u+32*pc}", 'vld', rd=[f"v{AD}", 's40'], wr=d.regs()))
        for qb in range(5):
            for u in range(4):
                d = V(ST + 4 * qb, 4)
                e(mfma(d, V(KF + 4 * u, 4), A(fb['qs'] + qb * 16 + u * 4, 4), d if u else 0))
        for qb in range(5):
            va(f"v_max3_f32 v{MX+qb}, v{MX+qb}, v{ST+4*qb}, v{ST+4*qb+1}", [V(MX + qb)], [V(MX + qb), V(ST + 4*qb, 2)])
            va(f"v_max3_f32 v{MX+qb}, v{MX+qb}, v{ST+4*qb+2}, v{ST+4*qb+3}", [V(MX + qb)], [V(MX + qb), V(ST + 4*qb + 2, 2)])
        sa("s_add_u32 s40, s40, 4096", [S(40)]); sa(f"s_sub_u32 s{sCnt}, s{sCnt}, 1"); sa(f"s_cmp_lg_u32 s{sCnt}, 0")
        e(Ins("s_nop 7", 'nop', states=8))
        e(Ins(f"s_cbranch_scc1 L_{pf}FBloop{r}", 'salu'))
        for xm in (16, 32):
            va(f"v_lshrrev_b32 v{AD}, 2, v{vSt}", [V(AD)], [V(vSt)])
            va(f"v_xor_b32 v{AD}, {4*xm}, v{AD}", [V(AD)], [V(AD)])
            for qb in range(5):
                e(Ins(f"ds_bpermute_b32 v{ST+qb}, v{AD}, v{MX+qb}", 'ds_r', rd=[f"v{AD}", f"v{MX+qb}"], wr=[f"v{ST+qb}"]))
            for qb in range(5):
                va(f"v_max_f32 v{MX+qb}, v{MX+qb}, v{ST+qb}", [V(MX + qb)], [V(MX + qb), V(ST + qb)])
        for qb in range(5):
            for j in range(4): va(f"v_sub_f32 v{NEGM+4*qb+j}, 0, v{MX+qb}", [V(NEGM + 4*qb + j)], [V(MX + qb)])
        sa(f"s_add_u32 s{sKV}, s{sRot}, 0x{fb['bval'].get(sKV, 0):x}", [S(sKV)])
        for regs, b0, b1 in ((vT, fb['aT'], fb['end_aT']), (vD, fb['aD'], fb['end_aD'])):
            for v, x0, x1 in zip(regs, b0, b1):
                if x0 != x1: va(f"v_add_u32 v{v}, 0x{(x0 - x1) & 0xffffffff:x}, v{v}", [V(v)], [V(v)])
        for i in fb['dmas']:
            (x, srd, voff, sbase, sconst, imm, ldsoff, m0b, flags) = i.tag
            sa(f"s_add_u32 m0, s{m0b}, 0x{x.fixed[0] + ldsoff - imm:x}", ['m0'])
            sa(f"s_add_u32 s{sOff}, s{sRot}, 0x{sconst & 0x1ffff:x}", [S(sOff)]); sa(f"s_and_b32 s{sOff}, s{sOff}, 0x1ffff", [S(sOff)])
            e(Ins(i.text, 'dma', rd=i.rd))
        e(Ins("s_waitcnt vmcnt(0)", 'wait')); e(Ins("s_barrier", 'barrier'))
        for i in fb['reads']: em.raw(Ins(i.text, 'ds_r'))
        e(Ins("s_waitcnt lgkmcnt(0)", 'wait'))
        sa(f"s_mov_b32 s{sRedo}, 1")
        e(Ins(f"s_branch L_{pf}Aent{r}", 'salu'))
        s.em.out += em.out

def reduce_kernel(rf=''):
    L = []; a = L.append
    a("s_cmp_ge_u32 s2, 640"); a("s_cbranch_scc1 LR_end")
    a("s_load_dwordx2 s[4:5], s[0:1], 80"); a("s_load_dwordx2 s[8:9], s[0:1], 96")
    a("v_lshrrev_b32 v1, 6, v0"); a("s_nop 0"); a("v_readfirstlane_b32 s12, v1"); a("v_and_b32 v0, 63, v0")
    a("s_lshl_b32 s13, s2, 2"); a("s_nop 2"); a("s_add_u32 s13, s13, s12")
    a(f"s_mul_hi_u32 s14, s13, {(2**32 + 79)//80}")
    a("s_mul_i32 s15, s14, 80"); a("s_sub_u32 s15, s13, s15")
    a(f"s_mul_hi_u32 s16, s15, {(2**32 + 19)//20}")
    a("s_mul_i32 s17, s16, 20"); a("s_sub_u32 s17, s15, s17")
    a(f"s_mul_hi_u32 s18, s17, {(2**32 + 4)//5}")
    a("s_mul_i32 s19, s18, 5"); a("s_sub_u32 s19, s17, s19")
    a("s_mul_i32 s20, s14, 1310720"); a("s_mul_i32 s21, s16, 40960"); a("s_add_u32 s20, s20, s21")
    a("s_lshl_b32 s21, s17, 11"); a("s_add_u32 s20, s20, s21")
    a("v_lshlrev_b32 v1, 4, v0")
    a("s_waitcnt lgkmcnt(0)")
    a("s_mov_b32 s10, 41943040"); a("s_mov_b32 s11, 0x20000")
    a("s_mov_b32 s6, 5242880"); a("s_mov_b32 s7, 0x20000")
    for sl in range(8):
        for up in range(2):
            d = 16 + (sl * 2 + up) * 4
            a(f"buffer_load_dwordx4 v[{d}:{d+3}], v1, s[8:11], s20 offen offset:{up*1024} {rf}")
        if sl < 7: a("s_add_u32 s20, s20, 163840")
    a("s_and_b32 s22, s14, 15"); a("s_lshr_b32 s23, s14, 4")
    a("s_mul_i32 s22, s22, 160"); a("s_and_b32 s24, s16, 1"); a("s_mul_i32 s24, s24, 80"); a("s_add_u32 s22, s22, s24")
    a("s_lshl_b32 s24, s19, 4"); a("s_add_u32 s22, s22, s24"); a("s_lshl_b32 s22, s22, 11")
    a("s_lshl_b32 s23, s23, 10"); a("s_lshr_b32 s24, s16, 1"); a("s_lshl_b32 s24, s24, 9"); a("s_add_u32 s23, s23, s24")
    a("s_lshl_b32 s24, s18, 7"); a("s_add_u32 s23, s23, s24"); a("s_add_u32 s22, s22, s23")
    a("v_and_b32 v2, 15, v0"); a("v_lshlrev_b32 v2, 11, v2"); a("v_lshrrev_b32 v3, 4, v0"); a("v_lshl_add_u32 v2, v3, 3, v2")
    a("s_mov_b32 s25, 0xffff0000")
    for sl in range(8):
        a(f"s_waitcnt vmcnt({14 - 2*sl})")
        for j in range(8):
            src = 16 + sl * 8 + j
            if sl == 0:
                a(f"v_lshlrev_b32 v{80+2*j}, 16, v{src}"); a(f"v_and_b32 v{81+2*j}, s25, v{src}")
            else:
                a(f"v_lshlrev_b32 v4, 16, v{src}"); a(f"v_and_b32 v5, s25, v{src}")
                a(f"v_add_f32 v{80+2*j}, v{80+2*j}, v4"); a(f"v_add_f32 v{81+2*j}, v{81+2*j}, v5")
    for j in range(8):
        a(f"v_cvt_pk_bf16_f32 v{8+j}, v{80+2*j}, v{81+2*j}")
    for t in range(4):
        a(f"buffer_store_dwordx2 v[{8+2*t}:{9+2*t}], v2, s[4:7], s22 offen offset:{32*t}")
    a("LR_end:"); a("s_endpgm")
    return "\n".join(L)

HEADER = open('cdna_kernels/' + NAME + '.s.ref').read().split("; Override launch")[0]

def kd(name, nv, acc):
    return f""".amdhsa_kernel {name}
  .amdhsa_next_free_vgpr {nv}
  .amdhsa_next_free_sgpr 102
  .amdhsa_accum_offset {acc}
  .amdhsa_group_segment_fixed_size 0
  .amdhsa_kernarg_size 104
  .amdhsa_user_sgpr_count 2
  .amdhsa_user_sgpr_kernarg_segment_ptr 1
  .amdhsa_system_sgpr_workgroup_id_x 1
.end_amdhsa_kernel
"""

def make(opts):
    vs = opts.get('var', 'XY')
    gens = []
    for v in dict.fromkeys(vs):
        g = Gen(opts, v); g.build()
        if opts.get('roll', 1):
            pins = g.make_pins()
            g = Gen(opts, v); g.sc.pins = pins
            g.build(); g.roll()
        if opts.get('drop'):
            dr = opts['drop'].split(',')
            first = next(j for j, i in enumerate(g.em.out) if i.kind == 'dma' and 'lds' in i.text)
            last = max(j for j, i in enumerate(g.em.out) if i.kind == 'mfma' and 'FB' not in i.text and j < next(t for t, z in enumerate(g.em.out) if z.text == 's_endpgm'))
            g.em.out = [i for j, i in enumerate(g.em.out) if i.kind not in dr or 's[24:27], s40' in i.text or j < first or (j > last and i.kind == 'valu')]
        n = {}
        for i in g.em.out: n[i.kind] = n.get(i.kind, 0) + 1
        sys.stderr.write(f"{v}: instr counts {n} overflow units {g.sc.overflow} nops {g.em.nnop} late {g.sc.softlate[:8]}\n")
        gens.append(g)
    pg = Gen(opts, 'Z'); pg.prologue()
    main = pg.em.text() + "\n"
    if len(gens) == 2:
        main += f"s_cmp_eq_u32 s45, 0\ns_cbranch_scc1 L_path0\ns_branch L_path1\nL_end:\ns_endpgm\nL_path0:\n" + gens[0].em.text() + "\nL_path1:\n" + gens[1].em.text()
    else:
        main += "s_branch L_path0\nL_end:\ns_endpgm\nL_path0:\n" + gens[0].em.text()
    g = gens[0]
    kn = NAME + "_kernel"
    launches = f"; @launch kernel={kn} grid=(256,1,1) block=(256,1,1) lds={LDS_BYTES}\n"
    if opts.get('ikr') and opts.get('single', 1): launches = f"; @launch grid=(256,1,1) block=(256,1,1) lds={LDS_BYTES}\n"
    if not opts.get('noreduce') and not opts.get('ikr'):
        launches += f"; @launch kernel=reduce_kernel grid=(640,1,1) block=(256,1,1) lds=0\n"
    t = HEADER + launches + '.amdgcn_target "amdgcn-amd-amdhsa--gfx950"\n.text\n'
    t += f".globl {kn}\n.p2align 8\n.type {kn},@function\n{kn}:\n" + main + "\n"
    if not opts.get('ikr'): t += ".globl reduce_kernel\n.p2align 8\n.type reduce_kernel,@function\nreduce_kernel:\n" + reduce_kernel(opts.get('rflags', '')) + "\n"
    t += '.section .rodata,"a"\n.p2align 6\n' + kd(kn, 512, 256)
    if not opts.get('ikr'): t += ".p2align 6\n" + kd("reduce_kernel", 96, 96)
    return t, g

if __name__ == "__main__":
    opts = {}
    out = sys.argv[1]
    for kv in sys.argv[2:]:
        k, v = kv.split("=", 1)
        opts[k] = int(v) if v.lstrip('-').isdigit() else v
    t, g = make(opts)
    open(out, "w").write(t)
```

```python
import sys, struct, re
from core import *

NAME = "concat_heads__mha_block_cached__mha_block_cached__near_ridge"
LDS_BYTES = 163840
BLK = 16384
RPK = [0, 2, 4, 6]; RPV = [1, 3, 5, 7]
WQB = [3, 4, 5, 6]; WOB = [8, 9, 6, 7]
WBASE = 98304; UBASE = 49152
XAREA = [143360, 122880]; XBASE = 122880

sK, sV, sX, sWq, sWo, sWs = S(4,4), S(8,4), S(12,4), S(16,4), S(20,4), S(24,4)
sW, sXw, sOff, sOwn, sOth = 28, 29, 30, 31, 32
sWave, sP, sI, sRedo = 33, 34, 35, 36
sC = S(38, 2)
vT = [1,2,3,4]; vD = [5,6,7,8]; vU = [9,10,11,12]
vOffK, vOffV, vOffX, vOffWq, vOffWo = 13, 14, 15, 16, 17
vLinW, vLinR, vSt = 18, 19, 20
vX = [76, 77]; vDummy = 78; vZero = 79
L_LO = (127 - 40) << 23; L_HI = (127 + 40) << 23
NEGM, SBUF, PBUF, OACC = 24, 44, 240, 80
NSB = 4
sKV, sLq, sLx, sLo, sCnt = 42, 43, 48, 49, 96
sRot, sT, sHi3 = 98, 99, 97
sQr, sXr, sHiQ = 72, 73, 97
aQ, aKF, aVF, aST, aL, aONE = 0, 80, 112, 144, 224, 244

def f32(x): return struct.unpack('<I', struct.pack('<f', x))[0]
CSCALE = 1.4426950408889634 * (128 ** -0.5)

class Alloc:
    def __init__(s):
        s.gr = [None] * 40
        s.order = []
    def free_blocks(s):
        return [b for b in range(10) if all(s.gr[4*b+j] is None for j in range(4))]
    def take_block(s, b, who):
        for j in range(4):
            assert s.gr[4*b+j] is None
            s.gr[4*b+j] = who
    def range_free(s, lo, n): return all(s.gr[j] is None for j in range(lo // 4096, (lo + n) // 4096))
    def take_range(s, lo, n, who):
        for j in range(lo // 4096, (lo + n) // 4096):
            assert s.gr[j] is None
            s.gr[j] = who
    def release(s, who):
        for j in range(40):
            if s.gr[j] is who: s.gr[j] = None
    def held(s, cls): return len({id(x) for x in s.gr if isinstance(x, Xfer) and x.cls == cls})

class Xfer:
    def __init__(s, cls, name, pieces, allowed=None, fixed=None):
        s.cls = cls; s.name = name; s.pieces = pieces
        s.allowed = allowed; s.fixed = fixed
        s.addr = None; s.ins = []; s.reads = []; s.issued = 0

class Gen:
    def __init__(s, opts, var):
        s.o = opts; s.var = var; s.pf = var
        s.em = Emitter()
        s.sc = Sched(s.em)
        s.al = Alloc()
        s.sc.ldspace = opts.get('ldspace', 2)
        s.aT = [AddrReg(v) for v in vT]
        s.aD = [AddrReg(v) for v in vD]
        s.aU = [AddrReg(v, base=UBASE) for v in vU]
        s.aX = [AddrReg(v, base=XBASE) for v in vX]
        s.bval = {}
        s.marks = []
        s.fb = {}
        s.kvpair = 0
        s.m0own = None
        s.soff_cur = None
        s.last_dma_gap = {}
        s.gate = {}
        s.stamps = 0
    def try_alloc(s, x, dry):
        if x.addr is not None: return True
        if x.cls in s.gate and not s.gate[x.cls](x): return False
        if x.fixed is not None:
            lo, n = x.fixed
            if not s.al.range_free(lo, n): return False
            if not dry: s.al.take_range(lo, n, x); x.addr = lo
            return True
        fb = [b for b in s.al.free_blocks() if x.allowed is None or b in x.allowed(x)]
        if not fb: return False
        if not dry:
            s.al.take_block(fb[0], x); x.addr = fb[0] * BLK
        return True
    def add_xfer(s, stream, x, earliest=-1, deadline=10**9, spacing=0, prio=5):
        for pi, (srd, voff, sbase, sconst, imm, ldsoff, m0b, flags) in enumerate(x.pieces):
            def mk(pi=pi, srd=srd, voff=voff, sbase=sbase, sconst=sconst, imm=imm, ldsoff=ldsoff, m0b=m0b, flags=flags):
                st = {}
                def peek_m0():
                    if s.m0own is not None: return None
                    if s.sc.g - s.last_dma_gap.get(stream, -999) < (spacing if not (s.o.get('pair') and x.cls == 'kv') else (2 * spacing - 2 if pi % 2 == 0 else 1)) - 1: return None
                    if not s.try_alloc(x, True): return None
                    a = x.addr
                    if a is None:
                        if x.fixed is not None: a = x.fixed[0]
                        else: a = [b for b in s.al.free_blocks() if x.allowed is None or b in x.allowed(x)][0] * BLK
                    val = (a + ldsoff - imm - s.bval.get(m0b, 0)) & 0xffffffff
                    return ('salu', salu(f"s_add_u32 m0, s{m0b}, 0x{val:x}", ['m0'], [S(m0b)]), True)
                def commit_m0(ins, c):
                    s.try_alloc(x, False); s.m0own = stream
                    for it in st['next']:
                        if not it.pinned: it.deadline = min(it.deadline, s.sc.g + (5 if rot else 3))
                msk = getattr(x, 'mask', None)
                rot = msk is not None
                def peek_so():
                    key = (sbase, sconst)
                    if s.soff_cur == key: st['skip'] = True; return ('skip', None, True)
                    st['skip'] = False
                    if sbase is None: i = salu(f"s_mov_b32 s{sOff}, 0x{sconst:x}", [S(sOff)])
                    elif rot: i = salu(f"s_add_u32 s{sOff}, s{sbase}, 0x{((sconst & msk) - s.bval.get(sbase, 0)) & msk:x}", [S(sOff)], [S(sbase)])
                    else: i = salu(f"s_add_u32 s{sOff}, s{sbase}, 0x{(sconst - s.bval.get(sbase, 0)) & 0xffffffff:x}", [S(sOff)], [S(sbase)])
                    return ('salu', i, True)
                def commit_so(ins, c): s.soff_cur = (sbase, sconst)
                def peek_so2():
                    if st['skip']: return ('skip', None, True)
                    return ('salu', salu(f"s_and_b32 s{sOff}, s{sOff}, 0x{msk:x}", [S(sOff)], [S(sOff)]), True)
                def peek_so3():
                    if st['skip']: return ('skip', None, True)
                    if getattr(x, 'dynhi', None): return ('salu', salu(f"s_add_u32 s{sOff}, s{sOff}, s{x.dynhi}", [S(sOff)], [S(sOff), S(x.dynhi)]), True)
                    d = (sconst & ~msk) - ((s.kvpair << 17) if x.cls == 'kv' else 0)
                    if d == 0: return ('skip', None, True)
                    return ('salu', salu(f"s_add_u32 s{sOff}, s{sOff}, 0x{d:x}", [S(sOff)], [S(sOff)]), True)
                def peek_dma():
                    t = f"buffer_load_dwordx4 v{voff}, {srd}, s{sOff} offen" + (f" offset:{imm}" if imm else "") + (f" {flags}" if flags else "") + " lds"
                    return ('dma', Ins(t, 'dma', rd=[f"v{voff}", f"s{sOff}", 'm0'] + srd.regs()), True)
                def commit_dma(ins, c):
                    assert s.sc.g <= getattr(x, 'lim', 10**9) + 1, (x.name, 'issued past its period mark')
                    ins.tag = (x, srd, voff, sbase, sconst, imm, ldsoff, m0b, flags)
                    s.m0own = None; x.ins.append(ins); x.issued += 1; s.last_dma_gap[stream] = s.sc.g
                s.sc.item(stream, Item(peek_m0, earliest, deadline, prio, f"{x.name}.m0.{pi}", commit_m0))
                st['next'] = [s.sc.item(stream, Item(peek_so, earliest, deadline, prio, f"{x.name}.so.{pi}", commit_so))]
                if rot:
                    st['next'].append(s.sc.item(stream, Item(peek_so2, earliest, deadline, prio, f"{x.name}.so2.{pi}")))
                    st['next'].append(s.sc.item(stream, Item(peek_so3, earliest, deadline, prio, f"{x.name}.so3.{pi}")))
                if x.cls == 'kv' and s.o.get('kvwin') and (getattr(x, 'win', False) or s.o.get('kvwinq')):
                    wn = s.o['kvwin'] if getattr(x, 'win', False) else s.o['kvwinq']
                    st['next'].append(s.sc.item(stream, Item(lambda: ('salu', Ins(f"s_waitcnt vmcnt({wn}) ", 'salu'), True), earliest, deadline, prio, f"{x.name}.win.{pi}")))
                st['next'].append(s.sc.item(stream, Item(peek_dma, earliest, deadline, prio, f"{x.name}.dma.{pi}", commit_dma)))
            mk()
    def blk_pieces(s, srd, voff, sbase, c0, rowstep16, cbstep, flags="", sW=sW):
        P = []
        for hi in (0, 1):
            for cb in (0, 1):
                if cbstep < 4096: P.append((srd, voff, sbase, c0 + hi * rowstep16, cb * cbstep, cb * 4096 + hi * 2048, sW, flags))
                else: P.append((srd, voff, sbase, c0 + hi * rowstep16 + cb * cbstep, 0, cb * 4096 + hi * 2048, sW, flags))
        return P
    def xf_K(s, n, m0b=sW): return Xfer('kv', f"K{n}", s.blk_pieces(sK, vOffK, sKV, n * 8192, 4096, 128, s.o.get('kvflags', 'nt'), m0b), fixed=(RPK[n % 4] * BLK, BLK))
    def xf_V(s, n, m0b=sW): return Xfer('kv', f"V{n}", s.blk_pieces(sV, vOffV, sKV, n * 8192, 4096, 128, s.o.get('kvflags', 'nt'), m0b), fixed=(RPV[n % 4] * BLK, BLK))
    def xf_Wq(s, r, k): return Xfer('wq', f"Wq{r}.{k}", s.blk_pieces(sWq, vOffWq, sLq, k * 32 * 8192 + r * 256, 16 * 8192, 128, s.o.get('wqflags', '')), fixed=(WQB[k % 4] * BLK, BLK))
    def xf_X(s, r, c):
        if s.o.get('krot'): P = [(sX, vOffX, sLx, m * 16384 + c * 128, 0, m * 2048, sXw, s.o.get('xflags', '')) for m in range(5)]
        else: P = [(sX, vOffX, sLx, m * 16384 + (c >> 1) * 256, (c & 1) * 128, m * 2048, sXw, s.o.get('xflags', '')) for m in range(5)]
        return Xfer('x', f"X{r}.{c}", P, fixed=(XAREA[c & 1], 20480))
    def xf_Wo(s, ch, m):
        grp = m // 2; sb = sOwn if grp < 2 else sOth
        hrow = 128 if grp in (0, 2) else 0
        k0 = hrow + (m & 1) * 64
        return Xfer('wo', f"Wo{ch}.{m}", s.blk_pieces(sWo, vOffWo, sb, k0 * 1024 + ch * 128, 16 * 1024, 32 * 1024, s.o.get('woflags', '')), fixed=(WOB[m % 4] * BLK, BLK))
    def xf_WoH(s, r, ch, m):
        sb = sOwn if m < 2 else sOth
        k0 = 128 * r + (m & 1) * 64
        return Xfer('wo', f"WoH{r}.{ch}.{m}", s.blk_pieces(sWo, vOffWo, sb, k0 * 1024 + ch * 128, 16 * 1024, 32 * 1024, s.o.get('woflags', '')), fixed=(WOB[m % 4] * BLK, BLK))
    def mark(s, idx, group, incs):
        def fn():
            if group: s.em.raw(Ins(f"; MARK {group}", 'comment', tag=('mark', group))); s.marks.append((group, idx))
            n = 0
            for sg, d in incs.items():
                if sg == 'hiq':
                    s.em.raw(salu(f"s_add_u32 s{sT}, s{sT}, 0x180000", [S(sT)], [S(sT)])); s.em.raw(salu(f"s_and_b32 s{sHiQ}, s{sT}, 0x400000", [S(sHiQ)], [S(sT)])); n += 2
                elif sg == 'hi3':
                    s.em.raw(salu(f"s_add_u32 s{sT}, s{sT}, 0xc000", [S(sT)], [S(sT)])); s.em.raw(salu(f"s_and_b32 s{sHi3}, s{sT}, 0x20000", [S(sHi3)], [S(sT)])); n += 2
                elif sg == 'vx': s.em.emit(valu(f"v_add_u32 v{vOffX}, 0x{d & 0xffffffff:x}, v{vOffX}", [V(vOffX)], [V(vOffX)])); n += 1
                else: s.em.raw(salu(f"s_add_u32 s{sg}, s{sg}, 0x{d & 0xffffffff:x}", [S(sg)], [S(sg)])); n += 1
                s.bval[sg] = s.bval.get(sg, 0) + d
            s.soff_cur = None
            return n
        s.sc.post(idx, fn)
        if group: s.sc.markidx.append(idx)
    def setbase(s, idx, sg, val=0):
        def fn():
            src = {sLq: sQr, sLx: sXr}.get(sg) if s.o.get('krot') else None
            s.em.raw(salu(f"s_mov_b32 s{sg}, s{src}" if src else f"s_mov_b32 s{sg}, 0x{val:x}", [S(sg)])); s.bval[sg] = val; s.soff_cur = None; return 1
        s.sc.post(idx, fn)
    def touch_item(s, stream, srd, voff, sbase, sconst, flags, earliest, deadline, name):
        mk = lambda: salu(f"s_mov_b32 s41, 0x{sconst:x}", [S(41)]) if sbase is None else salu(f"s_add_u32 s41, s{sbase}, 0x{(sconst - s.bval.get(sbase, 0)) & 0xffffffff:x}", [S(41)], [S(sbase)])
        ld = Ins(f"buffer_load_dword v22, v{voff}, {srd}, s41 offen {flags}", 'dma', rd=[f"v{voff}", 's41'] + srd.regs())
        s.sc.item(stream, Item(lambda: ('salu', mk(), True), earliest=earliest, deadline=deadline, prio=7, name=name))
        s.sc.item(stream, simple(ld, earliest=earliest, deadline=deadline + 2, prio=7, name=name))
    def ds_item(s, stream, op, dst, ar, x, off, wb, earliest, deadline, prio=1, name=""):
        tgt = lambda: (x.fixed[0] + off, wb)
        def peek():
            t = tgt()
            assert x.addr is not None, (x.name, "read before alloc")
            if not ar.reach(t): return ('valu', ar.rebase_ins(t), False)
            assert 0 <= t[0] - ar.base <= 65535
            return ('ds_r', Ins(f"{op} {dst}, v{ar.v} offset:{t[0] - ar.base}", 'ds_r', rd=[f"v{ar.v}"], wr=dst.regs()), True)
        def commit(ins, consume):
            if consume: x.reads.append(ins); ins.tag = (ar, ar.base)
            else: ar.rebased(tgt())
        return s.sc.item(stream, Item(peek, earliest, deadline, prio, name, commit, areg=(ar, tgt)))
    def rd_V(s, stream, frag, x, t, e0, dl, name=""):
        wb = (x.fixed[0] // 65536) * 65536
        for rd in (0, 1):
            s.ds_item(stream, "ds_read_b64_tr_b16", frag.sub(2 * rd, 2), s.aT[t & 3], x, (t >> 2) * 4096 + rd * 2048, wb, e0, dl, name=name)
    def rd_Wq(s, stream, frag, x, t, e0, dl, name=""):
        for rd in (0, 1):
            s.ds_item(stream, "ds_read_b64_tr_b16", frag.sub(2 * rd, 2), s.aU[t & 3], x, (t >> 2) * 4096 + rd * 512, UBASE, e0, dl, name=name)
    def rd_K(s, stream, frag, x, kt, u, e0, dl, name=""):
        wb = (x.fixed[0] // 65536) * 65536
        for pc in (0, 1):
            s.ds_item(stream, "ds_read_b64", frag.sub(2 * pc, 2), s.aD[2 * (u & 1) + pc], x, (u >> 1) * 4096 + kt * 2048, wb, e0, dl, name=name)
    def rd_X(s, stream, frag, x, k, qb, e0, dl, name=""):
        s.ds_item(stream, "ds_read_b128", frag, s.aX[k & 1], x, qb * 2048, XBASE, e0, dl, name=name)
    def sync_at(s, idx, need, free):
        def fn():
            n = 0
            for x in need: assert x.issued == len(x.pieces), (x.name, "not issued by sync", s.sc.g)
            vm = s.em.vm_needed([i for x in need for i in x.ins])
            lg = s.em.lgkm_needed([i for x in free for i in x.reads])
            for x in free: assert len(x.reads) == x.nreads, (x.name, len(x.reads), x.nreads, s.sc.g)
            if s.em.wait(lg, vm): n += 1
            s.em.raw(Ins("s_barrier", 'barrier')); n += 1
            for x in free: s.al.release(x)
            return n
        s.sc.post(idx, fn)
    def stamp(s, idx):
        if not s.o.get('stamps'): return
        k = s.stamps; s.stamps += 1
        def fn():
            s.em.raw(Ins(f"s_memtime s[{50+2*k}:{51+2*k}]", 'salu'))
            return 1
        s.sc.post(idx, fn)

    def prologue(s):
        e = s.em.emit
        sa = lambda t, w=(), r=(): e(salu(t, w, r))
        va = lambda t, w, r: e(valu(t, w, r))
        sa("s_cmp_ge_u32 s2, 256"); e(Ins("s_cbranch_scc1 L_end", 'salu'))
        if s.o.get('stamps'):
            e(Ins("s_memtime s[94:95]", 'salu')); e(Ins("s_memrealtime s[90:91]", 'salu'))
        e(Ins("s_load_dwordx16 s[64:79], s[0:1], 0", 'salu'))
        e(Ins("s_load_dwordx8 s[80:87], s[0:1], 64", 'salu'))
        e(Ins("s_load_dwordx2 s[88:89], s[0:1], 96", 'salu'))
        va("v_lshrrev_b32 v21, 6, v0", [V(21)], [V(0)])
        sa("s_and_b32 s40, s2, 7"); sa("s_lshr_b32 s41, s2, 3"); sa("s_lshr_b32 s42, s40, 2"); sa("s_and_b32 s43, s40, 3")
        va(f"v_readfirstlane_b32 s{sWave}, v21", [S(sWave)], [V(21)])
        sa("s_lshr_b32 s44, s41, 1"); sa("s_and_b32 s45, s41, 1")
        sa("s_lshl_b32 s46, s43, 3"); sa("s_lshl_b32 s47, s45, 2"); sa("s_add_u32 s46, s46, s47")
        sa(f"s_lshr_b32 s{sP}, s{sWave}, 1", [S(sP)], [S(sWave)]); sa(f"s_and_b32 s{sI}, s{sWave}, 1")
        sa(f"s_mov_b32 s{sRedo}, 0")
        va("v_and_b32 v0, 63, v0", [V(0)], [V(0)])
        va("v_lshrrev_b32 v21, 5, v0", [V(21)], [V(0)])
        va("v_lshlrev_b32 v21, 10, v21", [V(21)], [V(21)])
        va("v_bfe_u32 v22, v0, 2, 3", [V(22)], [V(0)])
        va("v_lshl_add_u32 v21, v22, 7, v21", [V(21)], [V(22), V(21)])
        va("v_and_b32 v23, 3, v0", [V(23)], [V(0)])
        va("v_lshl_add_u32 v21, v23, 3, v21", [V(21)], [V(23), V(21)])
        sa(f"s_lshl_b32 s48, s{sP}, 13")
        va("v_add_u32 v21, s48, v21", [V(21)], [V(21)])
        va("v_lshrrev_b32 v22, 1, v22", [V(22)], [V(22)])
        for ee in range(4):
            va(f"v_xor_b32 v23, {ee}, v22", [V(23)], [V(22)])
            va(f"v_lshl_add_u32 v{vT[ee]}, v23, 5, v21", [V(vT[ee])], [V(23), V(21)])
        va("v_bfe_u32 v21, v0, 3, 1", [V(21)], [V(0)])
        va("v_lshlrev_b32 v21, 10, v21", [V(21)], [V(21)])
        va("v_and_b32 v22, 7, v0", [V(22)], [V(0)])
        va("v_lshl_add_u32 v21, v22, 7, v21", [V(21)], [V(22), V(21)])
        va("v_bfe_u32 v22, v0, 4, 1", [V(22)], [V(0)])
        va("v_lshl_add_u32 v21, v22, 3, v21", [V(21)], [V(22), V(21)])
        va("v_bfe_u32 v22, v0, 1, 3", [V(22)], [V(0)])
        va("v_lshrrev_b32 v23, 5, v0", [V(23)], [V(0)])
        va("v_xor_b32 v22, v23, v22", [V(22)], [V(23), V(22)])
        for j in range(4):
            va(f"v_xor_b32 v23, {2*j}, v22", [V(23)], [V(22)])
            va(f"v_lshl_add_u32 v23, v23, 4, v21", [V(23)], [V(23), V(21)])
            va(f"v_add_u32 v{vD[j]}, s48, v23", [V(vD[j])], [V(23)])
        va("v_lshrrev_b32 v21, 4, v0", [V(21)], [V(0)])
        va("v_lshlrev_b32 v21, 10, v21", [V(21)], [V(21)])
        va("v_bfe_u32 v22, v0, 2, 2", [V(22)], [V(0)])
        va("v_lshl_add_u32 v21, v22, 7, v21", [V(21)], [V(22), V(21)])
        va("v_and_b32 v23, 3, v0", [V(23)], [V(0)])
        va("v_lshl_add_u32 v21, v23, 3, v21", [V(21)], [V(23), V(21)])
        sa(f"s_add_u32 s49, s48, {UBASE}")
        va("v_add_u32 v21, s49, v21", [V(21)], [V(21)])
        va("v_bfe_u32 v22, v0, 3, 2", [V(22)], [V(0)])
        for ee in range(4):
            va(f"v_xor_b32 v23, {ee}, v22", [V(23)], [V(22)])
            va(f"v_lshl_add_u32 v{vU[ee]}, v23, 5, v21", [V(vU[ee])], [V(23), V(21)])
        va("v_lshrrev_b32 v21, 3, v0", [V(21)], [V(0)])
        va("v_and_b32 v22, 7, v0", [V(22)], [V(0)])
        va("v_lshrrev_b32 v23, 4, v0", [V(23)], [V(0)])
        sa(f"s_lshl_b32 s50, s{sI}, 2")
        va(f"v_add_u32 v{vLinW}, s50, v23", [V(vLinW)], [V(23)])
        va(f"v_xor_b32 v{vLinW}, v22, v{vLinW}", [V(vLinW)], [V(22), V(vLinW)])
        va(f"v_lshlrev_b32 v{vLinW}, 4, v{vLinW}", [V(vLinW)], [V(vLinW)])
        va(f"v_lshlrev_b32 v23, 1, v23", [V(23)], [V(23)])
        va(f"v_xor_b32 v23, v22, v23", [V(23)], [V(22), V(23)])
        va(f"v_lshlrev_b32 v23, 4, v23", [V(23)], [V(23)])
        sa(f"s_lshl_b32 s50, s{sI}, 3")
        va(f"v_add_u32 v22, s50, v21", [V(22)], [V(21)])
        va(f"v_lshl_add_u32 v{vOffK}, v22, 8, v{vLinW}", [V(vOffK)], [V(22), V(vLinW)])
        va(f"v_lshl_add_u32 v{vOffV}, v22, 8, v23", [V(vOffV)], [V(22), V(23)])
        va(f"v_lshl_add_u32 v{vOffWo}, v22, 10, v23", [V(vOffWo)], [V(22), V(23)])
        va(f"v_bfe_u32 v23, v0, 4, 1", [V(23)], [V(0)])
        sa(f"s_lshl_b32 s50, s{sI}, 1")
        va(f"v_add_u32 v23, s50, v23", [V(23)], [V(23)])
        va(f"v_lshlrev_b32 v23, 1, v23", [V(23)], [V(23)])
        va(f"v_and_b32 v21, 7, v0", [V(21)], [V(0)])
        va(f"v_xor_b32 v23, v21, v23", [V(23)], [V(21), V(23)])
        va(f"v_lshlrev_b32 v23, 4, v23", [V(23)], [V(23)])
        va(f"v_lshl_add_u32 v{vOffWq}, v22, 13, v23", [V(vOffWq)], [V(22), V(23)])
        sa(f"s_mul_i32 s50, s{sP}, 80")
        va(f"v_add_u32 v22, s50, v22", [V(22)], [V(22)])
        va(f"v_lshl_add_u32 v{vOffX}, v22, 10, v{vLinW}", [V(vOffX)], [V(22), V(vLinW)])
        va("v_and_b32 v21, 15, v0", [V(21)], [V(0)])
        va("v_lshlrev_b32 v21, 7, v21", [V(21)], [V(21)])
        sa(f"s_mul_i32 s49, s{sI}, 10240"); sa(f"s_add_u32 s49, s49, {XBASE}")
        va("v_add_u32 v21, s49, v21", [V(21)], [V(21)])
        va("v_bfe_u32 v22, v0, 1, 3", [V(22)], [V(0)])
        va("v_lshrrev_b32 v23, 4, v0", [V(23)], [V(0)])
        va("v_xor_b32 v22, v23, v22", [V(22)], [V(23), V(22)])
        va(f"v_lshl_add_u32 v{vX[0]}, v22, 4, v21", [V(vX[0])], [V(22), V(21)])
        va("v_xor_b32 v22, 4, v22", [V(22)], [V(22)])
        va(f"v_lshl_add_u32 v{vX[1]}, v22, 4, v21", [V(vX[1])], [V(22), V(21)])
        va(f"v_lshlrev_b32 v{vSt}, 4, v0", [V(vSt)], [V(0)])
        sa(f"s_lshl_b32 s50, s{sI}, 10"); sa(f"s_add_u32 s{sW}, s48, s50", [S(sW)])
        sa(f"s_mul_i32 s51, s{sP}, 10240"); sa(f"s_add_u32 s{sXw}, s51, s50", [S(sXw)])
        sa(f"s_lshl_b32 s{sOwn}, s{sP}, 18"); sa(f"s_xor_b32 s{sOth}, s{sOwn}, 0x40000")
        sa(f"s_mov_b32 s{sC.lo}, 0x{f32(CSCALE):x}"); sa(f"s_mov_b32 s{sC.lo+1}, 0x{f32(CSCALE):x}")
        e(Ins("s_waitcnt lgkmcnt(0)", 'wait'))
        sa("s_cmp_eq_u32 s42, 0")
        sa("s_cselect_b64 s[12:13], s[64:65], s[74:75]"); sa("s_cselect_b64 s[4:5], s[66:67], s[76:77]")
        sa("s_cselect_b64 s[8:9], s[68:69], s[78:79]"); sa("s_cselect_b64 s[16:17], s[70:71], s[80:81]")
        sa("s_cselect_b64 s[20:21], s[72:73], s[82:83]")
        def add64(lo, off):
            sa(f"s_add_u32 s{lo}, s{lo}, {off}"); sa(f"s_addc_u32 s{lo+1}, s{lo+1}, 0")
        sa("s_mul_i32 s50, s44, 163840"); add64(12, "s50"); sa("s_mov_b32 s14, 163840"); sa("s_mov_b32 s15, 0x20000")
        sa(f"s_lshl_b32 s51, s{sP}, 1"); sa(f"s_add_u32 s51, s46, s51")
        sa("s_lshl_b32 s50, s51, 8"); add64(16, "s50"); sa("s_sub_u32 s18, 0x400000, s50"); sa("s_mov_b32 s19, 0x20000")
        sa("s_lshl_b32 s50, s44, 5"); sa("s_add_u32 s50, s50, s51"); sa("s_lshl_b32 s50, s50, 17")
        add64(4, "s50"); sa("s_mov_b32 s6, 0x40000"); sa("s_mov_b32 s7, 0x20000")
        add64(8, "s50"); sa("s_mov_b32 s10, 0x40000"); sa("s_mov_b32 s11, 0x20000")
        sa("s_lshl_b32 s50, s46, 17"); sa(f"s_lshl_b32 s51, s{sP}, 9"); sa("s_add_u32 s50, s50, s51")
        add64(20, "s50"); sa("s_sub_u32 s22, 0x80000, s51"); sa("s_mov_b32 s23, 0x20000")
        sa("s_lshl_b32 s50, s42, 4"); sa("s_add_u32 s50, s50, s44"); sa("s_lshl_b32 s50, s50, 3")
        sa("s_lshl_b32 s51, s43, 1"); sa("s_add_u32 s50, s50, s51"); sa("s_add_u32 s50, s50, s45")
        sa("s_mul_i32 s50, s50, 163840"); sa(f"s_mul_i32 s51, s{sWave}, 40960"); sa("s_add_u32 s50, s50, s51")
        sa("s_mov_b32 s24, s88"); sa("s_mov_b32 s25, s89"); add64(24, "s50"); sa("s_mov_b32 s26, 40960"); sa("s_mov_b32 s27, 0x20000")
        if s.o.get('ikr'):
            sa("s_lshl_b32 s50, s42, 4"); sa("s_add_u32 s50, s50, s44")
            sa("s_lshl_b32 s51, s43, 1"); sa("s_add_u32 s51, s51, s45")
            sa("s_mul_i32 s52, s50, 1310720"); sa("s_add_u32 s76, s88, s52"); sa("s_addc_u32 s77, s89, 0"); sa("s_mov_b32 s78, 1310720"); sa("s_mov_b32 s79, 0x20000")
            sa("s_lshl_b32 s52, s50, 8"); sa("s_add_u32 s52, s52, 0x3000000"); sa("s_add_u32 s80, s88, s52"); sa("s_addc_u32 s81, s89, 0"); sa("s_mov_b32 s82, 256"); sa("s_mov_b32 s83, 0x20000")
            sa("s_lshl_b32 s52, s50, 2"); sa("s_add_u32 s86, s86, s52"); sa("s_addc_u32 s87, s87, 0")
            sa("s_lshr_b32 s52, s51, 1"); sa("s_mul_i32 s74, s52, 40960"); sa(f"s_mul_i32 s53, s{sWave}, 10"); sa("s_and_b32 s54, s51, 1"); sa("s_add_u32 s53, s53, s54"); sa("s_lshl_b32 s53, s53, 10"); sa("s_add_u32 s74, s74, s53")
            sa("s_and_b32 s53, s52, 1"); sa("s_mul_i32 s53, s53, 80"); sa("s_mul_i32 s75, s44, 160"); sa("s_add_u32 s75, s75, s53"); sa("s_lshl_b32 s75, s75, 11")
            sa("s_lshl_b32 s53, s42, 10"); sa("s_add_u32 s75, s75, s53"); sa("s_lshr_b32 s53, s52, 1"); sa("s_lshl_b32 s53, s53, 9"); sa("s_add_u32 s75, s75, s53")
            sa(f"s_lshl_b32 s53, s{sWave}, 7"); sa("s_add_u32 s75, s75, s53"); sa("s_lshl_b32 s53, s54, 6"); sa("s_add_u32 s75, s75, s53")
        sa("s_mov_b32 s55, s43"); sa("s_mov_b32 s56, s42")
        if s.o.get('krot'):
            sa("s_lshl_b32 s50, s45, 2"); sa("s_add_u32 s50, s50, s44"); sa("s_and_b32 s50, s50, 7")
            sa(f"s_lshl_b32 s{sQr}, s50, 19"); sa(f"s_lshl_b32 s{sXr}, s50, 7"); sa(f"s_mov_b32 s{sLq}, s{sQr}"); sa(f"s_mov_b32 s{sLx}, s{sXr}")
        else:
            for sg in (sLq, sLx): sa(f"s_mov_b32 s{sg}, 0")
        rm = s.o.get('rot', 5)
        if rm == 0: sa(f"s_mov_b32 s{sRot}, 0")
        elif rm == 5:
            sa(f"s_mul_i32 s{sRot}, s2, 5"); sa(f"s_add_u32 s{sRot}, s{sRot}, s41"); sa(f"s_mul_i32 s50, s{sP}, 7"); sa(f"s_add_u32 s{sRot}, s{sRot}, s50")
        elif rm == 1:
            sa(f"s_lshl_b32 s{sRot}, s{sP}, 3"); sa(f"s_add_u32 s{sRot}, s{sRot}, s44")
        elif rm == 2:
            sa(f"s_lshl_b32 s{sRot}, s40, 1"); sa(f"s_add_u32 s{sRot}, s{sRot}, s41"); sa(f"s_mul_i32 s50, s{sP}, 7"); sa(f"s_add_u32 s{sRot}, s{sRot}, s50")
        elif rm == 3:
            sa(f"s_mul_i32 s{sRot}, s44, 3"); sa(f"s_lshl_b32 s50, s{sP}, 1"); sa("s_add_u32 s50, s50, s46"); sa("s_lshr_b32 s50, s50, 1"); sa("s_mul_i32 s50, s50, 5"); sa(f"s_add_u32 s{sRot}, s{sRot}, s50")
        elif isinstance(rm, str):
            a_, c_, d_, e_, f_ = map(int, rm.split(','))
            sa(f"s_mul_i32 s{sRot}, s44, {a_}")
            for reg, m in (('s55', c_), ('s45', d_), (f's{sP}', e_), ('s56', f_)):
                sa(f"s_mul_i32 s50, {reg}, {m}"); sa(f"s_add_u32 s{sRot}, s{sRot}, s50")
        elif rm == 4:
            sa(f"s_lshl_b32 s50, s2, 1"); sa(f"s_add_u32 s50, s50, s{sP}"); sa(f"s_mul_i32 s50, s50, 0x9e3779b1"); sa(f"s_lshr_b32 s{sRot}, s50, 28")
        sa(f"s_and_b32 s{sRot}, s{sRot}, 15"); sa(f"s_lshl_b32 s{sRot}, s{sRot}, 13"); sa(f"s_mov_b32 s{sKV}, s{sRot}")
        sa("s_lshl_b32 s50, s44, 5"); sa(f"s_lshl_b32 s51, s{sI}, 4"); sa("s_add_u32 s50, s50, s51")
        va("v_lshrrev_b32 v21, 2, v0", [V(21)], [V(0)])
        va("v_add_u32 v21, s50, v21", [V(21)], [V(21)])
        if s.o.get('wt') == 1:
            va("v_and_b32 v22, 3, v0", [V(22)], [V(0)])
            va("v_lshlrev_b32 v22, 7, v22", [V(22)], [V(22)])
            va("v_lshl_add_u32 v23, v21, 10, v22", [V(23)], [V(21), V(22)])
        else:
            va("v_and_b32 v22, 1, v0", [V(22)], [V(0)])
            va("v_lshlrev_b32 v22, 6, v22", [V(22)], [V(22)])
            va("v_lshl_add_u32 v23, v21, 10, v22", [V(23)], [V(21), V(22)])
        va("v_and_b32 v22, 3, v0", [V(22)], [V(0)])
        va("v_lshlrev_b32 v22, 6, v22", [V(22)], [V(22)])
        va("v_lshl_add_u32 v21, v21, 13, v22", [V(21)], [V(21), V(22)])
        if s.o.get('ikr'):
            va("v_mov_b32 v78, 0", [V(78)], [])
            e(Ins("buffer_load_dword v0, v78, s[80:83], 0 offen sc1", 'dma', rd=['v78']))
            e(Ins("buffer_load_dword a252, v78, s[80:83], 0 offen offset:128 sc1", 'dma', rd=['v78']))

    def valu_block(s, L, every=4):
        first = s.sc.n()
        for j, ins in enumerate(L):
            s.sc.add(ins, cap=(2 if (j % every) == every - 1 else 0))
        return first, s.sc.n() - 1

    def setup(s):
        o = s.o
        s.Wq = [[s.xf_Wq(r, k) for k in range(17)] for r in range(2)]
        s.X = [[s.xf_X(r, c) for c in range(8)] for r in range(2)]
        s.K = [s.xf_K(n) for n in range(33)]; s.Vv = [s.xf_V(n) for n in range(33)]
        for x in s.Wq[0] + s.Wq[1] + s.K + s.Vv: x.nreads = 16
        for x in s.X[0] + s.X[1]: x.nreads = 10
        for x in (s.Wq[0][16], s.Wq[1][16], s.K[32], s.Vv[32]): x.nreads = 0
        for n in (8, 12, 16, 24, 28, 32): s.K[n].dynhi = sHi3; s.Vv[n].dynhi = sHi3
        for x in s.K + s.Vv: x.mask = 0x1ffff
        for n in range(33):
            if n % 16 >= 4 or n in (16, 32): s.K[n].win = True; s.Vv[n].win = True
        if o.get('krot'):
            for r in range(2):
                for x in s.Wq[r]: x.mask = 0x3fffff
                for x in s.X[r]: x.mask = 0x3ff
                for k in (8, 12, 16): s.Wq[r][k].dynhi = sHiQ
        s.sp_st = o.get('sp_stage', 3); s.sp_kv = o.get('sp_kv', 6)
        s.pre_free = []

    def start(s):
        o = s.o; sc = s.sc
        g0 = sc.add(None, cap=0); s.g0 = g0
        s.stamp(g0)
        init = [valu(f"v_mov_b32 v44, 0x3f803f80", [V(44)], []), valu(f"v_mov_b32 v{vZero}, 0", [V(vZero)], [])]
        init += [valu(f"v_accvgpr_write_b32 a{aONE+j}, v44", [A(aONE + j)], [V(44)]) for j in range(4)]
        init += [valu(f"v_mov_b32 v{NEGM+j}, 0", [V(NEGM + j)], []) for j in range(20)]
        exs = 20480 if s.var != 'X' else 10240; exb = 0 if s.var != 'X' else 32768
        init += [salu(f"s_mul_i32 s46, s{sWave}, {exs}", [S(46)]), salu(f"s_add_u32 s46, s46, {exb}", [S(46)]),
                 valu(f"v_add_u32 v{vLinW}, s46, v{vSt}", [V(vLinW)], [V(vSt)]),
                 salu(f"s_xor_b32 s47, s{sWave}, 2", [S(47)]), salu(f"s_mul_i32 s47, s47, {exs}", [S(47)]), salu(f"s_add_u32 s47, s47, {exb}", [S(47)]),
                 valu(f"v_add_u32 v{vLinR}, s47, v{vSt}", [V(vLinR)], [V(vSt)])]
        if o.get('kvt'):
            init += [salu(f"s_cmp_eq_u32 s{sI}, 0"), salu("s_cselect_b64 s[100:101], s[4:5], s[8:9]" if not o.get('kvtm') else "s_mov_b64 s[100:101], s[4:5]"), salu("s_cselect_b32 s46, 8192, 0", [S(46)]),
                     valu(f"v_lshlrev_b32 v78, 3, v{vSt}", [V(78)], [V(vSt)]), valu(f"v_add_u32 v78, s46, v78", [V(78)], [V(78)]),
                     salu("s_mov_b32 s44, s100"), salu("s_mov_b32 s45, s101"), salu("s_mov_b32 s46, 0x40000"), salu("s_mov_b32 s47, 0x20000"), salu("s_mov_b32 s97, 0")]
        for x in (s.X[0][0], s.Wq[0][0], s.Wq[0][1], s.X[0][1], s.Wq[0][2], s.Wq[0][3]): s.add_xfer('stage', x, earliest=g0, deadline=g0, prio=0)
        gt = sc.add(None, cap=0)
        if 'q' in str(o.get('t0', '')):
            sc.item('tch', simple(Ins(f"buffer_load_dword v22, v21, {sWq}, 0 offen {o.get('t0qf', '')}", 'dma', rd=['v21']), earliest=gt, deadline=gt))
        if o.get('ct'):
            pf = s.pf
            init += [salu("s_getpc_b64 s[100:101]"), Ins(f"L_{pf}pc:", 'label'),
                     salu("s_lshr_b32 s46, s2, 3", [S(46)]), salu("s_lshl_b32 s46, s46, 2", [S(46)]), salu(f"s_add_u32 s46, s46, s{sWave}", [S(46)]), salu("s_lshl_b32 s46, s46, 9", [S(46)]),
                     valu(f"v_and_b32 v80, 48, v{vSt}", [V(80)], [V(vSt)]), valu("v_lshlrev_b32 v80, 3, v80", [V(80)], [V(80)]), valu("v_add_u32 v80, s46, v80", [V(80)], [V(80)]),
                     valu(f"v_min_u32 v80, L_{pf}end-L_{pf}pc, v80", [V(80)], [V(80)]), valu("v_mov_b32 v81, s101", [V(81)], []),
                     valu("v_add_co_u32 v80, vcc, s100, v80", [V(80), 'vcc'], [V(80)]), valu("v_addc_co_u32 v81, vcc, 0, v81, vcc", [V(81), 'vcc'], [V(81), 'vcc']),
                     Ins("global_load_dword v22, v[80:81], off", 'dma', rd=['v80', 'v81'])]
        a_, b_ = s.valu_block(init)
        s.presync = b_; s.first_dl = None

    def phase_Q(s, r, dst, nxt, k0order=None):
        o = s.o; sc = s.sc; Wq = s.Wq; X = s.X; K = s.K; Vv = s.Vv; sp_st = s.sp_st
        wqf = lambda k, t: A((aKF if k % 2 == 0 else aVF) + 4 * t, 4)
        xf = lambda k, qb: A(aQ + (k % 2) * 20 + 4 * qb, 4)
        pre = s.presync
        q0 = sc.n()
        s.sync_at(pre, [Wq[r][0], X[r][0]], s.pre_free); s.pre_free = []
        for t in range(8): s.rd_Wq('rdT', wqf(0, t), Wq[r][0], t, pre, q0 - 1, name=f"wq{r}.0.{t}")
        for qb in range(5): s.rd_X('rdD', xf(0, qb), X[r][0], 0, qb, pre, q0 - 1, name=f"x{r}.0.{qb}")
        base = {}; s.qpos0 = {}
        for k in range(16):
            base[k] = sc.n()
            for qb in (k0order if (k == 0 and k0order) else range(5)):
                for t in range(8):
                    acc = V(OACC + qb * 32 + t * 4, 4)
                    i = sc.add(mfma(acc, wqf(k, t), xf(k, qb), acc if k else 0))
                    if k == 0: s.qpos0[acc.lo] = i
        qend = sc.n() - 1
        s.qbase = base
        if o.get('krot'): s.setbase(base[0], sT, 0)
        if o.get('ikr') and r == 0:
            def announce():
                em = s.em
                em.raw(salu(f"s_cmp_lg_u32 s{sWave}, 0")); em.raw(Ins(f"s_cbranch_scc1 L_{s.pf}ann", 'salu'))
                for t in ("s_mov_b32 s44, s86", "s_mov_b32 s45, s87", "s_mov_b32 s46, 4", "s_mov_b32 s47, 0x20000", "s_mov_b64 exec, 1"): em.raw(salu(t))
                em.raw(valu("v_mov_b32 v45, 1", [V(45)], []))
                em.raw(Ins("buffer_atomic_add v45, v78, s[44:47], 0 offen", 'salu'))
                em.raw(salu("s_mov_b64 exec, -1"))
                em.raw(Ins(f"L_{s.pf}ann:", 'label')); em.raw(Ins("s_nop 4", 'nop', states=5))
                return 3
            sc.post(pre, announce)
        for k in range(16):
            bs = base[k]
            if k in (1, 5, 9, 13):
                inc = {sLq: 4 * 32 * 8192, sLx: 256} if k < 13 else {}
                if o.get('krot') and k < 13: inc['hiq'] = 1
                if o.get('kvt') and nxt == 'A' and k < 13:
                    m = o['kvt']
                    mul = 2 if o.get('kvtm') else 1
                    inc[97] = 8192 * m * mul
                    for jj in range(m):
                        e0 = bs + o.get('kvt_at', 20) + jj * (160 // m)
                        off = (s.nextA * 16 + o.get('kvts', 1) + ((k // 4) * m + jj) * mul) * 8192
                        s.touch_item('tch', S(44, 4), 78, 97, off, o.get('kvtf', 'nt'), e0, e0 + 10, "kvt")
                        if o.get('kvth'): s.touch_item('tch', S(44, 4), 78, 97, off + 64, o.get('kvtf', 'nt'), e0 + 2, e0 + 14, "kvt")
                s.mark(bs - 1, f"Q{r}", inc)
            if k < 15:
                need = [Wq[r][k + 1]] + ([X[r][(k + 1) // 2]] if (k + 1) % 2 == 0 else [])
                free = [Wq[r][k]] + ([X[r][k // 2]] if k % 2 == 1 else [])
                if k == 13: need.append(Wq[r][16]); free.append(Wq[r][16])
                s.sync_at(bs, need, free)
                for t in range(8): s.rd_Wq('rdT', wqf(k + 1, t), Wq[r][k + 1], t, bs, bs + 32, name=f"wq{r}.{k+1}.{t}")
                for qb in range(5): s.rd_X('rdD', xf(k + 1, qb), X[r][(k + 1) // 2], k + 1, qb, bs, bs + 32, name=f"x{r}.{k+1}.{qb}")
            else:
                s.sync_at(bs, [], [Wq[r][15], X[r][7]])
            if k % 2 == 1 and (k + 3) // 2 < 8: s.add_xfer('stage', X[r][(k + 3) // 2], earliest=bs, deadline=bs + 30, prio=0, spacing=sp_st)
            if k + 4 <= 16:
                if k % 4 == 0 and k: Wq[r][k + 4].lim = bs + 37
                s.add_xfer('stage', Wq[r][k + 4], earliest=bs, deadline=bs + 36, prio=0, spacing=sp_st)
        if o.get('qst') and r == o['qst'] - 1:
            s.stamp(base[0]); s.stamp(base[1] - 2); s.stamp(base[13])
        s.stamp(qend)
        if r == 0:
            e0, d0 = (s.g0, base[1] - 2) if not o.get('kv0at') else (base[13], base[14])
            for x in (K[0], Vv[0], K[1]): s.add_xfer('kv', x, earliest=e0, deadline=d0, prio=4, spacing=o.get('sp_kv0', 3))
        ep = []
        for qb in range(5):
            for u in range(4):
                src = OACC + qb * 32 + u * 8
                for j in range(4):
                    ep.append(valu(f"v_pk_mul_f32 v[{src+2*j}:{src+2*j+1}], v[{src+2*j}:{src+2*j+1}], {sC}", [V(src + 2*j, 2)], [V(src + 2*j, 2)]))
                for j in range(4):
                    ep.append(valu(f"v_cvt_pk_bf16_f32 v{src+j}, v{src+2*j}, v{src+2*j+1}", [V(src + j)], [V(src + 2*j, 2)]))
                for j in range(4):
                    ep.append(valu(f"v_accvgpr_write_b32 a{dst+qb*16+u*4+j}, v{src+j}", [A(dst + qb*16 + u*4 + j)], [V(src + j)]))
        if nxt == 'A':
            n0 = s.nextA * 16
            for (x, k) in ((K[n0 + 2], 13), (Vv[n0 + 1], 13), (Vv[n0 + 2], 14), (K[n0 + 3], 15), (Vv[n0 + 3], 15)):
                s.add_xfer('kv', x, earliest=base[k], deadline=qend + 60, prio=4, spacing=sp_st)
        else:
            s.setbase(base[13], sLq, 0); s.setbase(base[13], sLx, 0)
            if o.get('wt') == 2: s.touch_item('tch', sWq, 21, None, 256, o.get('wtf', ''), base[0], base[0] + 20, "wq1t")
            for (x, k) in ((X[1][0], 13), (Wq[1][0], 13), (Wq[1][1], 13), (Wq[1][2], 14), (X[1][1], 15), (Wq[1][3], 15)):
                s.add_xfer('stage', x, earliest=base[k], deadline=min(base[k] + 60, qend + 30), prio=0, spacing=sp_st)
        ea, eb = s.valu_block(ep)
        if nxt == 'A':
            s.setbase(ea, sLq, 0); s.setbase(ea, sLx, 0)
        s.presync = ea + (100 if nxt == 'A' else 140)

    def phase_A(s, r, qs, nxt, stash):
        o = s.o; sc = s.sc; K = s.K; Vv = s.Vv; sp_kv = s.sp_kv; sp_st = s.sp_st
        n0 = 16 * r; pf = s.pf
        aent = sc.add(None, cap=0)
        def entry():
            assert s.m0own is None
            if r == 1:
                for lo in (4, 8):
                    s.em.raw(salu(f"s_add_u32 s{lo}, s{lo}, 0x20000")); s.em.raw(salu(f"s_addc_u32 s{lo+1}, s{lo+1}, 0")); s.em.raw(salu(f"s_mov_b32 s{lo+2}, 0x20000"))
                s.kvpair = 1
            s.soff_cur = None
            s.em.raw(Ins(f"L_{pf}Aent{r}:", 'label'))
            s.fb[r] = dict(bval=dict(s.bval), aT=[a.base for a in s.aT], aD=[a.base for a in s.aD], qs=qs,
                           dmas=[i for x in K[n0:n0 + 4] + Vv[n0:n0 + 4] for i in x.ins],
                           reads=list(K[n0].reads) + list(Vv[n0].reads))
            assert len(s.fb[r]['reads']) == 32 and all(i.tag[0].base == i.tag[1] for i in s.fb[r]['reads'])
            return 0
        sc.post(aent, entry)
        kf = lambda kt, u: A(aKF + (u * 2 + kt) * 4, 4)
        vf = lambda dt: A(aVF + dt * 4, 4)
        Sb = lambda tau, kt: V(SBUF + (tau % NSB) * 8 + kt * 4, 4)
        Pb = lambda tau: V(PBUF + (tau % NSB) * 4, 4)
        asy = s.presync
        s.sync_at(asy, [K[n0], Vv[n0]], s.pre_free); s.pre_free = []
        for u in range(4):
            for kt in range(2): s.rd_K('rdD', kf(kt, u), K[n0], kt, u, asy, aent - 1, name=f"k{n0}")
        for dt in range(8): s.rd_V('rdT', vf(dt), Vv[n0], dt, asy, aent - 1, name=f"v{n0}")
        qk_pos = {}; pv_pos = {}; slot0 = {}
        for tau in range(82):
            slot0[tau] = sc.n()
            if tau < 80:
                st, qb = divmod(tau, 5)
                for u in range(4):
                    for kt in range(2):
                        d = Sb(tau, kt)
                        c = d if u else V(NEGM + qb * 4, 4)
                        qk_pos[(tau, kt, u)] = sc.add(mfma(d, kf(kt, u), A(qs + qb * 16 + u * 4, 4), c))
            if tau >= 2:
                t2 = tau - 2; st, qb = divmod(t2, 5)
                for dt in range(8):
                    acc = V(OACC + qb * 32 + dt * 4, 4)
                    pv_pos[(t2, dt)] = sc.add(mfma(acc, vf(dt), Pb(t2), acc if st else 0))
                l = A(aL + qb * 4, 4)
                pv_pos[(t2, 8)] = sc.add(mfma(l, A(aONE, 4), Pb(t2), l if st else 0))
        aend = sc.n() - 1
        if o.get('ast') == 2 and r == 0:
            for t_ in (0, 10, 20, 30, 40, 50, 60): s.stamp(slot0[t_])
        if o.get('ast') == 1 and r == 0:
            s.stamp(slot0[0]); s.stamp(slot0[4]); s.stamp(slot0[8] - 2); s.stamp(slot0[68])
        s.stamp(aend)
        for tau in (8, 28, 48, 68): s.mark(slot0[tau] - 1, f"A{r}", {sKV: 32768, 'hi3': 1} if tau < 68 else {})
        s.setbase(aent, sT, 0)
        for tau in range(80):
            e0 = qk_pos[(tau, 1, 3)] + 2
            dl = pv_pos[(tau, 0)] - 2
            for kt in range(2):
                for j in range(4):
                    rr = Sb(tau, kt).lo + j
                    sc.item('sm', simple(trans(f"v_exp_f32 v{rr}, v{rr}", [V(rr)], [V(rr)]), earliest=e0, deadline=dl - 4, prio=2, name=f"exp{tau}"))
                for j in range(2):
                    rr = Sb(tau, kt).lo + 2 * j
                    pd = Pb(tau).lo + 2 * kt + j
                    sc.item('sm', simple(valu(f"v_cvt_pk_bf16_f32 v{pd}, v{rr}, v{rr+1}", [V(pd)], [V(rr, 2)]), earliest=e0, deadline=dl, prio=2, name=f"cvt{tau}"))
        sy = {}
        for st in range(15):
            t4 = 5 * st + 4
            sy[st + 1] = slot0[t4] - 1
            s.sync_at(sy[st + 1], [K[n0 + st + 1], Vv[n0 + st + 1]], [K[n0 + st], Vv[n0 + st]])
            for u in range(4):
                for kt in range(2):
                    s.rd_K('rdD', kf(kt, u), K[n0 + st + 1], kt, u, qk_pos[(t4, kt, u)], qk_pos[(t4 + 1, kt, u)] - 7, name=f"k{n0+st+1}")
            for dt in range(8):
                s.rd_V('rdT', vf(dt), Vv[n0 + st + 1], dt, pv_pos[(t4, dt)], pv_pos[(t4 + 1, dt)] - 7, name=f"v{n0+st+1}")
            if st + 4 <= 16:
                lim = slot0[5 * st + 8] - 3 if st % 4 == 0 else 10**9
                K[n0 + st + 4].lim = lim; Vv[n0 + st + 4].lim = lim
                s.add_xfer('kv', K[n0 + st + 4], earliest=sy[st + 1], deadline=min(sy[st + 1] + 70, lim), prio=4, spacing=sp_kv)
                s.add_xfer('kv', Vv[n0 + st + 4], earliest=sy[st + 1], deadline=min(sy[st + 1] + 75, lim), prio=4, spacing=sp_kv)
        ep = []
        RC = 64 if nxt == 'H' else SBUF
        T0 = 240 if nxt == 'H' else SBUF + 12
        flag_off = 131072 if nxt in ('Q', 'A') else 32768
        for qb in range(5):
            ep.append(valu(f"v_accvgpr_read_b32 v{RC+2*qb}, a{aL+4*qb}", [V(RC + 2*qb)], [A(aL + 4*qb)]))
        for qb in range(5):
            ep.append(valu(f"v_subrev_u32 v{T0+qb}, 0x{L_LO:x}, v{RC+2*qb}", [V(T0 + qb)], [V(RC + 2*qb)]))
        ep.append(valu(f"v_max3_u32 v{T0}, v{T0}, v{T0+1}, v{T0+2}", [V(T0)], [V(T0, 3)]))
        ep.append(valu(f"v_max3_u32 v{T0}, v{T0}, v{T0+3}, v{T0+4}", [V(T0)], [V(T0), V(T0 + 3, 2)]))
        ep.append(valu(f"v_cmp_lt_u32 vcc, 0x{L_HI - L_LO:x}, v{T0}", ['vcc'], [V(T0)]))
        for qb in range(5):
            ep.append(trans(f"v_rcp_f32 v{RC+2*qb}, v{RC+2*qb}", [V(RC + 2*qb)], [V(RC + 2*qb)]))
        ep.append(salu("s_cmp_lg_u64 vcc, 0", [], ['vcc']))
        ep.append(salu("s_cselect_b32 s40, 1, 0", [S(40)]))
        ep.append(valu(f"v_mov_b32 v{T0+1}, s40", [V(T0 + 1)], []))
        ep.append(salu(f"s_lshl_b32 s40, s{sWave}, 2", [S(40)]))
        ep.append(valu(f"v_add_u32 v{T0+2}, 0x{flag_off:x}, v{vZero}", [V(T0 + 2)], []))
        ep.append(valu(f"v_add_u32 v{T0+3}, s40, v{T0+2}", [V(T0 + 3)], [V(T0 + 2)]))
        fw = Ins(f"ds_write_b32 v{T0+3}, v{T0+1}", 'ds_w', rd=[f"v{T0+3}", f"v{T0+1}"])
        ep.append(fw)
        body = []; late = []
        for qb in range(5):
            for u in range(4):
                src = OACC + qb * 32 + u * 8
                dst = OACC + qb * 16 + u * 4
                for j in range(4):
                    body.append(valu(f"v_pk_mul_f32 v[{src+2*j}:{src+2*j+1}], v[{src+2*j}:{src+2*j+1}], v[{RC+2*qb}:{RC+2*qb+1}] op_sel_hi:[1,0]",
                                   [V(src + 2*j, 2)], [V(src + 2*j, 2), V(RC + 2*qb)]))
                for j in range(4):
                    body.append(valu(f"v_cvt_pk_bf16_f32 v{dst+j}, v{src+2*j}, v{src+2*j+1}", [V(dst + j)], [V(src + 2*j, 2)]))
                if stash is not None:
                    for j in range(4):
                        late.append(valu(f"v_accvgpr_write_b32 a{stash+qb*16+u*4+j}, v{dst+j}", [A(stash + qb*16 + u*4 + j)], [V(dst + j)]))
        ep += body[:16]
        i_bar1 = len(ep) - 1
        ep.append(Ins(f"ds_read_b128 v[{T0+4}:{T0+7}], v{T0+2}", 'ds_r', rd=[f"v{T0+2}"], wr=R('v', T0 + 4, 4)))
        ep += body[16:44]
        ep.append(valu(f"v_or3_b32 v{T0+4}, v{T0+4}, v{T0+5}, v{T0+6}", [V(T0 + 4)], [V(T0 + 4, 3)]))
        ep.append(valu(f"v_or_b32 v{T0+4}, v{T0+4}, v{T0+7}", [V(T0 + 4)], [V(T0 + 4), V(T0 + 7)]))
        ep += body[44:46]
        ep.append(valu(f"v_readfirstlane_b32 s40, v{T0+4}", [S(40)], [V(T0 + 4)]))
        ep += body[46:50]
        ep.append(salu(f"s_or_b32 s40, s40, s{sRedo}", [S(40)], [S(40)]))
        ep.append(Ins(f"s_cbranch_scc1 L_{pf}FB{r}", 'salu'))
        ep.append(Ins(f"L_{pf}Ret{r}:", 'label'))
        i_chk = len(ep) - 1
        ep += body[50:] + late
        ea, eb = s.valu_block(ep)
        for j in range(ea, ea + i_chk + 1): sc.bb[j].cap = 0
        def bar1():
            s.em.wait(s.em.lgkm_needed([fw]), None); s.em.raw(Ins("s_barrier", 'barrier')); return 2
        sc.post(ea + i_bar1, bar1)
        def at_ret():
            assert s.m0own is None
            s.fb[r]['end_aT'] = [a.base for a in s.aT]; s.fb[r]['end_aD'] = [a.base for a in s.aD]
            return 0
        sc.post(ea + i_chk, at_ret)
        ps = s.presync = ea + i_chk
        s.aeb = eb
        s.pre_free = [K[n0 + 15], Vv[n0 + 15]]
        tl = slot0[68]
        wtf = o.get('wtf', '')
        if nxt == 'Q':
            X = s.X; Wq = s.Wq
            if o.get('wt') == 2: s.touch_item('tch', sWq, 21, None, 256, wtf, slot0[68], slot0[69], "wq1t")
            s.add_xfer('stage', X[1][0], earliest=tl, deadline=sy[14], prio=0, spacing=sp_st)
            s.add_xfer('stage', Wq[1][0], earliest=sy[14], deadline=sy[15], prio=0, spacing=sp_st)
            s.add_xfer('kv', K[17], earliest=sy[14], deadline=sy[15], prio=4, spacing=sp_kv)
            s.add_xfer('stage', Wq[1][1], earliest=sy[15], deadline=aend - 30, prio=0, spacing=sp_st)
            s.add_xfer('stage', Wq[1][2], earliest=sy[15], deadline=aend, prio=0, spacing=sp_st)
            s.add_xfer('stage', X[1][1], earliest=ps, deadline=ps + 40, prio=0, spacing=1)
            s.add_xfer('stage', Wq[1][3], earliest=ps, deadline=ps + 80, prio=0, spacing=1)
        elif nxt == 'A':
            s.add_xfer('kv', K[17], earliest=sy[14], deadline=sy[15], prio=4, spacing=sp_kv)
            s.add_xfer('kv', Vv[17], earliest=sy[14], deadline=sy[15], prio=4, spacing=sp_kv)
            s.add_xfer('kv', K[18], earliest=sy[15], deadline=aend, prio=4, spacing=sp_kv)
            s.add_xfer('kv', Vv[18], earliest=sy[15], deadline=aend, prio=4, spacing=sp_kv)
            s.add_xfer('kv', K[19], earliest=ps, deadline=eb - 40, prio=4, spacing=10)
            s.add_xfer('kv', Vv[19], earliest=ps, deadline=eb - 2, prio=4, spacing=10)
        else:
            Wo = s.Wo
            if o.get('wt') == 2 and not (nxt == 'H' and r == 1): s.touch_item('tch', sWo, 23, None, 0, wtf, slot0[68], slot0[69], "wot0")
            s.add_xfer('stage', Wo[0], earliest=tl, deadline=sy[15], prio=0, spacing=sp_st)
            s.add_xfer('stage', Wo[1], earliest=tl, deadline=sy[15], prio=0, spacing=sp_st)
            s.add_xfer('stage', Wo[2], earliest=ps, deadline=ps + 40, prio=0, spacing=1)
            s.add_xfer('stage', Wo[3], earliest=ps, deadline=ps + 80, prio=0, spacing=1)
            s.a_tl = tl; s.a_end = aend

    def bar_after(s, idx, items, extra=None):
        def fn():
            for it in items: assert it.ins is not None, (it.name, "not issued before barrier")
            n = 0
            if s.em.wait(s.em.lgkm_needed([it.ins for it in items]), None): n += 1
            s.em.raw(Ins("s_barrier", 'barrier'))
            if extra: extra()
            return n + 1
        s.sc.post(idx, fn)

    def phase_P(s):
        o = s.o; sc = s.sc; Wo = s.Wo; K = s.K; Vv = s.Vv; sp_st = s.sp_st
        EXA = Xfer('ex', 'EX', [], fixed=(0, 81920))
        p_pre = s.presync
        p0 = sc.n()
        wof = lambda j, nt: V((64 if j % 2 == 0 else 240) + 4 * nt, 4)
        def bfrag(ks, qb):
            grp, u = divmod(ks, 4)
            if grp == 0: return V(OACC + qb * 16 + u * 4, 4)
            if grp == 1: return A(aST + qb * 16 + u * 4, 4)
            idx = (grp - 2) * 20 + qb * 4 + u
            return A(idx * 4, 4) if idx < 36 else A(aL + (idx - 36) * 4, 4)
        pacc = lambda nt, qb: V(160 + (qb * 4 + nt) * 4, 4)
        pk = lambda qb, up: V(24 + (qb * 2 + up) * 4, 4)
        s.sync_at(p_pre, [Wo[0], K[32], Vv[32]], s.pre_free + [K[32], Vv[32]])
        def take_ex():
            s.al.take_range(0, 81920, EXA); EXA.addr = 0; return 0
        sc.post(p_pre, take_ex)
        s.setbase(p_pre, sLo, 0); s.setbase(p_pre, 40, 0)
        def rd_wo(j, e0, dl):
            x = Wo[j // 2]
            for nt in range(4):
                for rd in (0, 1):
                    s.ds_item('rdT', "ds_read_b64_tr_b16", wof(j, nt).sub(2 * rd, 2), s.aT[nt], x, (j & 1) * 4096 + rd * 2048, WBASE, e0, dl, name=f"wo{j}")
        rd_wo(0, p_pre, p0 - 1)
        ppos = {}; kst = {}
        for j in range(65):
            ch, ks = divmod(j, 16)
            kst[j] = sc.n()
            if j == 64: break
            for qb in range(5):
                for nt in range(4):
                    acc = pacc(nt, qb)
                    ppos[(j, nt, qb)] = sc.add(mfma(acc, wof(j, nt), bfrag(ks, qb), acc if ks else 0))
        pend = sc.n() - 1
        PM = o.get('pmark', 12)
        if o.get('pst'):
            s.stamp(kst[0]); s.stamp(kst[4]); s.stamp(kst[PM] - 2); s.stamp(kst[PM + 48])
        for c in range(4): s.mark(kst[PM + 16 * c] - 1, "P", {sOwn: 128, sOth: 128, sLo: 10240, 40: 128} if c < 3 else {})
        for j in range(63):
            if j % 2 == 1:
                m = (j + 1) // 2
                s.sync_at(kst[j], [Wo[m]], [Wo[m - 1]])
                if m + 3 < 36 and j < PM + 48: s.add_xfer('stage', Wo[m + 3], earliest=kst[j], deadline=kst[j] + 30, prio=0, spacing=sp_st)
            rd_wo(j + 1, kst[j], kst[j] + 12)
        if o.get('wt') == 2:
            s.touch_item('tch', sWo, 23, None, 128, o.get('wtf', ''), kst[1], kst[2], "wot1")
            for c in range(3):
                s.touch_item('tch', sWo, 23, 40, 128 * (c + 2), o.get('wtf', ''), kst[PM + 16 * c] + 60, kst[PM + 16 * c] + 80, "wot")
        xs = o.get('exsp', 0)
        def exw(rnd, e0, dl):
            L = []
            for qb in range(5):
                for u in range(4):
                    src = bfrag(rnd * 4 + u, qb)
                    if o.get('exw64'):
                        for hh in range(2):
                            ins = Ins(f"ds_write_b64 v{vLinW}, {src.sub(2*hh, 2)} offset:{(qb*4+u)*1024 + 8*hh}", 'ds_w', rd=[f"v{vLinW}"] + src.sub(2*hh, 2).regs())
                            L.append(sc.item('ex', simple(ins, earliest=e0 + (xs * len(L)) // 2, deadline=dl, prio=3, name=f"exw{rnd}")))
                        continue
                    ins = Ins(f"ds_write_b128 v{vLinW}, {src} offset:{(qb*4+u)*1024}", 'ds_w', rd=[f"v{vLinW}"] + src.regs())
                    L.append(sc.item('ex', simple(ins, earliest=e0 + xs * len(L), deadline=dl, prio=3, name=f"exw{rnd}")))
            return L
        def exr(rnd, e0, dl):
            L = []
            for u in range(4):
                for qb in range(5):
                    dst = bfrag(8 + rnd * 4 + u, qb)
                    ins = Ins(f"ds_read_b128 {dst}, v{vLinR} offset:{(qb*4+u)*1024}", 'ds_r', rd=[f"v{vLinR}"], wr=dst.regs())
                    L.append(sc.item('ex', simple(ins, earliest=e0, deadline=dl, prio=3, name=f"exr{rnd}")))
            return L
        if xs:
            w0 = exw(0, p0, kst[4] - 2); s.bar_after(kst[4] + 4, w0)
            r0 = exr(0, kst[4] + 4, kst[6] - 8); s.bar_after(kst[6] - 2, r0)
            w1 = exw(1, kst[6] - 2, kst[10] - 6); s.bar_after(kst[10], w1)
            r1 = exr(1, kst[10], kst[11] + 8)
        else:
            w0 = exw(0, p0, kst[3] - 2); s.bar_after(kst[3] + 4, w0)
            r0 = exr(0, kst[3] + 4, kst[5] - 2); s.bar_after(kst[5] + 4, r0)
            w1 = exw(1, kst[5] + 4, kst[9] - 2); s.bar_after(kst[9] + 4, w1)
            r1 = exr(1, kst[9] + 4, kst[11] - 4)
        def all_ex_done():
            s.em.wait(s.em.lgkm_needed([it.ins for it in r1]), None); return 1
        sc.post(kst[12] - 3, all_ex_done)
        tail = []
        for ch in range(4):
            j = ch * 16 + 15
            for qb in range(5):
                for up in range(2):
                    for h in range(2):
                        nt = 2 * up + h
                        a = pacc(nt, qb); d = pk(qb, up)
                        for jj in range(2):
                            ins = valu(f"v_cvt_pk_bf16_f32 v{d.lo+2*h+jj}, v{a.lo+2*jj}, v{a.lo+2*jj+1}", [V(d.lo + 2*h + jj)], [V(a.lo + 2*jj, 2)])
                            if ch < 3: sc.item('cv', simple(ins, earliest=ppos[(j, nt, qb)] + 2, deadline=ppos[(j + 1, nt, qb)] - 1, prio=1, name=f"pcvt{ch}"))
                            else: tail.append(ins)
                    off = ((ch * 5 + qb) * 2 + up) * 1024
                    mkso = lambda off=off: salu(f"s_add_u32 s37, s{sLo}, 0x{(off - s.bval[sLo]) & 0xffffffff:x}", [S(37)], [S(sLo)])
                    stx = Ins(f"buffer_store_dwordx4 {pk(qb, up)}, v{vSt}, {sWs}, s37 offen {o.get('stflags','')}", 'vst', rd=pk(qb, up).regs() + [f"v{vSt}", 's37'] + sWs.regs())
                    if ch < 3:
                        e0 = kst[j + 1] + 20 + (qb * 2 + up) * o.get('sp_store', 13)
                        sc.item('st', Item(lambda mkso=mkso: ('salu', mkso(), True), earliest=e0, deadline=e0 + 10, prio=6, name="sto"))
                        sc.item('st', simple(stx, earliest=e0, deadline=e0 + 12, prio=6, name="st"))
                    else:
                        tail += [mkso, stx]
        if o.get('ikr'):
            def prep():
                for t in ("s_mov_b32 s44, s86", "s_mov_b32 s45, s87", "s_mov_b32 s46, 4", "s_mov_b32 s47, 0x20000"): s.em.raw(salu(t))
                s.em.emit(valu("v_mov_b32 v5, 0", [V(5)], []))
                s.em.emit(Ins("buffer_load_dword v6, v5, s[44:47], 0 offen sc1", 'vld', rd=['v5'], wr=['v6'])); return 3
            sc.post(p0 - 1, prep)
            def sigA():
                s.em.wait(None, s.em.vm_needed([i for i in s.em.vm if i.kind == 'vst'])); s.em.raw(Ins("s_barrier", 'barrier')); return s.signal_A()
            sc.post(kst[PM + 48] + o.get('sigoff', 2), sigA)
            tail.insert(0, Ins("buffer_load_dword v7, v5, s[80:83], 0 offen sc1", 'vld', rd=['v5'], wr=['v7']))
        s.stamp(pend)
        s.tail = tail

    def phase_H(s, r):
        o = s.o; sc = s.sc; Wo = s.Wo; K = s.K; Vv = s.Vv; sp_st = s.sp_st
        EXA = Xfer('ex', 'EX', [], fixed=(32768, 40960))
        ps = s.presync
        accs = [160, 80]
        pacc = lambda ch, nt, qb: V(accs[ch & 1] + (qb * 4 + nt) * 4, 4)
        pk = lambda qb, up: V(24 + (qb * 2 + up) * 4, 4)
        ldb = [64, 68, 72, 76, 240, 244, 248, 252]
        wof = lambda j, nt: A(aVF + (j % 2) * 16 + 4 * nt, 4)
        own_v = lambda u, qb: V(OACC + qb * 16 + u * 4, 4)
        own_a = lambda u, qb: A(aQ + qb * 16 + u * 4, 4)
        def bfrag(ch, ks, qb):
            if ks < 4: return own_v(ks, qb) if ch == 0 else own_a(ks, qb)
            return A(aST + qb * 16 + (ks - 4) * 4, 4)
        def ld_items(dst, unit, e0, dl):
            so = salu(f"s_mov_b32 s41, 0x{unit*1024:x}", [S(41)])
            ld = Ins(f"buffer_load_dwordx4 {dst}, v{vSt}, {sWs}, s41 offen", 'vld', rd=[f"v{vSt}", 's41'] + sWs.regs(), wr=dst.regs())
            sc.item('tch', simple(so, earliest=e0, deadline=dl, prio=5, name="cio"))
            return sc.item('tch', simple(ld, earliest=e0, deadline=dl + 2, prio=5, name="cil"))
        def unpack(src, ch, qb, up):
            L = []
            for h in range(2):
                a = pacc(ch, 2 * up + h, qb)
                for jj in range(2):
                    sr = src.lo + 2 * h + jj
                    L.append(valu(f"v_lshlrev_b32 v{a.lo+2*jj}, 16, v{sr}", [V(a.lo + 2*jj)], [V(sr)]))
                    L.append(valu(f"v_and_b32 v{a.lo+2*jj+1}, 0xffff0000, v{sr}", [V(a.lo + 2*jj + 1)], [V(sr)]))
            return L
        if r == 1:
            for qb in range(5):
                for up in range(2): ld_items(pk(qb, up), qb * 2 + up, ps, ps + 30 + 3 * (qb * 2 + up))
            s.valu_block([x for qb in range(5) for up in range(2) for x in unpack(pk(qb, up), 0, qb, up)])
        p0 = sc.n()
        fr = s.pre_free + ([K[32], Vv[32]] if r == 1 else [])
        s.sync_at(ps, [Wo[0]] + ([K[32], Vv[32]] if r == 1 else []), fr); s.pre_free = []
        def take_ex():
            s.al.take_range(32768, 40960, EXA); EXA.addr = 32768; return 0
        sc.post(ps, take_ex)
        def rd_wo(j, e0, dl):
            x = Wo[j // 2]
            for nt in range(4):
                for rd in (0, 1):
                    s.ds_item('rdT', "ds_read_b64_tr_b16", wof(j, nt).sub(2 * rd, 2), s.aT[nt], x, (j & 1) * 4096 + rd * 2048, WBASE, e0, dl, name=f"wo{j}")
        rd_wo(0, ps, p0 - 1)
        ppos = {}; kst = {}
        for j in range(33):
            ch, ks = divmod(j, 8)
            kst[j] = sc.n()
            if j == 32: break
            for qb in range(5):
                for nt in range(4):
                    acc = pacc(ch, nt, qb)
                    ppos[(j, nt, qb)] = sc.add(mfma(acc, wof(j, nt), bfrag(ch, ks, qb), acc if (ks or r == 1) else 0))
        pend = sc.n() - 1
        for j in range(31):
            if j % 2 == 1:
                m = (j + 1) // 2
                s.sync_at(kst[j], [Wo[m]], [Wo[m - 1]])
                if m + 3 < 16: s.add_xfer('stage', Wo[m + 3], earliest=kst[j], deadline=kst[j] + 30, prio=0, spacing=sp_st)
            rd_wo(j + 1, kst[j], kst[j] + 12)
        if o.get('wt') == 2 and r == 0:
            for c in range(1, 4): s.touch_item('tch', sWo, 23, None, 128 * c, o.get('wtf', ''), kst[8 * (c - 1)] if c > 1 else ps, kst[8 * (c - 1)] + 20, "wot")
        def exw(rnd, e0, dl):
            return [sc.item('ex', simple(Ins(f"ds_write_b128 v{vLinW}, {own_v(2*rnd+uu, qb)} offset:{(qb*2+uu)*1024}", 'ds_w', rd=[f"v{vLinW}"] + own_v(2*rnd+uu, qb).regs()),
                                         earliest=e0, deadline=dl, prio=3, name=f"exw{rnd}")) for qb in range(5) for uu in range(2)]
        def exr(rnd, e0, dl):
            L = []
            for uu in range(2):
                for qb in range(5):
                    dst = bfrag(0, 4 + 2 * rnd + uu, qb)
                    L.append(sc.item('ex', simple(Ins(f"ds_read_b128 {dst}, v{vLinR} offset:{(qb*2+uu)*1024}", 'ds_r', rd=[f"v{vLinR}"], wr=dst.regs()), earliest=e0, deadline=dl, prio=3, name=f"exr{rnd}")))
            for uu in range(2):
                for qb in range(5):
                    dst = own_a(2 * rnd + uu, qb)
                    L.append(sc.item('ex', simple(Ins(f"ds_read_b128 {dst}, v{vLinW} offset:{(qb*2+uu)*1024}", 'ds_r', rd=[f"v{vLinW}"], wr=dst.regs()), earliest=e0, deadline=dl, prio=3, name=f"exo{rnd}")))
            return L
        w0 = exw(0, p0, kst[1] - 2); s.bar_after(kst[1] + 3, w0)
        r0 = exr(0, kst[1] + 3, kst[2] + 6); s.bar_after(kst[2] + 14, r0)
        w1 = exw(1, kst[2] + 14, kst[3] + 14); s.bar_after(kst[4] + 2, w1)
        r1 = exr(1, kst[4] + 2, kst[5] + 6)
        exdone = kst[6] + 4
        s.bar_after(exdone, r1, extra=lambda: s.al.release(EXA))
        tail = []; s.late_cvt = []; prev_unp = {}
        for ch in range(4):
            j = ch * 8 + 7
            qbs = list(range(5)) if (ch < 3 or r == 1) else [4, 3, 2, 1, 0]
            for n_, qb in enumerate(qbs):
                for up in ((0, 1) if (ch < 3 or r == 1) else (1, 0)):
                    cv = []
                    for h in range(2):
                        nt = 2 * up + h
                        a = pacc(ch, nt, qb); d = pk(qb, up)
                        for jj in range(2):
                            cv.append((valu(f"v_cvt_pk_bf16_f32 v{d.lo+2*h+jj}, v{a.lo+2*jj}, v{a.lo+2*jj+1}", [V(d.lo + 2*h + jj)], [V(a.lo + 2*jj, 2)]), ppos[(j, nt, qb)], a.lo))
                    off = ((ch * 5 + qb) * 2 + up) * 1024
                    so = salu(f"s_mov_b32 s37, 0x{off:x}", [S(37)])
                    stx = Ins(f"buffer_store_dwordx4 {pk(qb, up)}, v{vSt}, {sWs}, s37 offen {o.get('stflags','')}", 'vst', rd=pk(qb, up).regs() + [f"v{vSt}", 's37'] + sWs.regs())
                    if ch < 3:
                        e0 = kst[j + 1] + 4 + (n_ * 2 + up) * o.get('sp_storeh', 10)
                        for (ins, pos, alo) in cv: sc.item('cv', simple(ins, earliest=pos + 2, deadline=e0 - 1, prio=4, name=f"pcvt{ch}"))
                        sc.item('st', simple(so, earliest=e0, deadline=e0 + 6, prio=6, name="sto"))
                        sc.item('st', simple(stx, earliest=e0, deadline=e0 + 8, prio=6, name="st")).after = [c[0] for c in cv]
                    elif r == 1:
                        tail += [c[0] for c in cv] + [so, stx]
                    else:
                        s.late_cvt.append((cv, so, stx))
            if r == 1 and ch < 3:
                nx = ch + 1
                free_at = kst[4] + 1 if nx == 1 else kst[8 * (nx - 1)] + 4 + 9 * o.get('sp_storeh', 10)
                l0 = kst[8 * ch] + (2 if ch else 0)
                for n_ in range(10):
                    qb, up = divmod(n_, 2)
                    buf = V(ldb[n_ % 8], 4)
                    e_ld = l0 + 6 * n_ if n_ < 8 else max(free_at, l0 + 60) + 10 + 4 * n_
                    li = ld_items(buf, (nx * 5 + qb) * 2 + up, e_ld, e_ld + 6)
                    li.after = prev_unp.get(buf.lo, [])
                    e_un = max(free_at, l0 + 60) + 4 * n_ + (0 if n_ < 8 else 44)
                    U = unpack(buf, nx, qb, up); prev_unp[buf.lo] = U
                    for ins in U:
                        it = sc.item('un', simple(ins, earliest=e_un, deadline=(e_un + 8 if n_ < 2 else ppos[(8 * nx, 2 * up, qb)] - 2), prio=5, name=f"unp{nx}"))
                        it.after = [li.peek()[1]]
        s.stamp(pend)
        if r == 0:
            X = s.X; Wq = s.Wq
            if o.get('wt') == 2: s.touch_item('tch', sWq, 21, None, 256, o.get('wtf', ''), kst[17], kst[18], "wq1t")
            s.add_xfer('kv', K[17], earliest=exdone, deadline=kst[14], prio=4, spacing=20)
            s.add_xfer('stage', Wq[1][0], earliest=kst[24], deadline=kst[25] + 10, prio=0, spacing=sp_st)
            s.add_xfer('stage', Wq[1][1], earliest=kst[25], deadline=kst[26] + 10, prio=0, spacing=sp_st)
            s.add_xfer('stage', X[1][0], earliest=kst[27], deadline=kst[28] + 4, prio=0, spacing=sp_st)
            s.add_xfer('stage', Wq[1][2], earliest=kst[28], deadline=kst[29], prio=0, spacing=sp_st)
            s.add_xfer('stage', Wq[1][3], earliest=kst[29], deadline=kst[30] + 10, prio=0, spacing=sp_st)
            s.presync = kst[31]; s.pre_free = [Wo[15]]
            s.add_xfer('stage', X[1][1], earliest=kst[31], deadline=pend, prio=0, spacing=sp_st)
        else:
            s.tail = tail

    def after_H0(s):
        sc = s.sc; b0 = s.qbase[0]
        last = b0
        for n_, (cv, so, stx) in enumerate(s.late_cvt):
            dl = min(s.qpos0[alo] for (_, _, alo) in cv) - 1
            for (ins, pos, alo) in cv: sc.item('cv', simple(ins, earliest=pos + 2, deadline=s.qpos0[alo] - 1, prio=1, name="pcvtL"))
            e0 = min(b0 + 3 * n_, s.qbase[1] - 8)
            sc.item('st', simple(so, earliest=e0, deadline=s.qbase[1] - 4, prio=6, name="sto", ))
            it = sc.item('st', simple(stx, earliest=max(e0, max(s.qpos0[alo] for (_, _, alo) in cv) - 1 if False else e0), deadline=s.qbase[1] - 3, prio=6, name="st"))
            it.after = [c[0] for c in cv]
        for j in range(20):
            sc.item('cv', simple(valu(f"v_mov_b32 v{NEGM+j}, 0", [V(NEGM + j)], []), earliest=s.qbase[13], deadline=s.qbase[15], prio=8, name="negm0"))

    def build(s):
        s.setup(); s.start()
        mkWo = lambda L: [setattr(x, 'nreads', 16) or x for x in L]
        if s.var == 'Z':
            s.nextA = 0; s.phase_Q(0, aQ, 'A'); s.phase_A(0, aQ, 'Q', aST)
            s.nextA = 1; s.phase_Q(1, aQ, 'A')
            s.Wo = mkWo([s.xf_Wo(m // 8, m % 8) for m in range(36)])
            s.phase_A(1, aQ, 'P', None); s.phase_P(); s.stamp(s.sc.n() - 1)
        elif s.var == 'Y':
            s.phase_Q(0, aST, 'Q'); s.nextA = 0; s.phase_Q(1, aQ, 'A')
            s.phase_A(0, aST, 'A', aST)
            s.Wo = mkWo([s.xf_Wo(m // 8, m % 8) for m in range(36)])
            s.phase_A(1, aQ, 'P', None); s.phase_P(); s.stamp(s.sc.n() - 1)
        else:
            s.nextA = 0; s.phase_Q(0, aQ, 'A')
            s.Wo = mkWo([s.xf_WoH(0, m // 4, m % 4) for m in range(16)])
            s.phase_A(0, aQ, 'H', None); s.phase_H(0)
            s.nextA = 1; s.phase_Q(1, aQ, 'A', k0order=[4, 3, 2, 1, 0]); s.after_H0()
            s.Wo = mkWo([s.xf_WoH(1, m // 4, m % 4) for m in range(16)])
            s.phase_A(1, aQ, 'H', None); s.phase_H(1)
        s.sc.run()
        for ins in s.tail: s.em.emit(ins() if callable(ins) else ins)
        if s.o.get('ikr'): s.reduce_tail()
        s.finish()

    def spin(s, lab, srd, off, base, need, dst, out):
        em = s.em
        em.raw(salu("s_mov_b32 s40, 0x8000")); em.raw(Ins(lab + ":", 'label'))
        em.raw(Ins(f"buffer_load_dword v{dst}, v5, {srd}, 0 offen offset:{off} sc1", 'salu')); em.raw(Ins("s_waitcnt vmcnt(0)", 'wait'))
        em.raw(valu(f"v_readfirstlane_b32 s37, v{dst}", [S(37)], [V(dst)])); em.raw(Ins("s_nop 3", 'nop', states=4))
        em.raw(salu("s_sub_u32 s40, s40, 1")); em.raw(Ins(f"s_cbranch_scc1 {out}", 'salu'))
        if base: em.raw(salu(f"s_sub_u32 s37, s37, {base}"))
        em.raw(salu(f"s_cmp_lt_u32 s37, {need}")); em.raw(Ins(f"s_cbranch_scc1 {lab}", 'salu'))
        em.raw(Ins(out + ":", 'label'))

    def signal_A(s):
        em = s.em; pf = s.pf
        em.raw(salu(f"s_cmp_lg_u32 s{sWave}, 0")); em.raw(Ins(f"s_cbranch_scc1 L_{pf}sA", 'salu'))
        em.raw(valu("v_readfirstlane_b32 s37, v6", [S(37)], [V(6)])); em.raw(Ins("s_nop 3", 'nop', states=4))
        em.raw(salu("s_cmp_ge_u32 s37, 8")); em.raw(Ins(f"s_cbranch_scc1 L_{pf}sA1o", 'salu'))
        s.spin(f"L_{pf}sA1", "s[44:47]", 0, None, 8, 6, f"L_{pf}sA1o")
        em.raw(salu("s_mov_b64 exec, 1")); em.raw(valu("v_mov_b32 v6, 1", [V(6)], []))
        em.raw(Ins("buffer_atomic_add v6, v5, s[80:83], 0 offen", 'salu')); em.raw(salu("s_mov_b64 exec, -1"))
        em.raw(Ins(f"L_{pf}sA:", 'label')); em.raw(Ins("s_nop 4", 'nop', states=5))
        return 3

    def reduce_tail(s):
        em = s.em; e = em.emit; pf = s.pf
        sa = lambda t, w=(), rd=(): e(salu(t, w, rd))
        va = lambda t, w, rd: e(valu(t, w, rd))
        lab = lambda t: em.raw(Ins(t + ":", 'label'))
        br = lambda t: em.raw(Ins(t, 'salu'))
        def st_():
            if s.o.get('stamps'): k = s.stamps; s.stamps += 1; em.raw(Ins(f"s_memtime s[{50+2*k}:{51+2*k}]", 'salu'))
        def ld(em_, n):
            t, sl = divmod(n, 8)
            d = V(80 + n * 4, 4)
            if s.o.get('rwin') and n >= s.o['rwin'] and em_ is em and n >= NF: em_.raw(Ins(f"s_waitcnt vmcnt({s.o['rwin'] - 1}) ", 'salu'))
            if s.o.get('rrot'): em_.emit(salu(f"s_add_u32 s37, s{8 + sl}, 0x{t * 2048:x}", [S(37)]))
            else: em_.emit(salu(f"s_add_u32 s37, s74, 0x{t * 2048 + sl * 163840:x}", [S(37)]))
            em_.emit(Ins(f"buffer_load_dwordx4 {d}, v{vSt}, s[76:79], s37 offen sc1", 'vld', rd=[f"v{vSt}", 's37'], wr=d.regs()))
        NF = min(10, s.o.get('rwin', 10))
        if s.o.get('rrot'):
            sa("s_lshr_b32 s40, s2, 3"); sa("s_add_u32 s40, s40, s2"); sa(f"s_add_u32 s40, s40, s{sWave}")
            for sl in range(8):
                sa(f"s_add_u32 s37, s40, {sl}"); sa("s_and_b32 s37, s37, 7"); sa("s_mul_i32 s37, s37, 163840"); sa(f"s_add_u32 s{8 + sl}, s74, s37")
        va("v_accvgpr_read_b32 v1, a252", [V(1)], [])
        va("v_readfirstlane_b32 s41, v0", [S(41)], [V(0)]); va("v_readfirstlane_b32 s43, v1", [S(43)], [V(1)])
        va(f"v_bfe_u32 v2, v{vSt}, 4, 4", [V(2)], [V(vSt)]); va("v_lshlrev_b32 v2, 11, v2", [V(2)], [V(2)])
        va(f"v_lshrrev_b32 v3, 8, v{vSt}", [V(3)], [V(vSt)]); va("v_lshl_add_u32 v2, v3, 4, v2", [V(2)], [V(3), V(2)])
        sa("s_mov_b32 s4, s84"); sa("s_mov_b32 s5, s85"); sa("s_mov_b32 s6, 5242880"); sa("s_mov_b32 s7, 0x20000"); sa("s_mov_b32 s46, 0xffff0000")
        va("v_readfirstlane_b32 s37, v7", [S(37)], [V(7)])
        sa(f"s_cmp_eq_u32 s{sWave}, 3"); br(f"s_cbranch_scc1 L_{pf}r3")
        sa("s_sub_u32 s37, s37, s41", [S(37)], [S(37)]); sa("s_cmp_lt_u32 s37, 8"); br(f"s_cbranch_scc1 L_{pf}rslow")
        em2 = Emitter()
        for n in range(NF): ld(em2, n)
        em.out += em2.out
        em.raw(Ins(f"s_waitcnt vmcnt({NF})", 'wait')); em.raw(Ins("s_barrier", 'barrier')); br(f"s_branch L_{pf}rest")
        lab(f"L_{pf}rslow")
        em.raw(Ins("s_waitcnt vmcnt(0)", 'wait')); em.raw(Ins("s_barrier", 'barrier'))
        s.spin(f"L_{pf}rA", "s[80:83]", 0, "s41", 8, 7, f"L_{pf}rAo")
        br(f"s_branch L_{pf}rfirst")
        lab(f"L_{pf}r3")
        em.raw(Ins("s_waitcnt vmcnt(0)", 'wait')); em.raw(Ins("s_barrier", 'barrier'))
        em.raw(salu("s_mov_b64 exec, 1")); em.raw(valu("v_mov_b32 v24, 1", [V(24)], []))
        em.raw(Ins("buffer_atomic_add v24, v5, s[80:83], 0 offen offset:128", 'salu')); em.raw(salu("s_mov_b64 exec, -1"))
        s.spin(f"L_{pf}rB", "s[80:83]", 128, "s43", 8, 25, f"L_{pf}rBo")
        lab(f"L_{pf}rfirst")
        em.vm = []; em.pend = {}
        for n in range(NF): ld(em, n)
        lab(f"L_{pf}rest")
        st_()
        for n in range(NF, 40): ld(em, n)
        for t in range(5):
            ac = 24 + (t & 1) * 16
            for sl in range(8):
                for j in range(4):
                    src = 80 + (t * 8 + sl) * 4 + j
                    if sl == 0:
                        va(f"v_lshlrev_b32 v{ac+2*j}, 16, v{src}", [V(ac + 2*j)], [V(src)]); va(f"v_and_b32 v{ac+2*j+1}, s46, v{src}", [V(ac + 2*j + 1)], [V(src)])
                    else:
                        va(f"v_lshlrev_b32 v60, 16, v{src}", [V(60)], [V(src)]); va(f"v_and_b32 v61, s46, v{src}", [V(61)], [V(src)])
                        va(f"v_pk_add_f32 v[{ac+2*j}:{ac+2*j+1}], v[{ac+2*j}:{ac+2*j+1}], v[60:61]", [V(ac + 2*j, 2)], [V(ac + 2*j, 2), V(60, 2)])
            o4 = ac + 8
            for j in range(4): va(f"v_cvt_pk_bf16_f32 v{o4+j}, v{ac+2*j}, v{ac+2*j+1}", [V(o4 + j)], [V(ac + 2*j, 2)])
            for op in ("v_permlane32_swap_b32", "v_permlane16_swap_b32"):
                va(f"{op} v{o4}, v{o4+2}", [V(o4), V(o4 + 2)], [V(o4), V(o4 + 2)]); va(f"{op} v{o4+1}, v{o4+3}", [V(o4 + 1), V(o4 + 3)], [V(o4 + 1), V(o4 + 3)])
            sa(f"s_add_u32 s37, s75, 0x{t * 32768:x}", [S(37)])
            e(Ins(f"buffer_store_dwordx4 v[{o4}:{o4+3}], v2, s[4:7], s37 offen {s.o.get('oflags', '')}", 'vst', rd=R('v', o4, 4) + ['v2', 's37']))

    def make_pins(s):
        pins = {}
        groups = {}
        for (gname, idx) in s.marks: groups.setdefault(gname, []).append(idx)
        for gname, m in groups.items():
            n = len(m) - 1; L = m[1] - m[0]
            assert all(m[j + 1] - m[j] == L for j in range(n))
            for k, items in s.sc.streams.items():
                T = [i for i, it in enumerate(items) if m[n - 1] <= it.gap < m[n]]
                c = len(T)
                if c == 0:
                    inside = [i for i, it in enumerate(items) if m[0] <= it.gap < m[n]]
                    for i in inside: pins[(k, i)] = (None, m[0] - 1)
                    continue
                for j in range(n):
                    for i in T:
                        pins[(k, i - (n - 1 - j) * c)] = (items[i].gap - (n - 1 - j) * L, items[i].gap - (n - 1 - j) * L)
                first = T[0] - (n - 1) * c
                for i in range(first - 1, -1, -1):
                    if items[i].gap < m[0] - 60: break
                    if (k, i) not in pins: pins[(k, i)] = (None, m[0] - 1)
                if T[-1] + 1 < len(items) and (k, T[-1] + 1) not in pins: pins[(k, T[-1] + 1)] = (m[n], None)
        return pins

    def roll(s):
        out = s.em.out
        groups = {}
        for i, ins in enumerate(out):
            if ins.kind == 'comment' and ins.tag and ins.tag[0] == 'mark': groups.setdefault(ins.tag[1], []).append(i)
        def split(seg):
            body = []; waits = {}
            for x in seg:
                if x.kind == 'wait':
                    w = waits.setdefault(len(body), {})
                    for nm, v in re.findall(r"(\w+)\((\d+)\)", x.text): w[nm] = min(w.get(nm, 99), int(v))
                else: body.append(x)
            return body, waits
        edits = []
        for gname, idx in groups.items():
            segs = [split(out[idx[j]:idx[j + 1]]) for j in range(len(idx) - 1)]
            txt = [[x.text for x in b] for b, w in segs]
            best = (0, 1); j = 0
            while j < len(segs):
                k = j + 1
                while k < len(segs) and txt[k] == txt[j]: k += 1
                if k - j > best[1]: best = (j, k - j)
                j = k
            sys.stderr.write(f"roll {gname}: {len(segs)} periods, lens {[len(x) for x in txt]}, identical run start {best[0]} x{best[1]}\n")
            if best[1] < len(segs) and s.o.get('rolldiff'):
                import difflib
                for j in range(len(segs) - 1):
                    d = [l for l in difflib.unified_diff(txt[j], txt[j + 1], lineterm='', n=0)]
                    if d: sys.stderr.write(f"  diff {j}->{j+1} ({len(d)} lines):\n" + "\n".join(d[:30]) + "\n")
            if best[1] >= 2:
                body = segs[best[0]][0]; mw = {}
                last = segs[best[0] + best[1] - 1][1]
                for j in range(best[0], best[0] + best[1]):
                    for p, w in segs[j][1].items():
                        for nm, v in w.items(): mw.setdefault(p, {})[nm] = min(mw.get(p, {}).get(nm, 99), v)
                for p, w in sorted(mw.items()):
                    if w != last.get(p): sys.stderr.write(f"   merged wait at {p}: {w} (steady {last.get(p)})\n")
                new = []
                for p in range(len(body) + 1):
                    if p in mw: new.append(Ins("s_waitcnt " + " ".join(f"{nm}({v})" for nm, v in sorted(mw[p].items(), reverse=True)), 'wait'))
                    if p < len(body): new.append(body[p])
                edits.append((idx[best[0]], idx[best[0] + best[1]], new, best[1], gname))
        for (a, c, new, n, gname) in sorted(edits, key=lambda e: -e[0]):
            pre = [salu(f"s_mov_b32 s{sCnt}, {n}"), Ins(f"L_{s.pf}{gname}:", 'label')]
            post = [salu(f"s_sub_u32 s{sCnt}, s{sCnt}, 1"), salu(f"s_cmp_lg_u32 s{sCnt}, 0"), Ins(f"s_cbranch_scc1 L_{s.pf}{gname}", 'salu')]
            s.em.out = s.em.out[:a] + pre + new + post + s.em.out[c:]

    def finish(s):
        e = s.em
        if s.o.get('stamps'):
            k = s.stamps
            e.raw(Ins(f"s_waitcnt vmcnt(0)", 'wait'))
            e.raw(Ins(f"s_memtime s[{50+2*k}:{51+2*k}]", 'salu'))
            e.raw(Ins(f"s_memrealtime s[92:93]", 'salu'))
            e.raw(Ins("s_waitcnt lgkmcnt(0)", 'wait'))
            e.raw(salu(f"s_lshl_b32 s40, s2, 2")); e.raw(salu(f"s_add_u32 s40, s40, s{sWave}")); e.raw(salu("s_lshl_b32 s40, s40, 6"))
            e.raw(salu("s_add_u32 s24, s88, 0x4000000")); e.raw(salu("s_addc_u32 s25, s89, 0")); e.raw(salu("s_mov_b32 s26, 0x100000"))
            e.raw(salu("s_mov_b64 exec, 1"))
            for j in range(k + 1):
                e.raw(valu(f"v_mov_b32 v21, s{50+2*j}", [V(21)], [])); e.raw(valu(f"v_mov_b32 v22, {4*j}", [V(22)], []))
                e.raw(Ins(f"buffer_store_dword v21, v22, s[24:27], s40 offen", 'vst'))
                e.raw(Ins("s_nop 1", 'nop'))
            for j, sr in ((13, 94), (14, 90), (15, 92)):
                e.raw(valu(f"v_mov_b32 v21, s{sr}", [V(21)], [])); e.raw(valu(f"v_mov_b32 v22, {4*j}", [V(22)], []))
                e.raw(Ins(f"buffer_store_dword v21, v22, s[24:27], s40 offen", 'vst'))
                e.raw(Ins("s_nop 1", 'nop'))
        e.raw(Ins("s_endpgm", 'salu'))
        e.raw(Ins(f"L_{s.pf}end:", 'label'))
        for r in sorted(s.fb): s.fallback(r)

    def fallback(s, r):
        fb = s.fb[r]; pf = s.pf
        em = Emitter(); e = em.emit
        sa = lambda t, w=(), rd=(): e(salu(t, w, rd))
        va = lambda t, w, rd: e(valu(t, w, rd))
        e(Ins(f"L_{pf}FB{r}:", 'label'))
        sa(f"s_cmp_eq_u32 s{sRedo}, 0"); e(Ins(f"s_cbranch_scc1 L_{pf}FBgo{r}", 'salu'))
        for j in range(20): va(f"v_mov_b32 v{NEGM+j}, 0", [V(NEGM + j)], [])
        sa(f"s_mov_b32 s{sRedo}, 0"); e(Ins(f"s_branch L_{pf}Ret{r}", 'salu'))
        e(Ins(f"L_{pf}FBgo{r}:", 'label'))
        e(Ins("s_waitcnt vmcnt(0) lgkmcnt(0)", 'wait')); e(Ins("s_barrier", 'barrier'))
        KF, ST, MX, AD = 80, 96, 116, 124
        va(f"v_bfe_u32 v{AD}, v{vSt}, 4, 4", [V(AD)], [V(vSt)])
        va(f"v_lshlrev_b32 v{AD}, 8, v{AD}", [V(AD)], [V(AD)])
        va(f"v_lshrrev_b32 v{AD+1}, 8, v{vSt}", [V(AD + 1)], [V(vSt)])
        va(f"v_lshl_add_u32 v{AD}, v{AD+1}, 3, v{AD}", [V(AD)], [V(AD + 1), V(AD)])
        for qb in range(5): va(f"v_mov_b32 v{MX+qb}, 0xff800000", [V(MX + qb)], [])
        sa(f"s_mov_b32 s40, 0", [S(40)]); sa(f"s_mov_b32 s{sCnt}, 32")
        e(Ins(f"L_{pf}FBloop{r}:", 'label'))
        for u in range(4):
            for pc in range(2):
                d = V(KF + 4 * u + 2 * pc, 2)
                e(Ins(f"buffer_load_dwordx2 {d}, v{AD}, {sK}, s40 offen offset:{64*u+32*pc}", 'vld', rd=[f"v{AD}", 's40'], wr=d.regs()))
        for qb in range(5):
            for u in range(4):
                d = V(ST + 4 * qb, 4)
                e(mfma(d, V(KF + 4 * u, 4), A(fb['qs'] + qb * 16 + u * 4, 4), d if u else 0))
        for qb in range(5):
            va(f"v_max3_f32 v{MX+qb}, v{MX+qb}, v{ST+4*qb}, v{ST+4*qb+1}", [V(MX + qb)], [V(MX + qb), V(ST + 4*qb, 2)])
            va(f"v_max3_f32 v{MX+qb}, v{MX+qb}, v{ST+4*qb+2}, v{ST+4*qb+3}", [V(MX + qb)], [V(MX + qb), V(ST + 4*qb + 2, 2)])
        sa("s_add_u32 s40, s40, 4096", [S(40)]); sa(f"s_sub_u32 s{sCnt}, s{sCnt}, 1"); sa(f"s_cmp_lg_u32 s{sCnt}, 0")
        e(Ins("s_nop 7", 'nop', states=8))
        e(Ins(f"s_cbranch_scc1 L_{pf}FBloop{r}", 'salu'))
        for xm in (16, 32):
            va(f"v_lshrrev_b32 v{AD}, 2, v{vSt}", [V(AD)], [V(vSt)])
            va(f"v_xor_b32 v{AD}, {4*xm}, v{AD}", [V(AD)], [V(AD)])
            for qb in range(5):
                e(Ins(f"ds_bpermute_b32 v{ST+qb}, v{AD}, v{MX+qb}", 'ds_r', rd=[f"v{AD}", f"v{MX+qb}"], wr=[f"v{ST+qb}"]))
            for qb in range(5):
                va(f"v_max_f32 v{MX+qb}, v{MX+qb}, v{ST+qb}", [V(MX + qb)], [V(MX + qb), V(ST + qb)])
        for qb in range(5):
            for j in range(4): va(f"v_sub_f32 v{NEGM+4*qb+j}, 0, v{MX+qb}", [V(NEGM + 4*qb + j)], [V(MX + qb)])
        sa(f"s_add_u32 s{sKV}, s{sRot}, 0x{fb['bval'].get(sKV, 0):x}", [S(sKV)])
        for regs, b0, b1 in ((vT, fb['aT'], fb['end_aT']), (vD, fb['aD'], fb['end_aD'])):
            for v, x0, x1 in zip(regs, b0, b1):
                if x0 != x1: va(f"v_add_u32 v{v}, 0x{(x0 - x1) & 0xffffffff:x}, v{v}", [V(v)], [V(v)])
        for i in fb['dmas']:
            (x, srd, voff, sbase, sconst, imm, ldsoff, m0b, flags) = i.tag
            sa(f"s_add_u32 m0, s{m0b}, 0x{x.fixed[0] + ldsoff - imm:x}", ['m0'])
            sa(f"s_add_u32 s{sOff}, s{sRot}, 0x{sconst & 0x1ffff:x}", [S(sOff)]); sa(f"s_and_b32 s{sOff}, s{sOff}, 0x1ffff", [S(sOff)])
            e(Ins(i.text, 'dma', rd=i.rd))
        e(Ins("s_waitcnt vmcnt(0)", 'wait')); e(Ins("s_barrier", 'barrier'))
        for i in fb['reads']: em.raw(Ins(i.text, 'ds_r'))
        e(Ins("s_waitcnt lgkmcnt(0)", 'wait'))
        sa(f"s_mov_b32 s{sRedo}, 1")
        e(Ins(f"s_branch L_{pf}Aent{r}", 'salu'))
        s.em.out += em.out

def reduce_kernel(rf=''):
    L = []; a = L.append
    a("s_cmp_ge_u32 s2, 640"); a("s_cbranch_scc1 LR_end")
    a("s_load_dwordx2 s[4:5], s[0:1], 80"); a("s_load_dwordx2 s[8:9], s[0:1], 96")
    a("v_lshrrev_b32 v1, 6, v0"); a("s_nop 0"); a("v_readfirstlane_b32 s12, v1"); a("v_and_b32 v0, 63, v0")
    a("s_lshl_b32 s13, s2, 2"); a("s_nop 2"); a("s_add_u32 s13, s13, s12")
    a(f"s_mul_hi_u32 s14, s13, {(2**32 + 79)//80}")
    a("s_mul_i32 s15, s14, 80"); a("s_sub_u32 s15, s13, s15")
    a(f"s_mul_hi_u32 s16, s15, {(2**32 + 19)//20}")
    a("s_mul_i32 s17, s16, 20"); a("s_sub_u32 s17, s15, s17")
    a(f"s_mul_hi_u32 s18, s17, {(2**32 + 4)//5}")
    a("s_mul_i32 s19, s18, 5"); a("s_sub_u32 s19, s17, s19")
    a("s_mul_i32 s20, s14, 1310720"); a("s_mul_i32 s21, s16, 40960"); a("s_add_u32 s20, s20, s21")
    a("s_lshl_b32 s21, s17, 11"); a("s_add_u32 s20, s20, s21")
    a("v_lshlrev_b32 v1, 4, v0")
    a("s_waitcnt lgkmcnt(0)")
    a("s_mov_b32 s10, 41943040"); a("s_mov_b32 s11, 0x20000")
    a("s_mov_b32 s6, 5242880"); a("s_mov_b32 s7, 0x20000")
    for sl in range(8):
        for up in range(2):
            d = 16 + (sl * 2 + up) * 4
            a(f"buffer_load_dwordx4 v[{d}:{d+3}], v1, s[8:11], s20 offen offset:{up*1024} {rf}")
        if sl < 7: a("s_add_u32 s20, s20, 163840")
    a("s_and_b32 s22, s14, 15"); a("s_lshr_b32 s23, s14, 4")
    a("s_mul_i32 s22, s22, 160"); a("s_and_b32 s24, s16, 1"); a("s_mul_i32 s24, s24, 80"); a("s_add_u32 s22, s22, s24")
    a("s_lshl_b32 s24, s19, 4"); a("s_add_u32 s22, s22, s24"); a("s_lshl_b32 s22, s22, 11")
    a("s_lshl_b32 s23, s23, 10"); a("s_lshr_b32 s24, s16, 1"); a("s_lshl_b32 s24, s24, 9"); a("s_add_u32 s23, s23, s24")
    a("s_lshl_b32 s24, s18, 7"); a("s_add_u32 s23, s23, s24"); a("s_add_u32 s22, s22, s23")
    a("v_and_b32 v2, 15, v0"); a("v_lshlrev_b32 v2, 11, v2"); a("v_lshrrev_b32 v3, 4, v0"); a("v_lshl_add_u32 v2, v3, 3, v2")
    a("s_mov_b32 s25, 0xffff0000")
    for sl in range(8):
        a(f"s_waitcnt vmcnt({14 - 2*sl})")
        for j in range(8):
            src = 16 + sl * 8 + j
            if sl == 0:
                a(f"v_lshlrev_b32 v{80+2*j}, 16, v{src}"); a(f"v_and_b32 v{81+2*j}, s25, v{src}")
            else:
                a(f"v_lshlrev_b32 v4, 16, v{src}"); a(f"v_and_b32 v5, s25, v{src}")
                a(f"v_add_f32 v{80+2*j}, v{80+2*j}, v4"); a(f"v_add_f32 v{81+2*j}, v{81+2*j}, v5")
    for j in range(8):
        a(f"v_cvt_pk_bf16_f32 v{8+j}, v{80+2*j}, v{81+2*j}")
    for t in range(4):
        a(f"buffer_store_dwordx2 v[{8+2*t}:{9+2*t}], v2, s[4:7], s22 offen offset:{32*t}")
    a("LR_end:"); a("s_endpgm")
    return "\n".join(L)

HEADER = open('cdna_kernels/' + NAME + '.s.ref').read().split("; Override launch")[0]

def kd(name, nv, acc):
    return f""".amdhsa_kernel {name}
  .amdhsa_next_free_vgpr {nv}
  .amdhsa_next_free_sgpr 102
  .amdhsa_accum_offset {acc}
  .amdhsa_group_segment_fixed_size 0
  .amdhsa_kernarg_size 104
  .amdhsa_user_sgpr_count 2
  .amdhsa_user_sgpr_kernarg_segment_ptr 1
  .amdhsa_system_sgpr_workgroup_id_x 1
.end_amdhsa_kernel
"""

def make(opts):
    vs = opts.get('var', 'XY')
    gens = []
    for v in dict.fromkeys(vs):
        g = Gen(opts, v); g.build()
        if opts.get('roll', 1):
            pins = g.make_pins()
            g = Gen(opts, v); g.sc.pins = pins
            g.build(); g.roll()
        if opts.get('drop'):
            dr = opts['drop'].split(',')
            first = next(j for j, i in enumerate(g.em.out) if i.kind == 'dma' and 'lds' in i.text)
            last = max(j for j, i in enumerate(g.em.out) if i.kind == 'mfma' and 'FB' not in i.text and j < next(t for t, z in enumerate(g.em.out) if z.text == 's_endpgm'))
            g.em.out = [i for j, i in enumerate(g.em.out) if i.kind not in dr or 's[24:27], s40' in i.text or j < first or (j > last and i.kind == 'valu')]
        n = {}
        for i in g.em.out: n[i.kind] = n.get(i.kind, 0) + 1
        sys.stderr.write(f"{v}: instr counts {n} overflow units {g.sc.overflow} nops {g.em.nnop} late {g.sc.softlate[:8]}\n")
        gens.append(g)
    pg = Gen(opts, 'Z'); pg.prologue()
    main = pg.em.text() + "\n"
    if len(gens) == 2:
        main += f"s_cmp_eq_u32 s45, 0\ns_cbranch_scc1 L_path0\ns_branch L_path1\nL_end:\ns_endpgm\nL_path0:\n" + gens[0].em.text() + "\nL_path1:\n" + gens[1].em.text()
    else:
        main += "s_branch L_path0\nL_end:\ns_endpgm\nL_path0:\n" + gens[0].em.text()
    g = gens[0]
    kn = NAME + "_kernel"
    launches = f"; @launch kernel={kn} grid=(256,1,1) block=(256,1,1) lds={LDS_BYTES}\n"
    if opts.get('ikr') and opts.get('single', 1): launches = f"; @launch grid=(256,1,1) block=(256,1,1) lds={LDS_BYTES}\n"
    if not opts.get('noreduce') and not opts.get('ikr'):
        launches += f"; @launch kernel=reduce_kernel grid=(640,1,1) block=(256,1,1) lds=0\n"
    t = HEADER + launches + '.amdgcn_target "amdgcn-amd-amdhsa--gfx950"\n.text\n'
    t += f".globl {kn}\n.p2align 8\n.type {kn},@function\n{kn}:\n" + main + "\n"
    if not opts.get('ikr'): t += ".globl reduce_kernel\n.p2align 8\n.type reduce_kernel,@function\nreduce_kernel:\n" + reduce_kernel(opts.get('rflags', '')) + "\n"
    t += '.section .rodata,"a"\n.p2align 6\n' + kd(kn, 512, 256)
    if not opts.get('ikr'): t += ".p2align 6\n" + kd("reduce_kernel", 96, 96)
    return t, g

if __name__ == "__main__":
    opts = {}
    out = sys.argv[1]
    for kv in sys.argv[2:]:
        k, v = kv.split("=", 1)
        opts[k] = int(v) if v.lstrip('-').isdigit() else v
    t, g = make(opts)
    open(out, "w").write(t)
```
